```python
import torch

def _softmax(x, axis=-1):
    return torch.softmax(x, dim=axis)
def _gelu(x):
    return torch.nn.functional.gelu(x, approximate="tanh")
def _silu(x):
    return torch.nn.functional.silu(x)
def _sigmoid(x):
    return torch.sigmoid(x)
def _layernorm(x, axis=-1, eps=1e-5):
    m = x.mean(dim=axis, keepdim=True)
    v = x.var(dim=axis, keepdim=True, unbiased=False)
    return (x - m) / torch.sqrt(v + eps)
def _scatter_add(tgt, idx, src, axis=0):
    return tgt.clone().index_add_(axis, idx, src)
def _segment_sum(src, seg, n):
    out = torch.zeros((n,) + src.shape[1:], dtype=src.dtype)
    return out.index_add_(0, seg, src)
def _pad(x, pw):
    flat = tuple(v for pair in reversed(pw) for v in pair)
    return torch.nn.functional.pad(x, flat)

kernel_name = 'concat_heads__ssm_conv_h3__softmax_full_mha__prompt'

def setup_inputs():

    _w = (lambda a: (lambda t: t.to(torch.bfloat16) if t.is_floating_point() else t)(torch.as_tensor(a)))
    def _A_setup():
        B, S, D = 1, 2048, 1024
        ks = 4
        return {
            "q": _w((lambda *s: torch.randn(*s, dtype=torch.bfloat16) * 0.05)(B, S, D)),
            "k": _w((lambda *s: torch.randn(*s, dtype=torch.bfloat16) * 0.8)(B, S, D)),
            "v": _w((lambda *s: torch.randn(*s, dtype=torch.bfloat16) * 0.8)(B, S, D)),
            "shift_k": _w((lambda *s: torch.randn(*s, dtype=torch.bfloat16) * 0.8)(D, ks) * 0.5),
            "ssm_k": _w((lambda *s: torch.randn(*s, dtype=torch.bfloat16) * 0.8)(D, S) * (1.0 / S ** 0.5)),
            "ssm_D": _w((lambda *s: torch.randn(*s, dtype=torch.bfloat16) * 0.8)(D)),
        }
    _A_in = _A_setup()

    def _B_setup():
        B, S, D = 1, 2048, 1024
        return {
            "x": _w((lambda *s: torch.randn(*s, dtype=torch.bfloat16) * 0.2)(B, S, D)),
            "wqkv": _w((lambda *s: torch.randn(*s, dtype=torch.bfloat16) * 0.2)(D, 3 * D)),
            "wo": _w((lambda *s: torch.randn(*s, dtype=torch.bfloat16) * 0.05)(D, D)),
        }
    _B_in = _B_setup()

    return {
        "A_q": _A_in["q"],
        "A_k": _A_in["k"],
        "A_v": _A_in["v"],
        "A_shift_k": _A_in["shift_k"],
        "A_ssm_k": _A_in["ssm_k"],
        "A_ssm_D": _A_in["ssm_D"],
        "B_x": _B_in["x"],
        "B_wqkv": _B_in["wqkv"],
        "B_wo": _B_in["wo"],
    }

def reference(A_q, A_k, A_v, A_shift_k, A_ssm_k, A_ssm_D, B_x, B_wqkv, B_wo):
    def _A_ref(q, k, v, shift_k, ssm_k, ssm_D):
        B, S, D = q.shape
        ks = shift_k.shape[-1]
        k_pad = _pad(k, ((0, 0), (ks - 1, 0), (0, 0)))
        k_shift = torch.zeros_like(k)
        for t in range(ks):
            k_shift = k_shift + k_pad[:, t:t + S, :] * shift_k[:, ks - 1 - t][None, None, :]
        kv = k_shift * v
        L = 2 * S
        kv_pad = _pad(kv, ((0, 0), (0, S), (0, 0)))
        kf_pad = _pad(ssm_k, ((0, 0), (0, S)))
        kv_f = (lambda x, axes=(-2,-1): torch.fft.rfft2(x.float(), dim=axes))(kv_pad[:, None, :, :], axes=(1, 2))
        kf_f = (lambda x, axes=(-2,-1): torch.fft.rfft2(x.float(), dim=axes))(kf_pad[:, None, :], axes=(1, 2))
        kf_f = (lambda x, *d: x.permute(*d))(kf_f, 1, 2, 0)
        y_f = kv_f * kf_f[None, :, :, :]
        y = (lambda x, s, axes=(-2,-1): torch.fft.irfft2(x, s=s, dim=axes).to(torch.bfloat16))(y_f, (1, L), axes=(1, 2))[:, 0, :S, :]
        y = y + kv * ssm_D[None, None, :]
        return q * y

    def _B_ref(x, wqkv, wo):
        B, S, D = x.shape
        H = 32; Dh = D // H
        qkv = (lambda x, *d: x.permute(*d))((x @ wqkv).reshape(B, S, 3, H, Dh), 2, 0, 3, 1, 4)
        q, k, v = qkv[0], qkv[1], qkv[2]
        scale = Dh ** -0.5
        scores = torch.einsum("bhqd,bhkd->bhqk", q, k) * scale
        p = _softmax(scores, axis=-1)
        o = torch.einsum("bhqk,bhkd->bhqd", p, v)
        return (lambda x, *d: x.permute(*d))(o, 0, 2, 1, 3).reshape(B, S, D) @ wo

    a = _A_ref(A_q, A_k, A_v, A_shift_k, A_ssm_k, A_ssm_D)
    b = _B_ref(B_x, B_wqkv, B_wo)
    return torch.concatenate([a, b], axis=-1)
```

```python
class Asm:
    def __init__(self):
        self.lines = []
        self.lbl = 0
    def __call__(self, s):
        for ln in s.split("\n"):
            ln = ln.strip()
            if ln:
                self.lines.append("    " + ln if not ln.endswith(":") else ln)
    def label(self, name):
        self.lines.append(name + ":")
    def newlabel(self, base):
        self.lbl += 1
        return f"L_{base}_{self.lbl}"
    def text(self):
        return "\n".join(self.lines) + "\n"

def vr(a, n=1):
    return f"v{a}" if n == 1 else f"v[{a}:{a+n-1}]"
def sr(a, n=1):
    return f"s{a}" if n == 1 else f"s[{a}:{a+n-1}]"

MB = 1 << 20
WS_Q = 0
WS_K = 4 * MB
WS_V = 8 * MB
WS_O = 12 * MB
WS_UR0 = 16 * MB
WS_UR1 = 21 * MB
UR_STRIDE = 4224
WS_YT = 26 * MB
WS_KMAX = 30 * MB
WS_SIZE = 32 * MB

KA_AQ, KA_AK, KA_AV, KA_SHIFT, KA_SSMK, KA_SSMD, KA_X, KA_WQKV, KA_WO, KA_OUT, KA_DBG, KA_WS = [8 * i for i in range(12)]

def srd(a, s, base_pair, nbytes):
    a(f"s_mov_b32 s{s}, s{base_pair}")
    a(f"s_and_b32 s{s+1}, s{base_pair+1}, 0xffff")
    a(f"s_mov_b32 s{s+2}, {nbytes}")
    a(f"s_mov_b32 s{s+3}, 0x00020000")

def kernel_begin(a, name):
    a.lines.append(f".globl {name}")
    a.lines.append(".p2align 8")
    a.lines.append(f".type {name},@function")
    a.lines.append(f"{name}:")

def kernel_desc(name, vgpr, sgpr=102):
    acc = (vgpr + 3) // 4 * 4
    return f""".p2align 6
.amdhsa_kernel {name}
  .amdhsa_next_free_vgpr {vgpr}
  .amdhsa_next_free_sgpr {sgpr}
  .amdhsa_accum_offset {acc}
  .amdhsa_group_segment_fixed_size 0
  .amdhsa_kernarg_size 96
  .amdhsa_user_sgpr_count 2
  .amdhsa_user_sgpr_kernarg_segment_ptr 1
  .amdhsa_system_sgpr_workgroup_id_x 1
.end_amdhsa_kernel
"""
```

```python
import struct
from common import *

QSCALE = 1.4426950408889634 / (32 ** 0.5)
def f32bits(x): return struct.unpack("<I", struct.pack("<f", x))[0]

K1_LDS = 147456
XS0, XSL = 0, 16384
WS0, WSL = 49152, 24576
SCR = 122880

def gen_k1(a, name="k1_kernel"):
    kernel_begin(a, name)
    Lend = a.newlabel("k1end")
    a(f"s_cmp_ge_u32 s2, 256")
    a(f"s_cbranch_scc1 {Lend}")
    a("s_load_dwordx16 s[36:51], s[0:1], 0")
    a("s_load_dwordx8 s[52:59], s[0:1], 64")
    a("v_lshrrev_b32 v1, 6, v0")
    a("s_nop 0")
    a("v_readfirstlane_b32 s28, v1")
    a("v_and_b32 v0, 63, v0")
    a("s_and_b32 s31, s2, 7")
    a("s_lshr_b32 s32, s2, 3")
    a("s_and_b32 s29, s31, 1")
    a("s_lshl_b32 s29, s29, 3")
    a("s_and_b32 s33, s32, 7")
    a("s_add_u32 s29, s29, s33")
    a("s_lshr_b32 s30, s31, 1")
    a("s_lshl_b32 s30, s30, 2")
    a("s_lshr_b32 s33, s32, 3")
    a("s_add_u32 s30, s30, s33")
    a("s_waitcnt lgkmcnt(0)")
    srd(a, 4, 48, 2048 * 1024 * 2)
    srd(a, 8, 50, 1024 * 3072 * 2)
    srd(a, 12, 58, WS_SIZE)
    srd(a, 16, 38, 2048 * 1024 * 2)
    srd(a, 20, 40, 2048 * 1024 * 2)
    srd(a, 24, 42, 1024 * 4 * 2)
    Lcomp = a.newlabel("k1comp")
    a("s_cmp_lt_u32 s28, 4")
    a(f"s_cbranch_scc1 {Lcomp}")

    a("s_sub_u32 s28, s28, 4")
    a("v_lshrrev_b32 v4, 3, v0")
    a("v_and_b32 v5, 7, v0")
    a("v_lshrrev_b32 v6, 1, v4")
    a("v_xor_b32 v7, v5, v6")
    a("v_lshlrev_b32 v7, 4, v7")
    a("v_lshl_add_u32 v1, v4, 11, v7")
    a("v_xor_b32 v2, 64, v1")
    a("v_and_b32 v6, 1, v6")
    a("v_lshlrev_b32 v6, 2, v6")
    a("v_xor_b32 v7, v5, v6")
    a("v_lshlrev_b32 v7, 4, v7")
    a("v_mul_u32_u24 v3, 6144, v4")
    a("v_add_u32 v3, v3, v7")
    a("s_lshl_b32 s31, s29, 18")
    a("s_lshl_b32 s32, s28, 16")
    a("s_add_u32 s60, s31, s32")
    for j in range(1, 4):
        a(f"s_add_u32 s{60+j}, s60, {j*16384}")
    a("s_mul_i32 s31, s28, 6")
    a("s_lshl_b32 s32, s30, 7")
    for j in range(6):
        a(f"s_add_u32 s33, s31, {j}")
        a("s_lshr_b32 s34, s33, 3")
        a("s_and_b32 s33, s33, 7")
        a("s_mul_i32 s33, s33, 49152")
        a("s_lshl_b32 s34, s34, 11")
        a("s_add_u32 s33, s33, s34")
        a(f"s_add_u32 s{64+j}, s33, s32")
    a("s_lshl_b32 s70, s28, 12")
    a("s_mul_i32 s71, s28, 6144")
    a(f"s_add_u32 s71, s71, {WS0}")
    a("s_mov_b32 s73, 0")
    a("s_mov_b32 s74, 0")

    def issue_stage():
        a("s_add_u32 s75, s70, s73")
        a("s_add_u32 s76, s71, s74")
        for j in range(4):
            a(f"s_add_u32 m0, s75, {j*1024}")
            a("s_nop 0")
            a(f"buffer_load_dwordx4 v{1 + (j & 1)}, s[4:7], s{60+j} offen lds")
            a(f"s_add_u32 s{60+j}, s{60+j}, 128")
        for j in range(6):
            a(f"s_add_u32 m0, s76, {j*1024}")
            a("s_nop 0")
            a(f"buffer_load_dwordx4 v3, s[8:11], s{64+j} offen lds")
            a(f"s_add_u32 s{64+j}, s{64+j}, {64*6144}")
        a(f"s_add_u32 s73, s73, {XSL}")
        a(f"s_add_u32 s74, s74, {WSL}")
        a(f"s_cmp_eq_u32 s73, {3*XSL}")
        a("s_cselect_b32 s73, 0, s73")
        a("s_cselect_b32 s74, 0, s74")
    issue_stage()
    issue_stage()
    a("s_waitcnt vmcnt(10)")
    a("s_barrier")
    a("s_mov_b32 s72, 0")
    Lll = a.newlabel("k1ll")
    a.label(Lll)
    issue_stage()
    a("s_waitcnt vmcnt(10)")
    a("s_barrier")
    a("s_add_u32 s72, s72, 1")
    a("s_cmp_lt_u32 s72, 14")
    a(f"s_cbranch_scc1 {Lll}")
    a("s_waitcnt vmcnt(0)")
    a("s_barrier")
    a("s_endpgm")

    a.label(Lcomp)
    a("s_lshr_b32 s60, s2, 3")
    a("s_and_b32 s61, s2, 7")
    a("s_lshl_b32 s61, s61, 2")
    a("s_add_u32 s61, s61, s28")
    a("s_lshl_b32 s62, s60, 6")
    a("s_lshl_b32 s63, s61, 5")
    a("v_lshrrev_b32 v1, 2, v0")
    a("v_and_b32 v2, 3, v0")
    a("s_lshl_b32 s64, s63, 3")
    a("v_lshlrev_b32 v3, 6, v2")
    for i in range(4):
        a(f"buffer_load_dwordx4 v[{200+4*i}:{203+4*i}], v3, s[24:27], s64 offen offset:{16*i}")
    a("s_sub_u32 s64, s62, 1")
    a("s_lshl_b32 s64, s64, 11")
    a("s_lshl_b32 s65, s63, 1")
    a("s_add_u32 s64, s64, s65")
    a("v_lshlrev_b32 v3, 11, v1")
    a("v_lshl_add_u32 v3, v2, 4, v3")
    a("v_add_u32 v3, s64, v3")
    for i in range(4):
        a(f"v_subrev_u32 v{4+i}, {2048*i}, v3")
        a(f"v_add_u32 v{8+i}, {32768-2048*i}, v3")
    def kreg(p, i): return 64 + 20 * p + 4 * i
    def vreg(p): return 64 + 20 * p + 16
    for p in range(5):
        if p >= 1:
            a(f"s_mov_b32 s64, {32768*(p-1)}")
        for i in range(4):
            if p == 0:
                a(f"buffer_load_dwordx4 v[{kreg(p,i)}:{kreg(p,i)+3}], v{4+i}, s[16:19], 0 offen")
            else:
                a(f"buffer_load_dwordx4 v[{kreg(p,i)}:{kreg(p,i)+3}], v{8+i}, s[16:19], s64 offen")
        if p == 0:
            a(f"buffer_load_dwordx4 v[{vreg(p)}:{vreg(p)+3}], v4, s[20:23], 0 offen")
        else:
            a(f"buffer_load_dwordx4 v[{vreg(p)}:{vreg(p)+3}], v8, s[20:23], s64 offen")
    a("s_waitcnt vmcnt(25)")
    for e in range(8):
        for i in range(4):
            src = 200 + 2 * e + (i >> 1)
            dst = 164 + 4 * e + i
            if e % 2 == 0:
                if i % 2 == 0: a(f"v_and_b32 v{dst}, 0xffff, v{src}")
                else: a(f"v_lshrrev_b32 v{dst}, 16, v{src}")
            else:
                if i % 2 == 0: a(f"v_lshlrev_b32 v{dst}, 16, v{src}")
                else: a(f"v_and_b32 v{dst}, 0xffff0000, v{src}")
    a(f"s_mul_i32 s64, s28, 6144")
    a(f"s_add_u32 s64, s64, {SCR}")
    a("v_lshlrev_b32 v12, 6, v1")
    a("v_lshl_add_u32 v12, v2, 4, v12")
    a("v_add_u32 v12, s64, v12")
    for p in range(5):
        a(f"s_waitcnt vmcnt({20-5*p})")
        for i in (3, 2, 1, 0):
            for e in range(8):
                c = "0" if i == 3 else f"v{16+e}"
                a(f"v_dot2_f32_bf16 v{16+e}, v{kreg(p,i)+(e>>1)}, v{164+4*e+i}, {c}")
        for e in range(8):
            if e % 2 == 0: a(f"v_lshlrev_b32 v{24+e}, 16, v{vreg(p)+(e>>1)}")
            else: a(f"v_and_b32 v{24+e}, 0xffff0000, v{vreg(p)+(e>>1)}")
        for e in range(8):
            a(f"v_mul_f32 v{16+e}, v{16+e}, v{24+e}")
        for q in range(4):
            a(f"v_cvt_pk_bf16_f32 v{32+4*(p&1)+q}, v{16+2*q}, v{17+2*q}")
        a(f"ds_write_b128 v12, v[{32+4*(p&1)}:{35+4*(p&1)}] offset:{1024*p}")
    a("v_lshrrev_b32 v1, 4, v0")
    a("v_and_b32 v2, 15, v0")
    a("v_lshrrev_b32 v3, 2, v2")
    a("v_and_b32 v4, 3, v2")
    a("v_lshlrev_b32 v5, 3, v1")
    a("v_add_u32 v5, 3, v5")
    a("v_sub_u32 v5, v5, v3")
    a("v_lshlrev_b32 v5, 6, v5")
    a("v_lshl_add_u32 v5, v4, 3, v5")
    a("v_add_u32 v5, s64, v5")
    a("v_add_u32 v6, s63, v2")
    a(f"v_mul_u32_u24 v6, {UR_STRIDE}, v6")
    a("s_lshl_b32 s65, s62, 1")
    a(f"s_sub_u32 s65, {2*2040-64}, s65")
    a("v_add_u32 v6, s65, v6")
    a("v_lshlrev_b32 v7, 4, v1")
    a("v_sub_u32 v6, v6, v7")
    a("s_waitcnt lgkmcnt(0)")
    n = 0
    for arr in range(2):
        for dh in range(2):
            for sg in range(2):
                for z in range(2):
                    imm = sg * 2048 + (1 - arr) * 64 + (1 - z) * 256 + dh * 32
                    a(f"ds_read_b64_tr_b16 v[{64+4*n+2*z}:{65+4*n+2*z}], v5 offset:{imm}")
                n += 1
    n = 0
    for arr in range(2):
        for dh in range(2):
            a(f"s_mov_b32 s65, {(WS_UR0 if arr == 0 else WS_UR1) + dh * 16 * UR_STRIDE}")
            for sg in range(2):
                a(f"s_waitcnt lgkmcnt({14-2*n})")
                a(f"buffer_store_dwordx4 v[{64+4*n}:{67+4*n}], v6, s[12:15], s65 offen offset:{(1-sg)*64}")
                n += 1
    Lnz = a.newlabel("k1nz")
    a("s_cmp_lg_u32 s60, 0")
    a(f"s_cbranch_scc1 {Lnz}")
    a("v_and_b32 v6, 31, v0")
    a("v_add_u32 v6, s63, v6")
    a(f"v_mul_u32_u24 v6, {UR_STRIDE}, v6")
    a("v_lshrrev_b32 v7, 5, v0")
    a(f"v_mul_u32_u24 v7, {WS_UR1-WS_UR0}, v7")
    a("v_add_u32 v6, v6, v7")
    for i in range(4): a(f"v_mov_b32 v{16+i}, 0")
    a(f"s_mov_b32 s65, {WS_UR0 + 4096}")
    a("buffer_store_dwordx4 v[16:19], v6, s[12:15], s65 offen")
    a.label(Lnz)

    a("s_and_b32 s60, s28, 1")
    a("s_lshr_b32 s61, s28, 1")
    a("v_and_b32 v1, 31, v0")
    a("v_lshrrev_b32 v2, 5, v0")
    a("v_lshrrev_b32 v3, 1, v1")
    a("v_and_b32 v3, 7, v3")
    a("s_lshl_b32 s62, s60, 13")
    a("v_lshlrev_b32 v9, 7, v1")
    a("v_add_u32 v9, s62, v9")
    for ks in range(4):
        a(f"v_or_b32 v15, {2*ks}, v2")
        a("v_xor_b32 v15, v15, v3")
        a(f"v_lshl_add_u32 v{4+ks}, v15, 4, v9")
    a("v_and_b32 v1, 15, v0")
    a("v_lshrrev_b32 v3, 2, v1")
    a("v_and_b32 v1, 3, v1")
    a("v_lshrrev_b32 v15, 4, v0")
    a("v_and_b32 v15, 1, v15")
    a("v_lshlrev_b32 v15, 5, v15")
    a("v_lshl_add_u32 v15, v1, 3, v15")
    a("s_lshl_b32 s62, s61, 6")
    a("v_add_u32 v15, s62, v15")
    a("v_lshrrev_b32 v1, 1, v3")
    a("v_and_b32 v1, 1, v1")
    a("v_lshlrev_b32 v1, 6, v1")
    a("v_xor_b32 v15, v15, v1")
    a("v_lshl_add_u32 v3, v2, 3, v3")
    a("v_lshl_add_u32 v8, v3, 7, v15")
    a(f"v_add_u32 v8, {WS0}, v8")
    for i in range(4): a(f"v_mov_b32 v{10+i}, v{4+i}")
    a("v_mov_b32 v14, v8")
    a("s_waitcnt vmcnt(0)")
    for i in range(96): a(f"v_mov_b32 v{64+i}, 0")
    def Xf(b, mt): return 16 + 8 * b + 4 * mt
    def Wf(b, p): return 32 + 12 * b + 4 * p
    def acc(mt, p): return 64 + 16 * (3 * mt + p)
    def reads(ks, b):
        r = []
        for mt in range(2):
            r.append(f"ds_read_b128 v[{Xf(b,mt)}:{Xf(b,mt)+3}], v{10+ks} offset:{mt*4096}")
        for p in range(3):
            for z in range(2):
                r.append(f"ds_read_b64_tr_b16 v[{Wf(b,p)+2*z}:{Wf(b,p)+2*z+1}], v14 offset:{p*8192+ks*2048+z*512}")
        return r
    def mfmas(b):
        r = []
        for mt in range(2):
            for p in range(3):
                A, B = (Wf(b, p), Xf(b, mt)) if p < 2 else (Xf(b, mt), Wf(b, p))
                r.append(f"v_mfma_f32_32x32x16_bf16 v[{acc(mt,p)}:{acc(mt,p)+15}], v[{A}:{A+3}], v[{B}:{B+3}], v[{acc(mt,p)}:{acc(mt,p)+15}]")
        return r
    a("s_mov_b32 s72, 0")
    a("s_mov_b32 s73, 0")
    a("s_mov_b32 s74, 0")
    a("s_barrier")
    for x in reads(0, 0): a(x)
    Ls = a.newlabel("k1stage")
    Llast = a.newlabel("k1last")
    a.label(Ls)
    for ks in range(3):
        b = ks & 1
        a("s_waitcnt lgkmcnt(0)")
        m = mfmas(b); r = reads(ks + 1, b ^ 1)
        a(m[0]); [a(x) for x in r[0:4]]
        a(m[1]); [a(x) for x in r[4:8]]
        for x in m[2:]: a(x)
    a("s_waitcnt lgkmcnt(0)")
    a("s_cmp_eq_u32 s72, 15")
    a(f"s_cbranch_scc1 {Llast}")
    a("s_barrier")
    a(f"s_add_u32 s73, s73, {XSL}")
    a(f"s_add_u32 s74, s74, {WSL}")
    a(f"s_cmp_eq_u32 s73, {3*XSL}")
    a("s_cselect_b32 s73, 0, s73")
    a("s_cselect_b32 s74, 0, s74")
    for i in range(4): a(f"v_add_u32 v{10+i}, s73, v{4+i}")
    a("v_add_u32 v14, s74, v8")
    for x in reads(0, 0): a(x)
    for x in mfmas(1): a(x)
    a("s_add_u32 s72, s72, 1")
    a(f"s_branch {Ls}")
    a.label(Llast)
    for x in mfmas(1): a(x)
    a("s_nop 15")
    a("s_lshl_b32 s62, s30, 1")
    a("s_add_u32 s62, s62, s61")
    a("s_lshl_b32 s63, s29, 2")
    a("s_lshl_b32 s64, s60, 1")
    a("s_add_u32 s63, s63, s64")
    a("s_lshl_b32 s64, s62, 6")
    a("s_add_u32 s64, s64, s63")
    a("s_lshl_b32 s64, s64, 11")
    a("v_lshlrev_b32 v1, 4, v0")
    a(f"s_mov_b32 s66, {f32bits(QSCALE)}")
    pk = 160
    for mt in range(2):
        for p in range(3):
            base = acc(mt, p)
            d = pk + 8 * (3 * mt + p)
            if p == 0:
                for i in range(16): a(f"v_mul_f32 v{base+i}, s66, v{base+i}")
            for i in range(8):
                a(f"v_cvt_pk_bf16_f32 v{d+i}, v{base+2*i}, v{base+2*i+1}")
            a(f"s_add_u32 s65, s64, {[WS_Q, WS_K, WS_V][p] + mt*2048}")
            a(f"buffer_store_dwordx4 v[{d}:{d+3}], v1, s[12:15], s65 offen")
            a(f"buffer_store_dwordx4 v[{d+4}:{d+7}], v1, s[12:15], s65 offen offset:1024")
    for mt in range(2):
        d = pk + 8 * (3 * mt + 1)
        for i in range(8):
            c = "0" if i == 0 else f"v{16+mt}"
            a(f"v_dot2_f32_bf16 v{16+mt}, v{d+i}, v{d+i}, {c}")
    a("s_nop 3")
    a("v_mov_b32 v18, v16")
    a("v_mov_b32 v19, v17")
    a("s_nop 1")
    a("v_permlane32_swap_b32 v18, v16")
    a("v_permlane32_swap_b32 v19, v17")
    a("s_nop 1")
    a("v_add_f32 v16, v16, v18")
    a("v_add_f32 v17, v17, v19")
    a("v_max_f32 v16, v16, v17")
    for dpp in ("quad_perm:[1,0,3,2]", "quad_perm:[2,3,0,1]", "row_half_mirror", "row_mirror"):
        a("s_nop 1")
        a(f"v_max_f32_dpp v16, v16, v16 {dpp} row_mask:0xf bank_mask:0xf")
    a("s_nop 1")
    a("v_mov_b32 v17, v16")
    a("s_nop 1")
    a("v_permlane16_swap_b32 v17, v16")
    a("s_nop 1")
    a("v_max_f32 v16, v16, v17")
    a("s_lshl_b32 s64, s62, 5")
    a("s_lshl_b32 s65, s29, 1")
    a("s_add_u32 s64, s64, s65")
    a("s_add_u32 s64, s64, s60")
    a("s_lshl_b32 s64, s64, 2")
    a(f"s_add_u32 s64, s64, {WS_KMAX}")
    a("v_mov_b32 v1, 0")
    a("s_mov_b64 exec, 1")
    a("buffer_store_dword v16, v1, s[12:15], s64 offen")
    a.label(Lend)
    a("s_endpgm")
    return kernel_desc(name, 224)
```

```python
import struct
from common import *
def f32bits(x): return struct.unpack("<I", struct.pack("<f", x))[0]

CH_BYTES = 37888
CP_STRIDE = 4160
H_OFF = 8 * CP_STRIDE
FLAG_OFF = 4 * CH_BYTES
K2_LDS = FLAG_OFF + 64

Q = 8; CN = 16; O = 32; L = 48; ONES = 52
S = [64, 80]; P = 96; KF = [112, 120]; VF = [128, 136]

def gen_k2(a, name="k2_kernel"):
    kernel_begin(a, name)
    Lend = a.newlabel("k2end")
    a("s_cmp_ge_u32 s2, 256")
    a(f"s_cbranch_scc1 {Lend}")
    a("s_load_dwordx16 s[36:51], s[0:1], 0")
    a("s_load_dwordx8 s[52:59], s[0:1], 64")
    a("v_lshrrev_b32 v1, 6, v0")
    a("s_nop 0")
    a("v_readfirstlane_b32 s28, v1")
    a("v_and_b32 v0, 63, v0")
    a("s_and_b32 s31, s2, 7")
    a("s_lshr_b32 s32, s2, 3")
    a("s_lshl_b32 s29, s31, 2")
    a("s_lshr_b32 s33, s32, 3")
    a("s_add_u32 s29, s29, s33")
    a("s_and_b32 s30, s32, 7")
    a("s_waitcnt lgkmcnt(0)")
    srd(a, 12, 58, WS_SIZE)
    srd(a, 16, 44, 1024 * 2048 * 2)
    a("s_lshl_b32 s31, s29, 7")
    a(f"s_add_u32 s31, s31, {WS_KMAX}")
    a("s_add_u32 s4, s58, s31")
    a("s_addc_u32 s5, s59, 0")
    a("s_load_dwordx16 s[60:75], s[4:5], 0")
    a("s_load_dwordx16 s[76:91], s[4:5], 64")
    a("v_lshlrev_b32 v1, 4, v0")
    a("s_lshl_b32 s31, s29, 6")
    a("s_lshl_b32 s32, s30, 3")
    a("s_add_u32 s31, s31, s32")
    a("s_add_u32 s31, s31, s28")
    a("s_lshl_b32 s31, s31, 11")
    if WS_Q: a(f"s_add_u32 s31, s31, {WS_Q}")
    a(f"buffer_load_dwordx4 v[{Q}:{Q+3}], v1, s[12:15], s31 offen")
    a(f"buffer_load_dwordx4 v[{Q+4}:{Q+7}], v1, s[12:15], s31 offen offset:1024")
    a("s_lshl_b32 s6, s29, 17")
    a("s_lshl_b32 s31, s28, 10")
    a("s_add_u32 s6, s6, s31")
    a("v_lshrrev_b32 v2, 4, v0")
    a("v_xor_b32 v2, v2, v0")
    a("v_and_b32 v2, 1, v2")
    a("v_cmp_eq_u32 vcc, 0, v2")
    a("v_mov_b32 v3, 0x3f803f80")
    a("s_nop 1")
    for i in range(4): a(f"v_cndmask_b32 v{ONES+i}, 0, v3, vcc")
    a(f"v_mov_b32 v2, {FLAG_OFF}")
    a("v_mov_b32 v3, 0")
    a("ds_write_b32 v2, v3")
    a("s_waitcnt lgkmcnt(0)")
    for i in range(1, 32): a(f"s_max_u32 s60, s60, s{60+i}")
    a("s_waitcnt vmcnt(0)")
    for i in range(8):
        c = "0" if i == 0 else "v4"
        a(f"v_dot2_f32_bf16 v4, v{Q+i}, v{Q+i}, {c}")
    a("s_nop 3")
    a("v_mov_b32 v5, v4")
    a("s_nop 1")
    a("v_permlane32_swap_b32 v5, v4")
    a("s_nop 1")
    a("v_add_f32 v4, v4, v5")
    a("v_mul_f32 v4, s60, v4")
    a("v_sqrt_f32 v4, v4")
    a("s_nop 0")
    a("v_sub_f32 v4, 0, v4")
    a("s_mov_b32 s7, 0")
    Lrestart = a.newlabel("k2restart")
    a.label(Lrestart)
    for i in range(16): a(f"v_mov_b32 v{CN+i}, v4")
    for i in range(16): a(f"v_mov_b32 v{O+i}, 0")
    for i in range(4): a(f"v_mov_b32 v{L+i}, 0")
    a("s_mov_b32 s8, s6")
    a("s_lshl_b32 s9, s28, 10")
    def issue_chunk():
        a("s_mov_b32 m0, s9")
        a(f"s_add_u32 s31, s8, {WS_K}")
        a(f"buffer_load_dwordx4 v1, s[12:15], s31 offen lds")
        a("s_add_u32 m0, s9, 8192")
        a(f"s_add_u32 s31, s8, {WS_V}")
        a(f"buffer_load_dwordx4 v1, s[12:15], s31 offen lds")
        a("s_add_u32 s8, s8, 8192")
        a("s_add_u32 s9, s9, 16384")
        a("s_and_b32 s9, s9, 0xffff")
    issue_chunk(); issue_chunk(); issue_chunk()
    a("s_waitcnt vmcnt(4)")
    a("s_barrier")
    a("v_mov_b32 v2, v1")
    a("v_add_u32 v3, 16384, v1")
    def kread(buf, areg, tile):
        return [f"ds_read_b128 v[{KF[buf]}:{KF[buf]+3}], v{areg} offset:{tile*2048}",
                f"ds_read_b128 v[{KF[buf]+4}:{KF[buf]+7}], v{areg} offset:{tile*2048+1024}"]
    def vread(buf, areg, tile):
        return [f"ds_read_b128 v[{VF[buf]}:{VF[buf]+3}], v{areg} offset:{8192+tile*2048}",
                f"ds_read_b128 v[{VF[buf]+4}:{VF[buf]+7}], v{areg} offset:{8192+tile*2048+1024}"]
    def qk(sb, kb, half):
        c = f"v[{CN}:{CN+15}]" if half == 0 else f"v[{S[sb]}:{S[sb]+15}]"
        return f"v_mfma_f32_32x32x16_bf16 v[{S[sb]}:{S[sb]+15}], v[{KF[kb]+4*half}:{KF[kb]+4*half+3}], v[{Q+4*half}:{Q+4*half+3}], {c}"
    def pv(vb, half):
        return f"v_mfma_f32_32x32x16_bf16 v[{O}:{O+15}], v[{VF[vb]+4*half}:{VF[vb]+4*half+3}], v[{P+4*half}:{P+4*half+3}], v[{O}:{O+15}]"
    def lsum(half):
        return f"v_mfma_f32_16x16x32_bf16 v[{L}:{L+3}], v[{ONES}:{ONES+3}], v[{P+4*half}:{P+4*half+3}], v[{L}:{L+3}]"
    for x in kread(0, 2, 0): a(x)
    for x in kread(1, 2, 1): a(x)
    for x in vread(0, 2, 0): a(x)
    a("s_waitcnt lgkmcnt(4)")
    a(qk(0, 0, 0)); a(qk(0, 0, 1))
    a("s_mov_b32 s10, 0")
    a("s_nop 11")
    Lloop = a.newlabel("k2loop")
    a.label(Lloop)
    for tl in range(4):
        sb = tl & 1; nb_ = sb ^ 1
        def ex(i): return f"v_exp_f32 v{S[sb]+i}, v{S[sb]+i}"
        def cv(i): return f"v_cvt_pk_bf16_f32 v{P+i}, v{S[sb]+2*i}, v{S[sb]+2*i+1}"
        a("s_waitcnt lgkmcnt(2)")
        a(qk(nb_, nb_, 0))
        for i in range(0, 4): a(ex(i))
        a(qk(nb_, nb_, 1))
        if tl == 2:
            Lw0 = a.newlabel("k2w0"); Lw1 = a.newlabel("k2w1")
            a("s_cmp_ge_u32 s10, 14")
            a(f"s_cbranch_scc1 {Lw0}")
            a("s_waitcnt vmcnt(2)")
            a("s_barrier")
            a("s_cmp_ge_u32 s10, 13")
            a(f"s_cbranch_scc1 {Lw1}")
            issue_chunk()
            a(f"s_branch {Lw1}")
            a.label(Lw0)
            a("s_waitcnt vmcnt(0)")
            a("s_barrier")
            a.label(Lw1)
        if tl < 2: kr = kread(sb, 2, tl + 2)
        else: kr = kread(sb, 3, tl - 2)
        for x in kr: a(x)
        for i in range(4, 8): a(ex(i))
        for i in range(0, 4): a(cv(i))
        for i in range(8, 12): a(ex(i))
        a("s_waitcnt lgkmcnt(2)")
        a(pv(sb, 0))
        for i in range(12, 16): a(ex(i))
        a(lsum(0))
        for i in range(4, 8): a(cv(i))
        if tl < 3: vr_ = vread(nb_, 2, tl + 1)
        else: vr_ = vread(nb_, 3, 0)
        for x in vr_: a(x)
        a(pv(sb, 1))
        a(lsum(1))
    a("v_mov_b32 v2, v3")
    a("v_add_u32 v3, 16384, v3")
    a("v_and_b32 v3, 0xffff, v3")
    a("s_add_u32 s10, s10, 1")
    a("s_cmp_lt_u32 s10, 16")
    a(f"s_cbranch_scc1 {Lloop}")
    a("s_waitcnt lgkmcnt(0)")
    a("s_nop 15")
    a("v_and_b32 v5, 16, v0")
    a("v_cmp_ne_u32 vcc, 0, v5")
    a("s_nop 1")
    a(f"v_cndmask_b32 v5, v{L}, v{L+1}, vcc")
    Lok = a.newlabel("k2ok")
    a("s_cmp_lg_u32 s7, 0")
    a(f"s_cbranch_scc1 {Lok}")
    a(f"v_mov_b32 v6, {f32bits(2.0**-60)}")
    a("v_cmp_nge_f32 vcc, v5, v6")
    Lnf = a.newlabel("k2nf")
    a("s_cmp_eq_u64 vcc, 0")
    a(f"s_cbranch_scc1 {Lnf}")
    a(f"v_mov_b32 v6, {FLAG_OFF}")
    a("v_mov_b32 v7, 1")
    a("ds_write_b32 v6, v7")
    a.label(Lnf)
    a("s_waitcnt lgkmcnt(0)")
    a("s_barrier")
    a(f"v_mov_b32 v6, {FLAG_OFF}")
    a("ds_read_b32 v7, v6")
    a("s_waitcnt lgkmcnt(0)")
    a("v_readfirstlane_b32 s31, v7")
    a("s_nop 3")
    a("s_cmp_eq_u32 s31, 0")
    a(f"s_cbranch_scc1 {Lok}")
    a("s_mov_b32 s7, 1")
    a("v_mov_b32 v4, 0xff800000")
    a("s_lshl_b32 s31, s29, 17")
    a(f"s_add_u32 s31, s31, {WS_K}")
    a("s_mov_b32 s10, 0")
    Lfb = a.newlabel("k2fb")
    a.label(Lfb)
    a(f"buffer_load_dwordx4 v[{KF[0]}:{KF[0]+3}], v1, s[12:15], s31 offen")
    a(f"buffer_load_dwordx4 v[{KF[0]+4}:{KF[0]+7}], v1, s[12:15], s31 offen offset:1024")
    a("s_waitcnt vmcnt(0)")
    a(f"v_mfma_f32_32x32x16_bf16 v[{S[0]}:{S[0]+15}], v[{KF[0]}:{KF[0]+3}], v[{Q}:{Q+3}], 0")
    a(f"v_mfma_f32_32x32x16_bf16 v[{S[0]}:{S[0]+15}], v[{KF[0]+4}:{KF[0]+7}], v[{Q+4}:{Q+7}], v[{S[0]}:{S[0]+15}]")
    a("s_nop 15")
    for i in range(8): a(f"v_max3_f32 v4, v4, v{S[0]+2*i}, v{S[0]+2*i+1}")
    a("s_add_u32 s31, s31, 2048")
    a("s_add_u32 s10, s10, 1")
    a("s_cmp_lt_u32 s10, 64")
    a(f"s_cbranch_scc1 {Lfb}")
    a("v_mov_b32 v5, v4")
    a("s_nop 1")
    a("v_permlane32_swap_b32 v5, v4")
    a("s_nop 1")
    a("v_max_f32 v4, v4, v5")
    a("v_sub_f32 v4, 0, v4")
    a("s_barrier")
    a(f"s_branch {Lrestart}")
    a.label(Lok)
    a("v_rcp_f32 v5, v5")
    a("s_nop 0")
    for i in range(16): a(f"v_mul_f32 v{O+i}, v{O+i}, v5")
    for i in range(8): a(f"v_cvt_pk_bf16_f32 v{P+i}, v{O+2*i}, v{O+2*i+1}")
    a("s_lshl_b32 s31, s30, 3")
    a("s_add_u32 s31, s31, s28")
    a("s_lshl_b32 s31, s31, 5")
    a("s_add_u32 s31, s31, s29")
    a("s_lshl_b32 s31, s31, 11")
    a(f"s_add_u32 s31, s31, {WS_O}")
    a(f"buffer_store_dwordx4 v[{P}:{P+3}], v1, s[12:15], s31 offen")
    a(f"buffer_store_dwordx4 v[{P+4}:{P+7}], v1, s[12:15], s31 offen offset:1024")

    a("s_barrier")
    a("s_lshr_b32 s60, s28, 1")
    a("s_and_b32 s61, s28, 1")
    a("s_lshl_b32 s62, s2, 2")
    a("s_add_u32 s62, s62, s60")
    a(f"s_mul_i32 s63, s60, {CH_BYTES}")
    a("s_lshr_b32 s31, s62, 1")
    a("s_lshl_b32 s31, s31, 2")
    a("s_add_u32 s4, s46, s31")
    a("s_addc_u32 s5, s47, 0")
    a("s_load_dword s70, s[4:5], 0")
    a(f"s_mul_i32 s64, s62, {UR_STRIDE}")
    a("s_lshl_b32 s65, s61, 3")
    a("s_add_u32 s64, s64, s65")
    a(f"s_mul_i32 s65, s61, {4*CP_STRIDE}")
    a("s_add_u32 s65, s65, s63")
    for cc in range(4):
        src = (WS_UR0 if cc % 2 == 0 else WS_UR1) + (cc & ~1) * 2
        for pc in range(4):
            a(f"s_add_u32 m0, s65, {cc*CP_STRIDE + pc*1024}")
            a(f"s_add_u32 s31, s64, {src + pc*1024}")
            a(f"buffer_load_dwordx4 v1, s[12:15], s31 offen lds")
    a("s_lshl_b32 s64, s62, 12")
    a("s_lshl_b32 s65, s61, 11")
    a("s_add_u32 s64, s64, s65")
    a("s_add_u32 s65, s65, s63")
    for pc in range(2):
        a(f"s_add_u32 m0, s65, {H_OFF + 512 + pc*1024}")
        a(f"s_add_u32 s31, s64, {pc*1024}")
        a(f"buffer_load_dwordx4 v1, s[16:19], s31 offen lds")
    a("v_and_b32 v2, 7, v0")
    a(f"v_mul_u32_u24 v2, {CP_STRIDE}, v2")
    a("v_add_u32 v2, 4096, v2")
    a(f"v_add_u32 v3, {H_OFF}, v1")
    a("v_cmp_gt_u32 vcc, 32, v0")
    a("s_nop 1")
    a("v_cndmask_b32 v2, v2, v3, vcc")
    a("v_add_u32 v2, s63, v2")
    for i in range(4): a(f"v_mov_b32 v{8+i}, 0")
    a("ds_write_b128 v2, v[8:11]")
    a("v_and_b32 v2, 15, v0")
    a("v_lshrrev_b32 v3, 4, v0")
    a("v_sub_u32 v4, 7, v2")
    a("v_and_b32 v4, 7, v4")
    a(f"v_mul_u32_u24 v4, {CP_STRIDE}, v4")
    a("v_lshrrev_b32 v5, 3, v2")
    a("v_sub_u32 v5, v3, v5")
    a("v_add_u32 v5, 1, v5")
    a("v_lshl_add_u32 v4, v5, 4, v4")
    a("v_add_u32 v4, s63, v4")
    a("v_lshlrev_b32 v5, 5, v2")
    a("v_lshl_add_u32 v5, v3, 4, v5")
    a(f"s_add_u32 s31, s63, {H_OFF + 32}")
    a("v_add_u32 v5, s31, v5")
    a("v_lshlrev_b32 v6, 5, v2")
    a("v_lshl_add_u32 v6, v3, 3, v6")
    a("s_add_u32 s31, s63, 504")
    a("v_sub_u32 v7, s31, v6")
    a("s_lshl_b32 s64, s62, 12")
    a(f"s_add_u32 s64, s64, {WS_YT}")
    a("s_waitcnt vmcnt(0) lgkmcnt(0)")
    a("s_barrier")
    a("s_bitcmp1_b32 s62, 0")
    a("s_cselect_b32 s31, 0, 16")
    a("s_lshl_b32 s70, s70, s31")
    a("s_and_b32 s70, s70, 0xffff0000")
    ACC = 16
    def AF(b, x): return 64 + 64 * b + 4 * x
    def BF(b, x): return 96 + 64 * b + 4 * x
    Lh1 = a.newlabel("k2h1"); Lcd = a.newlabel("k2cd")
    a("s_cmp_eq_u32 s61, 1")
    a(f"s_cbranch_scc1 {Lh1}")
    for hw in range(2):
        if hw == 1: a.label(Lh1)
        Ts = [0, 3, 4, 7] if hw == 0 else [1, 2, 5, 6]
        mx = max(Ts)
        def rd(m0, b):
            r = []
            for x in range(mx + 1):
                r.append(f"ds_read_b128 v[{AF(b,x)}:{AF(b,x)+3}], v4 offset:{64*(63-(m0+8*x))}")
                r.append(f"ds_read_b128 v[{BF(b,x)}:{BF(b,x)+3}], v5 offset:{512*x+64*(7-m0)}")
            return r
        for x in rd(0, 0): a(x)
        for m0 in range(8):
            b = m0 & 1
            a("s_waitcnt lgkmcnt(0)")
            nxt = rd(m0 + 1, b ^ 1) if m0 < 7 else []
            mf = []
            for ti, T in enumerate(Ts):
                for x in range(T + 1):
                    c = "0" if (m0 == 0 and x == 0) else f"v[{ACC+4*ti}:{ACC+4*ti+3}]"
                    mf.append((ti, f"v_mfma_f32_16x16x32_bf16 v[{ACC+4*ti}:{ACC+4*ti+3}], v[{AF(b,x)}:{AF(b,x)+3}], v[{BF(b,T-x)}:{BF(b,T-x)+3}], {c}"))
            for i, (ti, m) in enumerate(mf):
                a(m)
                if i < len(nxt): a(nxt[i])
        for ti, T in enumerate(Ts):
            a(f"ds_read_b64 v[{40+2*ti}:{41+2*ti}], v7 offset:{512*(7-T)}")
        a("s_waitcnt lgkmcnt(0)")
        a("s_nop 7")
        for ti, T in enumerate(Ts):
            r0, r1 = 40 + 2 * ti, 41 + 2 * ti
            a(f"v_and_b32 v48, 0xffff0000, v{r1}")
            a(f"v_lshlrev_b32 v49, 16, v{r1}")
            a(f"v_and_b32 v50, 0xffff0000, v{r0}")
            a(f"v_lshlrev_b32 v51, 16, v{r0}")
            for e in range(4):
                a(f"v_fma_f32 v{ACC+4*ti+e}, v{48+e}, s70, v{ACC+4*ti+e}")
            a(f"v_cvt_pk_bf16_f32 v{52+2*ti}, v{ACC+4*ti}, v{ACC+4*ti+1}")
            a(f"v_cvt_pk_bf16_f32 v{53+2*ti}, v{ACC+4*ti+2}, v{ACC+4*ti+3}")
            a(f"buffer_store_dwordx2 v[{52+2*ti}:{53+2*ti}], v6, s[12:15], s64 offen offset:{512*T}")
        if hw == 0: a("s_endpgm")
    a.label(Lend)
    a("s_endpgm")
    return kernel_desc(name, 192)
```

```python
from common import *

SCR3 = 131072
K3_LDS = SCR3 + 4 * 4096

def gen_k3(a, name="k3_kernel"):
    kernel_begin(a, name)
    Lend = a.newlabel("k3end")
    a("s_cmp_ge_u32 s2, 256")
    a(f"s_cbranch_scc1 {Lend}")
    a("s_load_dwordx16 s[36:51], s[0:1], 0")
    a("s_load_dwordx8 s[52:59], s[0:1], 64")
    a("v_lshrrev_b32 v1, 6, v0")
    a("s_nop 0")
    a("v_readfirstlane_b32 s28, v1")
    a("v_and_b32 v0, 63, v0")
    a("s_and_b32 s31, s2, 7")
    a("s_lshr_b32 s32, s2, 3")
    a("s_and_b32 s29, s31, 1")
    a("s_lshl_b32 s29, s29, 3")
    a("s_and_b32 s33, s32, 7")
    a("s_add_u32 s29, s29, s33")
    a("s_lshr_b32 s30, s31, 1")
    a("s_lshl_b32 s30, s30, 2")
    a("s_lshr_b32 s33, s32, 3")
    a("s_add_u32 s30, s30, s33")
    a("s_waitcnt lgkmcnt(0)")
    srd(a, 4, 52, 1024 * 1024 * 2)
    srd(a, 8, 54, 2048 * 2048 * 2)
    srd(a, 12, 58, WS_SIZE)
    srd(a, 16, 36, 2048 * 1024 * 2)
    Lcomp = a.newlabel("k3comp")
    a("s_cmp_lt_u32 s28, 4")
    a(f"s_cbranch_scc1 {Lcomp}")
    a("s_sub_u32 s28, s28, 4")
    a("v_lshrrev_b32 v4, 3, v0")
    a("v_and_b32 v5, 7, v0")
    a("v_lshrrev_b32 v6, 1, v4")
    a("v_and_b32 v6, 1, v6")
    a("v_lshlrev_b32 v6, 2, v6")
    a("v_xor_b32 v7, v5, v6")
    a("v_lshlrev_b32 v7, 4, v7")
    a("v_lshl_add_u32 v3, v4, 11, v7")
    a("s_lshl_b32 s60, s30, 7")
    a("s_lshl_b32 s61, s28, 14")
    a("s_add_u32 s60, s60, s61")
    a("s_lshl_b32 s61, s28, 10")
    for n in range(32):
        a(f"s_add_u32 m0, s61, {n*4096}")
        a(f"s_add_u32 s31, s60, {n*65536}")
        a("buffer_load_dwordx4 v3, s[4:7], s31 offen lds")
    a("s_lshr_b32 s62, s2, 3")
    a("s_and_b32 s63, s2, 7")
    a("s_lshl_b32 s63, s63, 2")
    a("s_add_u32 s63, s63, s28")
    a("v_lshlrev_b32 v8, 12, v4")
    a("v_lshl_add_u32 v8, v5, 4, v8")
    a("s_lshl_b32 s64, s63, 17")
    a("s_lshl_b32 s65, s62, 7")
    a("s_add_u32 s64, s64, s65")
    a(f"s_add_u32 s64, s64, {WS_YT}")
    a("s_lshl_b32 s66, s28, 12")
    a(f"s_add_u32 s66, s66, {SCR3}")
    for n in range(4):
        a(f"s_add_u32 m0, s66, {n*1024}")
        a(f"s_add_u32 s31, s64, {n*32768}")
        a("buffer_load_dwordx4 v8, s[12:15], s31 offen lds")
    a("v_lshrrev_b32 v9, 4, v0")
    a("v_and_b32 v10, 15, v0")
    a("v_lshlrev_b32 v11, 11, v10")
    a("v_lshl_add_u32 v11, v9, 4, v11")
    a("v_lshlrev_b32 v12, 12, v10")
    a("v_lshl_add_u32 v12, v9, 4, v12")
    a("s_lshl_b32 s64, s62, 17")
    a("s_lshl_b32 s65, s63, 6")
    a("s_add_u32 s67, s64, s65")
    a("s_lshl_b32 s64, s62, 18")
    a("s_add_u32 s68, s64, s65")
    for ps in range(4):
        a(f"s_add_u32 s31, s67, {ps*32768}")
        a(f"buffer_load_dwordx4 v[{32+4*ps}:{35+4*ps}], v11, s[16:19], s31 offen")
    for c in range(8):
        a(f"s_waitcnt vmcnt({28-4*c+8})")
        a("s_barrier")
    a("v_lshrrev_b32 v13, 2, v10")
    a("v_lshl_add_u32 v13, v9, 3, v13")
    a("v_lshlrev_b32 v13, 7, v13")
    a("v_and_b32 v14, 3, v10")
    a("v_lshl_add_u32 v13, v14, 3, v13")
    a("v_add_u32 v13, s66, v13")
    a("s_waitcnt vmcnt(0)")
    for ps in range(4):
        for z in range(2):
            a(f"ds_read_b64_tr_b16 v[{48+4*ps+2*z}:{49+4*ps+2*z}], v13 offset:{z*512+ps*32}")
    for ps in range(4):
        a(f"s_waitcnt lgkmcnt({6-2*ps})")
        for dw in range(4):
            qr, yr = 32 + 4 * ps + dw, 48 + 4 * ps + dw
            a(f"v_lshlrev_b32 v16, 16, v{qr}")
            a(f"v_and_b32 v17, 0xffff0000, v{qr}")
            a(f"v_lshlrev_b32 v18, 16, v{yr}")
            a(f"v_and_b32 v19, 0xffff0000, v{yr}")
            a("v_mul_f32 v16, v16, v18")
            a("v_mul_f32 v17, v17, v19")
            a(f"v_cvt_pk_bf16_f32 v{64+4*ps+dw}, v16, v17")
        a(f"s_add_u32 s31, s68, {ps*65536}")
        a(f"buffer_store_dwordx4 v[{64+4*ps}:{67+4*ps}], v12, s[8:11], s31 offen")
    a("s_endpgm")

    a.label(Lcomp)
    a("v_lshlrev_b32 v1, 4, v0")
    a("s_lshl_b32 s60, s29, 2")
    a("s_add_u32 s60, s60, s28")
    a("s_lshl_b32 s61, s60, 16")
    a(f"s_add_u32 s61, s61, {WS_O}")
    NPF = 16
    def OF(i): return 64 + 4 * (i % NPF)
    def oload(f):
        a(f"s_add_u32 s31, s61, {(f//4)*4096}")
        a(f"buffer_load_dwordx4 v[{OF(f)}:{OF(f)+3}], v1, s[12:15], s31 offen offset:{(f%4)*1024}")
    for f in range(NPF): oload(f)
    a("v_and_b32 v2, 15, v0")
    a("v_lshrrev_b32 v3, 2, v2")
    a("v_and_b32 v2, 3, v2")
    a("v_lshrrev_b32 v4, 4, v0")
    a("v_and_b32 v4, 1, v4")
    a("v_lshlrev_b32 v4, 5, v4")
    a("v_lshl_add_u32 v4, v2, 3, v4")
    a("v_lshrrev_b32 v5, 1, v3")
    a("v_and_b32 v5, 1, v5")
    a("v_lshlrev_b32 v5, 6, v5")
    a("v_xor_b32 v4, v4, v5")
    a("v_lshrrev_b32 v5, 5, v0")
    a("v_lshl_add_u32 v3, v5, 2, v3")
    a("v_lshl_add_u32 v8, v3, 7, v4")
    a("v_xor_b32 v9, 64, v8")
    ACC = 32
    for i in range(32): a(f"v_mov_b32 v{ACC+i}, 0")
    def WF(b, u): return 16 + 8 * b + 4 * u
    def wread(fl, b):
        r = []
        for u in range(2):
            for z in range(2):
                r.append(f"ds_read_b64_tr_b16 v[{WF(b,u)+2*z}:{WF(b,u)+2*z+1}], v{8+u} offset:{fl*2048+z*1024}")
        return r
    for c in range(8):
        a("s_barrier")
        if c > 0:
            a("v_add_u32 v8, 16384, v8")
            a("v_add_u32 v9, 16384, v9")
        for x in wread(0, 0): a(x)
        for fl in range(8):
            f = 8 * c + fl
            b = fl & 1
            if fl < 7:
                for x in wread(fl + 1, b ^ 1): a(x)
                a("s_waitcnt lgkmcnt(4)")
            else:
                a("s_waitcnt lgkmcnt(0)")
            rem = min(NPF - 1, 63 - f)
            a(f"s_waitcnt vmcnt({rem})")
            for u in range(2):
                a(f"v_mfma_f32_32x32x16_bf16 v[{ACC+16*u}:{ACC+16*u+15}], v[{WF(b,u)}:{WF(b,u)+3}], v[{OF(f)}:{OF(f)+3}], v[{ACC+16*u}:{ACC+16*u+15}]")
            if f + NPF < 64: oload(f + NPF)
    a("s_nop 15")
    a("v_and_b32 v2, 31, v0")
    a("v_lshlrev_b32 v2, 12, v2")
    a("v_lshl_add_u32 v2, v5, 4, v2")
    a("s_lshl_b32 s62, s60, 17")
    a("s_lshl_b32 s63, s30, 7")
    a("s_add_u32 s62, s62, s63")
    a("s_add_u32 s62, s62, 2048")
    for u in range(2):
        for gp in range(2):
            d = 64 + 8 * u + 4 * gp
            src = ACC + 16 * u + 8 * gp
            for i in range(4):
                a(f"v_cvt_pk_bf16_f32 v{d+i}, v{src+2*i}, v{src+2*i+1}")
            a("s_nop 1")
            a(f"v_permlane32_swap_b32 v{d}, v{d+2}")
            a(f"v_permlane32_swap_b32 v{d+1}, v{d+3}")
            a("s_nop 1")
            a(f"buffer_store_dwordx4 v[{d}:{d+3}], v2, s[8:11], s62 offen offset:{64*u+32*gp}")
    a.label(Lend)
    a("s_endpgm")
    return kernel_desc(name, 128)
```

```python
import sys
from common import *
import k1
HEADER = open("concat_heads__ssm_conv_h3__softmax_full_mha__prompt.s.ref").read().split("; Override launch")[0]
def build(which, path):
    a = Asm()
    launches = []
    descs = []
    if "k1" in which:
        descs.append(k1.gen_k1(a)); launches.append(f"; @launch kernel=k1_kernel grid=(256,1,1) block=(512,1,1) lds={k1.K1_LDS}")
    if "k2" in which:
        import k2
        descs.append(k2.gen_k2(a)); launches.append(f"; @launch kernel=k2_kernel grid=(256,1,1) block=({k2.K2_BLOCK},1,1) lds={k2.K2_LDS}")
    if "k3" in which:
        import k3
        descs.append(k3.gen_k3(a)); launches.append(f"; @launch kernel=k3_kernel grid=(256,1,1) block=(512,1,1) lds={k3.K3_LDS}")
    if "kf" in which:
        import kf
        descs.append(kf.gen_kf(a)); launches.append(f"; @launch kernel=kf_kernel grid=(256,1,1) block=({kf.KF_BLOCK},1,1) lds={kf.KF_LDS}")
    txt = HEADER + "\n".join(launches) + "\n" + '.amdgcn_target "amdgcn-amd-amdhsa--gfx950"\n.text\n' + a.text() + '.section .rodata,"a"\n' + "".join(descs)
    open(path, "w").write(txt)
if __name__ == "__main__":
    import common
    if len(sys.argv) > 3 and sys.argv[3] == "prof": common.PROF = True
    build(sys.argv[1].split(","), sys.argv[2])
```

```python
class Asm:
    def __init__(self):
        self.lines = []
        self.lbl = 0
    def __call__(self, s):
        for ln in s.split("\n"):
            ln = ln.strip()
            if ln:
                self.lines.append("    " + ln if not ln.endswith(":") else ln)
    def label(self, name):
        self.lines.append(name + ":")
    def newlabel(self, base):
        self.lbl += 1
        return f"L_{base}_{self.lbl}"
    def text(self):
        return "\n".join(self.lines) + "\n"

def vr(a, n=1):
    return f"v{a}" if n == 1 else f"v[{a}:{a+n-1}]"
def sr(a, n=1):
    return f"s{a}" if n == 1 else f"s[{a}:{a+n-1}]"

MB = 1 << 20
WS_Q = 0
WS_K = 4 * MB
WS_V = 8 * MB
WS_O = 12 * MB
WS_UR0 = 16 * MB
WS_UR1 = 21 * MB
UR_STRIDE = 4224
WS_YT = 26 * MB
WS_KMAX = 30 * MB
WS_FLAG = 30 * MB + 65536
WS_SIZE = 40 * MB

KA_AQ, KA_AK, KA_AV, KA_SHIFT, KA_SSMK, KA_SSMD, KA_X, KA_WQKV, KA_WO, KA_OUT, KA_DBG, KA_WS = [8 * i for i in range(12)]

def srd(a, s, base_pair, nbytes):
    a(f"s_mov_b32 s{s}, s{base_pair}")
    a(f"s_and_b32 s{s+1}, s{base_pair+1}, 0xffff")
    a(f"s_mov_b32 s{s+2}, {nbytes}")
    a(f"s_mov_b32 s{s+3}, 0x00020000")

def kernel_begin(a, name):
    a.lines.append(f".globl {name}")
    a.lines.append(".p2align 8")
    a.lines.append(f".type {name},@function")
    a.lines.append(f"{name}:")

def kernel_desc(name, vgpr, sgpr=102):
    import common
    if common.PROF: vgpr = max(vgpr, common.PV + 2)
    acc = (vgpr + 3) // 4 * 4
    return f""".p2align 6
.amdhsa_kernel {name}
  .amdhsa_next_free_vgpr {vgpr}
  .amdhsa_next_free_sgpr {sgpr}
  .amdhsa_accum_offset {acc}
  .amdhsa_group_segment_fixed_size 0
  .amdhsa_kernarg_size 96
  .amdhsa_user_sgpr_count 2
  .amdhsa_user_sgpr_kernarg_segment_ptr 1
  .amdhsa_system_sgpr_workgroup_id_x 1
.end_amdhsa_kernel
"""

PROF = False
PV = 166
WS_PROF = 32 * MB
def stamp(a, k):
    if not PROF: return
    a("s_memrealtime s[96:97]")
    a("s_memtime s[100:101]")
    a("s_waitcnt lgkmcnt(0)")
    a(f"v_writelane_b32 v{PV}, s96, {k}")
    a(f"v_writelane_b32 v{PV}, s100, {32 + (k & 15)}" if k != 63 else f"v_writelane_b32 v{PV}, s100, 62")
def prof_begin(a):
    if not PROF: return
    a("s_mov_b32 s98, s28")
    a(f"v_mov_b32 v{PV}, 0")
    stamp(a, 0)
def endpgm(a, kidx):
    if PROF:
        stamp(a, 63)
        a("s_mov_b64 exec, -1")
        a(f"s_lshl_b32 s96, s2, 4")
        a("s_add_u32 s96, s96, s98")
        a("s_lshl_b32 s96, s96, 8")
        a(f"s_add_u32 s96, s96, {WS_PROF + kidx * 256 * 16 * 256}")
        a(f"v_lshlrev_b32 v{PV+1}, 2, v0")
        a(f"buffer_store_dword v{PV}, v{PV+1}, s[12:15], s96 offen")
    a("s_endpgm")

class VM:
    def __init__(self, a):
        self.a = a; self.n = 0; self.tags = {}
    def op(self, text, tag=None):
        self.a(text); self.n += 1
        if tag is not None: self.tags[tag] = self.n
    def wait(self, tag):
        k = self.n - self.tags[tag]
        self.a(f"s_waitcnt vmcnt({min(k, 63)})")

def stamp_dyn(a, sreg, base):
    if not PROF: return
    a("s_memrealtime s[96:97]")
    a(f"s_add_u32 m0, s{sreg}, {base}")
    a("s_waitcnt lgkmcnt(0)")
    a(f"v_writelane_b32 v{PV}, s96, m0")
```

```python
import struct, os
from common import *
import common

QSCALE = 1.4426950408889634 / (32 ** 0.5)
def f32bits(x): return struct.unpack("<I", struct.pack("<f", x))[0]
VAR = os.environ.get('K1VAR', '')

NSL = 4
K1_LDS = 163840
XS0, XSL = 0, 16384
WS0, WSL = 65536, 24576
SCR = 0

def gen_k1(a, name="k1_kernel"):
    common.PV = 250
    kernel_begin(a, name)
    Lend = a.newlabel("k1end")
    a(f"s_cmp_ge_u32 s2, 256")
    a(f"s_cbranch_scc1 {Lend}")
    a("s_load_dwordx16 s[36:51], s[0:1], 0")
    a("s_load_dwordx8 s[52:59], s[0:1], 64")
    a("v_lshrrev_b32 v1, 6, v0")
    a("s_nop 0")
    a("v_readfirstlane_b32 s28, v1")
    a("v_and_b32 v0, 63, v0")
    common.prof_begin(a)
    a("s_and_b32 s31, s2, 7")
    a("s_lshr_b32 s32, s2, 3")
    a("s_and_b32 s29, s31, 1")
    a("s_lshl_b32 s29, s29, 3")
    a("s_and_b32 s33, s32, 7")
    a("s_add_u32 s29, s29, s33")
    a("s_lshr_b32 s30, s31, 1")
    a("s_lshl_b32 s30, s30, 2")
    a("s_lshr_b32 s33, s32, 3")
    a("s_add_u32 s30, s30, s33")
    a("s_waitcnt lgkmcnt(0)")
    srd(a, 4, 48, 2048 * 1024 * 2)
    srd(a, 8, 50, 1024 * 3072 * 2)
    srd(a, 12, 58, WS_SIZE)
    srd(a, 16, 38, 2048 * 1024 * 2)
    srd(a, 20, 40, 2048 * 1024 * 2)
    srd(a, 24, 42, 1024 * 4 * 2)
    Lcomp = a.newlabel("k1comp")
    a("s_cmp_lt_u32 s28, 4")
    a(f"s_cbranch_scc1 {Lcomp}")

    Lpp = a.newlabel("k1pp"); Ltail = a.newlabel("k1tail")
    a("s_sub_u32 s28, s28, 4")
    a("s_cmp_ge_u32 s28, 2")
    a(f"s_cbranch_scc1 {Lpp}")
    a("v_lshrrev_b32 v4, 3, v0")
    a("v_and_b32 v5, 7, v0")
    a("v_lshrrev_b32 v6, 1, v4")
    a("v_xor_b32 v7, v5, v6")
    a("v_lshlrev_b32 v7, 4, v7")
    a("v_lshl_add_u32 v1, v4, 11, v7")
    a("v_xor_b32 v2, 64, v1")
    a("v_and_b32 v6, 1, v6")
    a("v_lshlrev_b32 v6, 2, v6")
    a("v_xor_b32 v7, v5, v6")
    a("v_lshlrev_b32 v7, 4, v7")
    a("v_mul_u32_u24 v3, 6144, v4")
    a("v_add_u32 v3, v3, v7")
    a("s_lshl_b32 s31, s29, 18")
    a("s_lshl_b32 s32, s28, 17")
    a("s_add_u32 s60, s31, s32")
    a("s_lshl_b32 s61, s30, 7")
    a("s_lshl_b32 s70, s28, 13")
    a("s_mul_i32 s71, s28, 12288")
    a(f"s_add_u32 s71, s71, {WS0}")
    a("s_mov_b32 s72, 0")
    a("s_mov_b32 s73, 0")
    a("s_mov_b32 s74, 0")
    Ld1 = a.newlabel("k1d1")
    a("s_cmp_eq_u32 s28, 1")
    a(f"s_cbranch_scc1 {Ld1}")
    for lw in range(2):
        if lw == 1: a.label(Ld1)
        def issue_stage():
            a("s_lshl_b32 s75, s72, 7")
            a("s_add_u32 s75, s75, s60")
            a(f"s_mul_i32 s76, s72, {64*6144}")
            a("s_add_u32 s76, s76, s61")
            a("s_add_u32 s77, s70, s73")
            a("s_add_u32 s78, s71, s74")
            for j in range(8):
                a(f"s_add_u32 m0, s77, {j*1024}")
                a(f"s_add_u32 s31, s75, {j*16384}")
                a(f"buffer_load_dwordx4 v{1 + (j & 1)}, s[4:7], s31 offen lds")
            for j in range(12):
                i = 12 * lw + j
                a(f"s_add_u32 m0, s78, {j*1024}")
                a(f"s_add_u32 s31, s76, {(i & 7)*49152 + (i >> 3)*2048}")
                a(f"buffer_load_dwordx4 v3, s[8:11], s31 offen lds")
            a("s_add_u32 s72, s72, 1")
            a(f"s_add_u32 s73, s73, {XSL}")
            a(f"s_add_u32 s74, s74, {WSL}")
            a(f"s_cmp_eq_u32 s73, {NSL*XSL}")
            a("s_cselect_b32 s73, 0, s73")
            a("s_cselect_b32 s74, 0, s74")
        issue_stage()
        issue_stage()
        a("s_waitcnt vmcnt(20)")
        common.stamp(a, 1)
        a("s_barrier")
        common.stamp(a, 2)
        issue_stage()
        a("s_mov_b32 s79, 0")
        Lll = a.newlabel("k1ll")
        a.label(Lll)
        issue_stage()
        a("s_waitcnt vmcnt(40)")
        a("s_barrier")
        a("s_add_u32 s79, s79, 1")
        a("s_cmp_lt_u32 s79, 13")
        a(f"s_cbranch_scc1 {Lll}")
        a(f"s_branch {Ltail}")
    a.label(Lpp)
    common.stamp(a, 1)
    for s in range(14): a("s_barrier")
    a.label(Ltail)
    def kreg(i): return 64 + 4 * i
    def vreg(j): return 92 + 4 * j
    a("s_lshr_b32 s80, s2, 4")
    a("s_lshl_b32 s80, s80, 2")
    a("s_add_u32 s80, s80, s28")
    a("s_and_b32 s81, s2, 15")
    a("s_lshl_b32 s82, s80, 5")
    a("s_lshl_b32 s83, s81, 6")
    a("v_lshrrev_b32 v11, 3, v0")
    a("v_and_b32 v12, 7, v0")
    a("s_lshl_b32 s84, s83, 3")
    a("v_lshlrev_b32 v13, 6, v12")
    for i in range(4):
        a(f"buffer_load_dwordx4 v[{200+4*i}:{203+4*i}], v13, s[24:27], s84 offen offset:{16*i}")
    a("s_lshl_b32 s84, s82, 11")
    a("s_lshl_b32 s85, s83, 1")
    a("s_add_u32 s84, s84, s85")
    a("v_lshlrev_b32 v13, 13, v11")
    a("v_lshl_add_u32 v13, v12, 4, v13")
    a("v_add_u32 v13, s84, v13")
    for i in range(3):
        a(f"v_subrev_u32 v{40+i}, {2048*(3-i)}, v13")
    for i in range(3):
        a(f"buffer_load_dwordx4 v[{kreg(i)}:{kreg(i)+3}], v{40+i}, s[16:19], 0 offen")
    for j in range(4):
        a(f"s_mov_b32 s84, {2048*j}")
        a(f"buffer_load_dwordx4 v[{kreg(3+j)}:{kreg(3+j)+3}], v13, s[16:19], s84 offen")
        a(f"buffer_load_dwordx4 v[{vreg(j)}:{vreg(j)+3}], v13, s[20:23], s84 offen")
    NPP = 15
    a(f"s_waitcnt vmcnt({20+NPP})")
    a("s_barrier")
    a(f"s_lshl_b32 s86, s28, 12")
    a("v_lshlrev_b32 v14, 9, v11")
    a("v_lshl_add_u32 v14, v12, 4, v14")
    a("v_add_u32 v14, s86, v14")
    a("v_lshrrev_b32 v11, 4, v0")
    a("v_and_b32 v12, 15, v0")
    a("v_lshrrev_b32 v15, 2, v12")
    a("v_and_b32 v50, 3, v12")
    a("v_lshlrev_b32 v48, 3, v11")
    a("v_add_u32 v48, 3, v48")
    a("v_sub_u32 v48, v48, v15")
    a("v_lshlrev_b32 v48, 7, v48")
    a("v_lshl_add_u32 v48, v50, 3, v48")
    a("v_add_u32 v48, s86, v48")
    a("v_add_u32 v49, s83, v12")
    a(f"v_mul_u32_u24 v49, {UR_STRIDE}, v49")
    a("s_lshl_b32 s85, s82, 1")
    a(f"s_sub_u32 s85, {2*2040}, s85")
    a("v_add_u32 v49, s85, v49")
    a("v_lshlrev_b32 v50, 4, v11")
    a("v_sub_u32 v49, v49, v50")
    a(f"s_waitcnt vmcnt({NPP})")
    a("s_barrier")
    def unpack(dst, src):
        for e in range(8):
            if e % 2 == 0: a(f"v_lshlrev_b32 v{dst+e}, 16, v{src+(e>>1)}")
            else: a(f"v_and_b32 v{dst+e}, 0xffff0000, v{src+(e>>1)}")
    def KU(i): return [108, 116, 124, 132][i % 4]
    a(f"s_waitcnt vmcnt({NPP-4})")
    for e in range(8):
        for i in range(4):
            src = 200 + 2 * e + (i >> 1)
            dst = 164 + 4 * e + i
            if i % 2 == 0: a(f"v_lshlrev_b32 v{dst}, 16, v{src}")
            else: a(f"v_and_b32 v{dst}, 0xffff0000, v{src}")
    a(f"s_waitcnt vmcnt({NPP-7})")
    for i in range(3): unpack(KU(i), kreg(i))
    for j in range(4):
        a(f"s_waitcnt vmcnt({6-2*j})")
        unpack(KU(j + 3), kreg(j + 3))
        unpack(24, vreg(j))
        for i in (3, 2, 1, 0):
            for e in range(8):
                if i == 3: a(f"v_mul_f32 v{16+e}, v{KU(j)+e}, v{164+4*e+3}")
                else: a(f"v_fmac_f32 v{16+e}, v{KU(j+3-i)+e}, v{164+4*e+i}")
        for e in range(8):
            a(f"v_mul_f32 v{16+e}, v{16+e}, v{24+e}")
        for q in range(4):
            a(f"v_cvt_pk_bf16_f32 v{vreg(j)+q}, v{16+2*q}, v{17+2*q}")
        a(f"ds_write_b128 v14, v[{vreg(j)}:{vreg(j)+3}] offset:{128*j}")
    a("s_waitcnt lgkmcnt(0)")
    R = 64
    for dh in range(4):
        for z in range(2):
            a(f"ds_read_b64_tr_b16 v[{R+4*dh+2*z}:{R+4*dh+2*z+1}], v48 offset:{(1 - z) * 512 + dh * 32}")
    for dh in range(4):
        a(f"s_mov_b32 s85, {WS_UR0 + dh * 16 * UR_STRIDE}")
        a(f"s_waitcnt lgkmcnt({6-2*dh})")
        a(f"buffer_store_dwordx4 v[{R+4*dh}:{R+4*dh+3}], v49, s[12:15], s85 offen")
    a("v_add_u32 v50, s83, v0")
    a(f"v_mul_u32_u24 v50, {UR_STRIDE}, v50")
    for i in range(4): a(f"v_mov_b32 v{52+i}, 0")
    a("s_cmp_eq_u32 s80, 0")
    a(f"s_mov_b32 s84, {WS_SIZE}")
    a(f"s_cselect_b32 s85, {WS_UR0 + 4096}, s84")
    a("buffer_store_dwordx4 v[52:55], v50, s[12:15], s85 offen")
    common.endpgm(a, 0)

    a.label(Lcomp)
    a("s_lshr_b32 s32, s2, 3")
    a("v_lshrrev_b32 v56, 1, v0")
    a("v_lshlrev_b32 v56, 11, v56")
    a("v_and_b32 v57, 1, v0")
    a("v_lshl_add_u32 v56, v57, 7, v56")
    a("s_and_b32 s31, s2, 1")
    a("s_lshl_b32 s31, s31, 10")
    a("s_lshl_b32 s33, s32, 5")
    a("s_add_u32 s31, s31, s33")
    a("s_lshl_b32 s82, s31, 11")
    a("v_lshrrev_b32 v58, 5, v0")
    a(f"v_mul_u32_u24 v58, {64*6144}, v58")
    a("v_bfe_u32 v57, v0, 4, 1")
    a("v_mul_u32_u24 v57, 6144, v57")
    a("v_add_u32 v58, v58, v57")
    a("v_bfe_u32 v57, v0, 2, 2")
    a("v_min_u32 v57, 2, v57")
    a("v_lshl_add_u32 v58, v57, 11, v58")
    a("v_and_b32 v57, 3, v0")
    a("v_lshl_add_u32 v58, v57, 7, v58")
    a("s_lshl_b32 s32, s32, 1")
    a("s_mul_i32 s83, s32, 6144")
    a("s_bfe_u32 s31, s2, 0x20001")
    a("s_lshl_b32 s31, s31, 9")
    a("s_add_u32 s83, s83, s31")
    a("s_bitcmp0_b32 s28, 0")
    a("s_cselect_b32 s88, s4, s8")
    a("s_cselect_b32 s89, s5, s9")
    a("s_cselect_b32 s90, s6, s10")
    a("s_mov_b32 s91, 0x00020000")
    a("s_cselect_b32 s82, s82, s83")
    a(f"s_mov_b32 s31, {2*64*6144}")
    a("s_cselect_b32 s85, 256, s31")
    a("s_cselect_b64 vcc, -1, 0")
    a("v_cndmask_b32 v56, v58, v56, vcc")
    a("s_lshr_b32 s31, s28, 1")
    a("s_add_u32 s31, s31, 1")
    a("s_mul_i32 s31, s31, s85")
    a("s_add_u32 s82, s82, s31")
    a("s_lshl_b32 s85, s85, 1")
    PFS = int(os.environ.get('K1PFS', '2'))
    a("s_lshr_b32 s84, s28, 1")
    a(f"s_mul_i32 s84, s84, {PFS}")
    a(f"s_sub_u32 s84, s84, {PFS}")
    Lnp0 = a.newlabel("k1np0")
    if 'nopf' not in VAR:
        a("s_cmp_ge_u32 s28, 2")
        a(f"s_cbranch_scc1 {Lnp0}")
        a("buffer_load_dword v59, v56, s[88:91], s82 offen sc1")
        a("s_add_u32 s82, s82, s85")
        a(f"s_add_u32 s84, s84, {2*PFS}")
        a.label(Lnp0)
    def pf_loop():
        if 'nopf' in VAR: return
        Lnp = a.newlabel("k1np")
        a("s_cmp_lg_u32 s72, s84")
        a(f"s_cbranch_scc1 {Lnp}")
        a(f"s_cmp_gt_u32 s72, {5*PFS}")
        a(f"s_cbranch_scc1 {Lnp}")
        a("buffer_load_dword v59, v56, s[88:91], s82 offen sc1")
        a("s_add_u32 s82, s82, s85")
        a(f"s_add_u32 s84, s84, {2*PFS}")
        a.label(Lnp)
    a("s_and_b32 s60, s28, 1")
    a("s_lshr_b32 s61, s28, 1")
    a("v_and_b32 v1, 31, v0")
    a("v_lshrrev_b32 v2, 5, v0")
    a("v_lshrrev_b32 v3, 1, v1")
    a("v_and_b32 v3, 7, v3")
    a("s_lshl_b32 s62, s60, 13")
    a("v_lshlrev_b32 v9, 7, v1")
    a("v_add_u32 v9, s62, v9")
    for ks in range(4):
        a(f"v_or_b32 v15, {2*ks}, v2")
        a("v_xor_b32 v15, v15, v3")
        a(f"v_lshl_add_u32 v{4+ks}, v15, 4, v9")
    a("v_and_b32 v1, 15, v0")
    a("v_lshrrev_b32 v3, 2, v1")
    a("v_and_b32 v1, 3, v1")
    a("v_lshrrev_b32 v15, 4, v0")
    a("v_and_b32 v15, 1, v15")
    a("v_lshlrev_b32 v15, 5, v15")
    a("v_lshl_add_u32 v15, v1, 3, v15")
    a("s_lshl_b32 s62, s61, 6")
    a("v_add_u32 v15, s62, v15")
    a("v_lshrrev_b32 v1, 1, v3")
    a("v_and_b32 v1, 1, v1")
    a("v_lshlrev_b32 v1, 6, v1")
    a("v_xor_b32 v15, v15, v1")
    a("v_lshl_add_u32 v3, v2, 3, v3")
    a("v_lshl_add_u32 v8, v3, 7, v15")
    a(f"v_add_u32 v8, {WS0}, v8")
    for i in range(4): a(f"v_mov_b32 v{10+i}, v{4+i}")
    a("v_mov_b32 v14, v8")
    for i in range(96): a(f"v_mov_b32 v{64+i}, 0")
    def Xf(b, mt): return 16 + 8 * b + 4 * mt
    def Wf(b, p): return 32 + 12 * b + 4 * p
    def acc(mt, p): return 64 + 16 * (3 * mt + p)
    def reads(ks, b):
        r = []
        if 'nords' in VAR: return ["s_nop 0"] * 8
        for mt in range(2):
            r.append(f"ds_read_b128 v[{Xf(b,mt)}:{Xf(b,mt)+3}], v{10+ks} offset:{mt*4096}")
        for p in range(3):
            for z in range(2):
                r.append(f"ds_read_b64_tr_b16 v[{Wf(b,p)+2*z}:{Wf(b,p)+2*z+1}], v14 offset:{p*8192+ks*2048+z*512}")
        return r
    def mfmas(b):
        r = []
        if 'nomfma' in VAR: return ["s_nop 0"] * 6
        for mt in range(2):
            for p in range(3):
                A, B = (Wf(b, p), Xf(b, mt)) if p < 2 else (Xf(b, mt), Wf(b, p))
                r.append(f"v_mfma_f32_32x32x16_bf16 v[{acc(mt,p)}:{acc(mt,p)+15}], v[{A}:{A+3}], v[{B}:{B+3}], v[{acc(mt,p)}:{acc(mt,p)+15}]")
        return r
    a("s_mov_b32 s72, 0")
    a("s_mov_b32 s73, 0")
    a("s_mov_b32 s74, 0")
    common.stamp(a, 1)
    a("s_barrier")
    common.stamp(a, 2)
    for x in reads(0, 0): a(x)
    Ls = a.newlabel("k1stage")
    Llast = a.newlabel("k1last")
    a.label(Ls)
    pf_loop()
    for ks in range(3):
        b = ks & 1
        a("s_waitcnt lgkmcnt(0)")
        m = mfmas(b); r = reads(ks + 1, b ^ 1)
        a(m[0]); [a(x) for x in r[0:4]]
        a(m[1]); [a(x) for x in r[4:8]]
        for x in m[2:]: a(x)
    a("s_waitcnt lgkmcnt(0)")
    a("s_cmp_eq_u32 s72, 15")
    a(f"s_cbranch_scc1 {Llast}")
    if 'tl' in VAR: common.stamp_dyn(a, 72, 4)
    a("s_barrier")
    a(f"s_add_u32 s73, s73, {XSL}")
    a(f"s_add_u32 s74, s74, {WSL}")
    a(f"s_cmp_eq_u32 s73, {NSL*XSL}")
    a("s_cselect_b32 s73, 0, s73")
    a("s_cselect_b32 s74, 0, s74")
    for i in range(4): a(f"v_add_u32 v{10+i}, s73, v{4+i}")
    a("v_add_u32 v14, s74, v8")
    for x in reads(0, 0): a(x)
    for x in mfmas(1): a(x)
    a("s_add_u32 s72, s72, 1")
    a(f"s_branch {Ls}")
    a.label(Llast)
    for x in mfmas(1): a(x)
    a("s_nop 15")
    common.stamp(a, 3)
    a("s_lshl_b32 s62, s30, 1")
    a("s_add_u32 s62, s62, s61")
    a("s_lshl_b32 s63, s29, 2")
    a("s_lshl_b32 s64, s60, 1")
    a("s_add_u32 s63, s63, s64")
    a("s_lshl_b32 s64, s62, 6")
    a("s_add_u32 s64, s64, s63")
    a("s_lshl_b32 s64, s64, 11")
    a("v_lshlrev_b32 v1, 4, v0")
    a(f"s_mov_b32 s66, {f32bits(QSCALE)}")
    pk = 160
    for mt in range(2):
        for p in range(3):
            base = acc(mt, p)
            d = pk + 8 * (3 * mt + p)
            if p == 0:
                for i in range(16): a(f"v_mul_f32 v{base+i}, s66, v{base+i}")
            for i in range(8):
                a(f"v_cvt_pk_bf16_f32 v{d+i}, v{base+2*i}, v{base+2*i+1}")
            a(f"s_add_u32 s65, s64, {[WS_Q, WS_K, WS_V][p] + mt*2048}")
            a(f"buffer_store_dwordx4 v[{d}:{d+3}], v1, s[12:15], s65 offen")
            a(f"buffer_store_dwordx4 v[{d+4}:{d+7}], v1, s[12:15], s65 offen offset:1024")
    for mt in range(2):
        d = pk + 8 * (3 * mt + 1)
        for i in range(8):
            c = "0" if i == 0 else f"v{16+mt}"
            a(f"v_dot2_f32_bf16 v{16+mt}, v{d+i}, v{d+i}, {c}")
    a("s_nop 3")
    a("v_mov_b32 v18, v16")
    a("v_mov_b32 v19, v17")
    a("s_nop 1")
    a("v_permlane32_swap_b32 v18, v16")
    a("v_permlane32_swap_b32 v19, v17")
    a("s_nop 1")
    a("v_add_f32 v16, v16, v18")
    a("v_add_f32 v17, v17, v19")
    a("v_max_f32 v16, v16, v17")
    for dpp in ("quad_perm:[1,0,3,2]", "quad_perm:[2,3,0,1]", "row_half_mirror", "row_mirror"):
        a("s_nop 1")
        a(f"v_max_f32_dpp v16, v16, v16 {dpp} row_mask:0xf bank_mask:0xf")
    a("s_nop 1")
    a("v_mov_b32 v17, v16")
    a("s_nop 1")
    a("v_permlane16_swap_b32 v17, v16")
    a("s_nop 1")
    a("v_max_f32 v16, v16, v17")
    a("s_lshl_b32 s64, s62, 5")
    a("s_lshl_b32 s65, s29, 1")
    a("s_add_u32 s64, s64, s65")
    a("s_add_u32 s64, s64, s60")
    a("s_lshl_b32 s64, s64, 2")
    a(f"s_add_u32 s64, s64, {WS_KMAX}")
    a("v_mov_b32 v1, 0")
    a("s_mov_b64 exec, 1")
    a("buffer_store_dword v16, v1, s[12:15], s64 offen")
    common.endpgm(a, 0)
    a.label(Lend)
    a("s_endpgm")
    return kernel_desc(name, 224)
```

```python
import struct, os
from common import *
import common
def f32bits(x): return struct.unpack("<I", struct.pack("<f", x))[0]
VAR = os.environ.get('K2VAR', '')

CONV0 = 65536
CP_STRIDE = 4160
H_OFF = 4 * CP_STRIDE
CH_BYTES = H_OFF + 4608
FLAG_OFF = CONV0 + 4 * CH_BYTES
K2_LDS = FLAG_OFF + 64
K2_BLOCK = 576

Q = 8; CN = 16; O = 32; L = 48; ONES = 52
S = [64, 80]; P = 96; KF = [112, 120]; VF = [128, 136]

def gen_k2(a, name="k2_kernel"):
    common.PV = 166
    kernel_begin(a, name)
    Lend = a.newlabel("k2end")
    a("s_cmp_ge_u32 s2, 256")
    a(f"s_cbranch_scc1 {Lend}")
    a("s_load_dwordx16 s[36:51], s[0:1], 0")
    a("s_load_dwordx8 s[52:59], s[0:1], 64")
    a("v_lshrrev_b32 v1, 6, v0")
    a("s_nop 0")
    a("v_readfirstlane_b32 s28, v1")
    a("v_and_b32 v0, 63, v0")
    common.prof_begin(a)
    a("s_and_b32 s31, s2, 7")
    a("s_lshr_b32 s32, s2, 3")
    a("s_lshl_b32 s29, s31, 2")
    a("s_lshr_b32 s33, s32, 3")
    a("s_add_u32 s29, s29, s33")
    a("s_and_b32 s30, s32, 7")
    a("v_lshlrev_b32 v1, 4, v0")
    a("s_waitcnt lgkmcnt(0)")
    srd(a, 12, 58, WS_SIZE)
    srd(a, 16, 44, 1024 * 2048 * 2)
    srd(a, 20, 52, 1024 * 1024 * 2)
    srd(a, 24, 36, 2048 * 1024 * 2)
    Lmain = a.newlabel("k2main")
    a("s_cmp_lt_u32 s28, 8")
    a(f"s_cbranch_scc1 {Lmain}")

    for i in range(4): a(f"v_mov_b32 v{8+i}, 0")
    a("v_and_b32 v2, 7, v0")
    a("v_lshrrev_b32 v3, 1, v2")
    a(f"v_mul_u32_u24 v3, {CP_STRIDE}, v3")
    a("v_and_b32 v2, 1, v2")
    a("v_lshl_add_u32 v2, v2, 4, v3")
    a("v_add_u32 v2, 4096, v2")
    a(f"v_add_u32 v3, {H_OFF}, v1")
    a("v_cmp_gt_u32 vcc, 32, v0")
    a("s_nop 1")
    a("v_cndmask_b32 v2, v2, v3, vcc")
    a(f"v_add_u32 v2, {CONV0}, v2")
    for ch in range(4):
        a(f"ds_write_b128 v2, v[8:11] offset:{ch*CH_BYTES}")
    a(f"v_mov_b32 v2, {FLAG_OFF}")
    a("ds_write_b32 v2, v8")
    a("s_waitcnt lgkmcnt(0)")
    a("s_lshl_b32 s6, s29, 17")
    a(f"s_mul_i32 s60, s2, {4*UR_STRIDE}")
    a(f"s_add_u32 s60, s60, {WS_UR0}")
    a("s_lshl_b32 s61, s2, 14")
    a("s_mov_b32 s7, 0")
    Lhr = a.newlabel("k2hr")
    a.label(Lhr)
    vm = VM(a)
    def issue_chunk(c):
        for kv, base in ((0, WS_K), (1, WS_V)):
            for i in range(8):
                a(f"s_mov_b32 m0, {(c % 4)*16384 + kv*8192 + i*1024}")
                a(f"s_add_u32 s31, s6, {base + c*8192 + i*1024}")
                vm.op("buffer_load_dwordx4 v1, s[12:15], s31 offen lds", ("c", c))
    conv = []
    for ch in range(4):
        for pc in range(4):
            conv.append((CONV0 + ch*CH_BYTES + H_OFF + 512 + pc*1024, 61, ch*4096 + pc*1024, 16))
        for cc in range(4):
            for pc in range(4):
                conv.append((CONV0 + ch*CH_BYTES + cc*CP_STRIDE + pc*1024, 60, ch*UR_STRIDE + cc*2 + pc*1024, 12))
    def issue_conv(lo, hi):
        for (dst, sreg, off, srdr) in conv[lo:hi]:
            a(f"s_mov_b32 m0, {dst}")
            a(f"s_add_u32 s31, s{sreg}, {off}")
            vm.op(f"buffer_load_dwordx4 v1, s[{srdr}:{srdr+3}], s31 offen lds", "conv")
    issue_chunk(0); issue_chunk(1)
    vm.wait(("c", 0))
    a("s_barrier")
    issue_chunk(2)
    for c in range(15):
        if c >= 1:
            issue_conv(8*(c-1), 8*c) if c <= 10 else None
        if c == 12 and 'nomall' not in VAR:
            a("v_lshlrev_b32 v2, 7, v0")
            a("s_lshl_b32 s31, s2, 13")
            vm.op("buffer_load_dword v3, v2, s[20:23], s31 offen sc1")
            a("s_lshl_b32 s31, s2, 14")
            vm.op("buffer_load_dword v3, v2, s[24:27], s31 offen sc1")
            a("s_add_u32 s31, s31, 8192")
            vm.op("buffer_load_dword v3, v2, s[24:27], s31 offen sc1")
        vm.wait(("c", c + 1))
        a("s_barrier")
        if c + 3 <= 15: issue_chunk(c + 3)
    a("s_barrier")
    a("s_cmp_lg_u32 s7, 0")
    Lhd = a.newlabel("k2hd")
    a(f"s_cbranch_scc1 {Lhd}")
    a("s_barrier")
    a(f"v_mov_b32 v6, {FLAG_OFF}")
    a("ds_read_b32 v7, v6")
    a("s_waitcnt lgkmcnt(0)")
    a("v_readfirstlane_b32 s31, v7")
    a("s_nop 3")
    a("s_cmp_eq_u32 s31, 0")
    a(f"s_cbranch_scc1 {Lhd}")
    a("s_mov_b32 s7, 1")
    a("s_waitcnt vmcnt(0)")
    a("s_barrier")
    a(f"s_branch {Lhr}")
    a.label(Lhd)
    a("s_waitcnt vmcnt(0)")
    a("s_barrier")
    common.endpgm(a, 1)

    a.label(Lmain)
    a("s_lshl_b32 s31, s29, 7")
    a(f"s_add_u32 s31, s31, {WS_KMAX}")
    a("s_add_u32 s4, s58, s31")
    a("s_addc_u32 s5, s59, 0")
    a("s_load_dwordx16 s[60:75], s[4:5], 0")
    a("s_load_dwordx16 s[76:91], s[4:5], 64")
    a("s_lshl_b32 s31, s29, 6")
    a("s_lshl_b32 s32, s30, 3")
    a("s_add_u32 s31, s31, s32")
    a("s_add_u32 s31, s31, s28")
    a("s_lshl_b32 s31, s31, 11")
    if WS_Q: a(f"s_add_u32 s31, s31, {WS_Q}")
    a(f"buffer_load_dwordx4 v[{Q}:{Q+3}], v1, s[12:15], s31 offen")
    a(f"buffer_load_dwordx4 v[{Q+4}:{Q+7}], v1, s[12:15], s31 offen offset:1024")
    a("v_lshrrev_b32 v2, 4, v0")
    a("v_xor_b32 v2, v2, v0")
    a("v_and_b32 v2, 1, v2")
    a("v_cmp_eq_u32 vcc, 0, v2")
    a("v_mov_b32 v3, 0x3f803f80")
    a("s_nop 1")
    for i in range(4): a(f"v_cndmask_b32 v{ONES+i}, 0, v3, vcc")
    a("s_waitcnt lgkmcnt(0)")
    for i in range(1, 32): a(f"s_max_u32 s60, s60, s{60+i}")
    a("s_waitcnt vmcnt(0)")
    for i in range(8):
        c = "0" if i == 0 else "v4"
        a(f"v_dot2_f32_bf16 v4, v{Q+i}, v{Q+i}, {c}")
    a("s_nop 3")
    a("v_mov_b32 v5, v4")
    a("s_nop 1")
    a("v_permlane32_swap_b32 v5, v4")
    a("s_nop 1")
    a("v_add_f32 v4, v4, v5")
    a("v_mul_f32 v4, s60, v4")
    a("v_sqrt_f32 v4, v4")
    a("s_nop 0")
    a("v_sub_f32 v4, 0, v4")
    a("s_mov_b32 s7, 0")
    Lrestart = a.newlabel("k2restart")
    a.label(Lrestart)
    for i in range(16): a(f"v_mov_b32 v{CN+i}, v4")
    for i in range(16): a(f"v_mov_b32 v{O+i}, 0")
    for i in range(4): a(f"v_mov_b32 v{L+i}, 0")
    for i in range(4, 8): a(f"v_mov_b32 v{P+i}, 0")
    for i in range(4, 8): a(f"v_mov_b32 v{VF[1]+i}, 0")
    a("s_barrier")
    common.stamp(a, 1)
    a("v_mov_b32 v2, v1")
    a("v_add_u32 v3, 16384, v1")
    def kread(buf, areg, tile):
        return [f"ds_read_b128 v[{KF[buf]}:{KF[buf]+3}], v{areg} offset:{tile*2048}",
                f"ds_read_b128 v[{KF[buf]+4}:{KF[buf]+7}], v{areg} offset:{tile*2048+1024}"]
    def vread(buf, areg, tile):
        return [f"ds_read_b128 v[{VF[buf]}:{VF[buf]+3}], v{areg} offset:{8192+tile*2048}",
                f"ds_read_b128 v[{VF[buf]+4}:{VF[buf]+7}], v{areg} offset:{8192+tile*2048+1024}"]
    def qk(sb, kb, half):
        c = f"v[{CN}:{CN+15}]" if half == 0 else f"v[{S[sb]}:{S[sb]+15}]"
        return f"v_mfma_f32_32x32x16_bf16 v[{S[sb]}:{S[sb]+15}], v[{KF[kb]+4*half}:{KF[kb]+4*half+3}], v[{Q+4*half}:{Q+4*half+3}], {c}"
    def pv(vb, half):
        return f"v_mfma_f32_32x32x16_bf16 v[{O}:{O+15}], v[{VF[vb]+4*half}:{VF[vb]+4*half+3}], v[{P+4*half}:{P+4*half+3}], v[{O}:{O+15}]"
    def lsum(half):
        return f"v_mfma_f32_16x16x32_bf16 v[{L}:{L+3}], v[{ONES}:{ONES+3}], v[{P+4*half}:{P+4*half+3}], v[{L}:{L+3}]"
    for x in kread(0, 2, 0): a(x)
    for x in kread(1, 2, 1): a(x)
    for x in vread(0, 2, 0): a(x)
    a("s_waitcnt lgkmcnt(4)")
    a(qk(0, 0, 0)); a(qk(0, 0, 1))
    a("s_mov_b32 s10, 0")
    a("s_nop 11")
    Lloop = a.newlabel("k2loop")
    a.label(Lloop)
    for tl in range(4):
        sb = tl & 1; nb_ = sb ^ 1
        def ex(i): return f"v_exp_f32 v{S[sb]+i}, v{S[sb]+i}"
        def cv(i): return f"v_cvt_pk_bf16_f32 v{P+i}, v{S[sb]+2*i}, v{S[sb]+2*i+1}"
        a("s_waitcnt lgkmcnt(2)")
        a(qk(nb_, nb_, 0))
        for i in range(0, 4): a(ex(i))
        a(qk(nb_, nb_, 1))
        for i in range(4, 6): a(ex(i))
        if tl == 2: a("s_barrier")
        if tl < 2: kr = kread(sb, 2, tl + 2)
        else: kr = kread(sb, 3, tl - 2)
        for x in kr: a(x)
        for i in range(6, 8): a(ex(i))
        a(pv(nb_, 1))
        for i in range(0, 4): a(cv(i))
        a(ex(8))
        a(lsum(1))
        for i in range(9, 12): a(ex(i))
        a("s_waitcnt lgkmcnt(2)")
        a(pv(sb, 0))
        if tl < 3: vr_ = vread(nb_, 2, tl + 1)
        else: vr_ = vread(nb_, 3, 0)
        for x in vr_: a(x)
        for i in range(12, 16): a(ex(i))
        a(lsum(0))
        if tl == 3:
            a("v_mov_b32 v2, v3")
            a("v_add_u32 v3, 16384, v3")
            a("v_and_b32 v3, 0xffff, v3")
            a("s_add_u32 s10, s10, 1")
            a("s_cmp_lt_u32 s10, 16")
        for i in range(4, 8): a(cv(i))
    a(f"s_cbranch_scc1 {Lloop}")
    a("s_nop 1")
    a(pv(1, 1))
    a(lsum(1))
    a("s_waitcnt lgkmcnt(0)")
    a("s_nop 15")
    common.stamp(a, 2)
    a("v_and_b32 v5, 16, v0")
    a("v_cmp_ne_u32 vcc, 0, v5")
    a("s_nop 1")
    a(f"v_cndmask_b32 v5, v{L}, v{L+1}, vcc")
    Lok = a.newlabel("k2ok")
    a("s_cmp_lg_u32 s7, 0")
    a(f"s_cbranch_scc1 {Lok}")
    a(f"v_mov_b32 v6, {f32bits(2.0**-60)}")
    a("v_cmp_nge_f32 vcc, v5, v6")
    Lnf = a.newlabel("k2nf")
    a("s_cmp_eq_u64 vcc, 0")
    a(f"s_cbranch_scc1 {Lnf}")
    a(f"v_mov_b32 v6, {FLAG_OFF}")
    a("v_mov_b32 v7, 1")
    a("ds_write_b32 v6, v7")
    a.label(Lnf)
    a("s_waitcnt lgkmcnt(0)")
    a("s_barrier")
    a(f"v_mov_b32 v6, {FLAG_OFF}")
    a("ds_read_b32 v7, v6")
    a("s_waitcnt lgkmcnt(0)")
    a("v_readfirstlane_b32 s31, v7")
    a("s_nop 3")
    a("s_cmp_eq_u32 s31, 0")
    a(f"s_cbranch_scc1 {Lok}")
    a("s_mov_b32 s7, 1")
    a("v_mov_b32 v4, 0xff800000")
    a("s_lshl_b32 s31, s29, 17")
    a(f"s_add_u32 s31, s31, {WS_K}")
    a("s_mov_b32 s10, 0")
    Lfb = a.newlabel("k2fb")
    a.label(Lfb)
    a(f"buffer_load_dwordx4 v[{KF[0]}:{KF[0]+3}], v1, s[12:15], s31 offen")
    a(f"buffer_load_dwordx4 v[{KF[0]+4}:{KF[0]+7}], v1, s[12:15], s31 offen offset:1024")
    a("s_waitcnt vmcnt(0)")
    a(f"v_mfma_f32_32x32x16_bf16 v[{S[0]}:{S[0]+15}], v[{KF[0]}:{KF[0]+3}], v[{Q}:{Q+3}], 0")
    a(f"v_mfma_f32_32x32x16_bf16 v[{S[0]}:{S[0]+15}], v[{KF[0]+4}:{KF[0]+7}], v[{Q+4}:{Q+7}], v[{S[0]}:{S[0]+15}]")
    a("s_nop 15")
    for i in range(8): a(f"v_max3_f32 v4, v4, v{S[0]+2*i}, v{S[0]+2*i+1}")
    a("s_add_u32 s31, s31, 2048")
    a("s_add_u32 s10, s10, 1")
    a("s_cmp_lt_u32 s10, 64")
    a(f"s_cbranch_scc1 {Lfb}")
    a("v_mov_b32 v5, v4")
    a("s_nop 1")
    a("v_permlane32_swap_b32 v5, v4")
    a("s_nop 1")
    a("v_max_f32 v4, v4, v5")
    a("v_sub_f32 v4, 0, v4")
    a("s_barrier")
    a(f"s_branch {Lrestart}")
    a.label(Lok)
    a("v_rcp_f32 v5, v5")
    a("s_nop 0")
    for i in range(16): a(f"v_mul_f32 v{O+i}, v{O+i}, v5")
    for i in range(8): a(f"v_cvt_pk_bf16_f32 v{P+i}, v{O+2*i}, v{O+2*i+1}")
    a("s_lshl_b32 s31, s30, 3")
    a("s_add_u32 s31, s31, s28")
    a("s_lshl_b32 s31, s31, 5")
    a("s_add_u32 s31, s31, s29")
    a("s_lshl_b32 s31, s31, 11")
    a(f"s_add_u32 s31, s31, {WS_O}")
    a(f"buffer_store_dwordx4 v[{P}:{P+3}], v1, s[12:15], s31 offen")
    a(f"buffer_store_dwordx4 v[{P+4}:{P+7}], v1, s[12:15], s31 offen offset:1024")

    a("s_lshr_b32 s60, s28, 1")
    a("s_and_b32 s61, s28, 1")
    a("s_lshl_b32 s62, s2, 2")
    a("s_add_u32 s62, s62, s60")
    a(f"s_mul_i32 s63, s60, {CH_BYTES}")
    a(f"s_add_u32 s63, s63, {CONV0}")
    a("s_lshr_b32 s31, s62, 1")
    a("s_lshl_b32 s31, s31, 2")
    a("s_add_u32 s4, s46, s31")
    a("s_addc_u32 s5, s47, 0")
    a("s_load_dword s70, s[4:5], 0")
    a("v_and_b32 v2, 15, v0")
    a("v_lshrrev_b32 v3, 4, v0")
    a("v_sub_u32 v4, 3, v2")
    a("v_and_b32 v4, 3, v4")
    a(f"v_mul_u32_u24 v4, {CP_STRIDE}, v4")
    a("v_lshrrev_b32 v5, 2, v2")
    a("v_lshlrev_b32 v6, 1, v3")
    a("v_sub_u32 v5, v6, v5")
    a("v_add_u32 v5, 3, v5")
    a("v_lshl_add_u32 v4, v5, 3, v4")
    a("v_add_u32 v4, s63, v4")
    a("v_lshlrev_b32 v5, 5, v2")
    a("v_lshl_add_u32 v5, v3, 4, v5")
    a(f"s_add_u32 s31, s63, {H_OFF + 32}")
    a("v_add_u32 v5, s31, v5")
    a("v_lshlrev_b32 v6, 5, v2")
    a("v_lshl_add_u32 v6, v3, 3, v6")
    a("s_add_u32 s31, s63, 504")
    a("v_sub_u32 v7, s31, v6")
    a("s_lshl_b32 s64, s62, 12")
    a(f"s_add_u32 s64, s64, {WS_YT}")
    a("s_waitcnt lgkmcnt(0)")
    a("s_barrier")
    common.stamp(a, 3)
    a("s_bitcmp1_b32 s62, 0")
    a("s_cselect_b32 s31, 0, 16")
    a("s_lshl_b32 s70, s70, s31")
    a("s_and_b32 s70, s70, 0xffff0000")
    ACC = 8
    def AF(b, x): return 32 + 64 * b + 4 * x
    def BF(b, x): return 64 + 64 * b + 4 * x
    Lh1 = a.newlabel("k2h1")
    a("s_waitcnt vmcnt(0)")
    a("s_cmp_eq_u32 s61, 1")
    a(f"s_cbranch_scc1 {Lh1}")
    for hw in range(2):
        if hw == 1: a.label(Lh1)
        Ts = [0, 3, 4, 7] if hw == 0 else [1, 2, 5, 6]
        mx = max(Ts)
        def rd(m0, b):
            r = []
            for x in range(mx + 1):
                o = 64*(63-(m0+8*x))
                r.append(f"ds_read_b64 v[{AF(b,x)}:{AF(b,x)+1}], v4 offset:{o}")
                r.append(f"ds_read_b64 v[{AF(b,x)+2}:{AF(b,x)+3}], v4 offset:{o+8}")
                r.append(f"ds_read_b128 v[{BF(b,x)}:{BF(b,x)+3}], v5 offset:{512*x+64*(7-m0)}")
            return r
        for x in rd(0, 0): a(x)
        for m0 in range(8):
            b = m0 & 1
            a("s_waitcnt lgkmcnt(0)")
            nxt = rd(m0 + 1, b ^ 1) if m0 < 7 else []
            mf = []
            for ti, T in enumerate(Ts):
                for x in range(T + 1):
                    c = "0" if (m0 == 0 and x == 0) else f"v[{ACC+4*ti}:{ACC+4*ti+3}]"
                    mf.append(f"v_mfma_f32_16x16x32_bf16 v[{ACC+4*ti}:{ACC+4*ti+3}], v[{AF(b,x)}:{AF(b,x)+3}], v[{BF(b,T-x)}:{BF(b,T-x)+3}], {c}")
            k = 0
            for i, m in enumerate(mf):
                a(m)
                for _ in range(2):
                    if k < len(nxt): a(nxt[k]); k += 1
        for ti, T in enumerate(Ts):
            a(f"ds_read_b64 v[{32+2*ti}:{33+2*ti}], v7 offset:{512*(7-T)}")
        a("s_waitcnt lgkmcnt(0)")
        a("s_nop 7")
        for ti, T in enumerate(Ts):
            r0, r1 = 32 + 2 * ti, 33 + 2 * ti
            a(f"v_and_b32 v48, 0xffff0000, v{r1}")
            a(f"v_lshlrev_b32 v49, 16, v{r1}")
            a(f"v_and_b32 v50, 0xffff0000, v{r0}")
            a(f"v_lshlrev_b32 v51, 16, v{r0}")
            for e in range(4):
                a(f"v_fma_f32 v{ACC+4*ti+e}, v{48+e}, s70, v{ACC+4*ti+e}")
            a(f"v_cvt_pk_bf16_f32 v{52+2*ti}, v{ACC+4*ti}, v{ACC+4*ti+1}")
            a(f"v_cvt_pk_bf16_f32 v{53+2*ti}, v{ACC+4*ti+2}, v{ACC+4*ti+3}")
            a(f"buffer_store_dwordx2 v[{52+2*ti}:{53+2*ti}], v6, s[12:15], s64 offen offset:{512*T}")
        if hw == 0: common.endpgm(a, 1)
    common.endpgm(a, 1)
    a.label(Lend)
    a("s_endpgm")
    return kernel_desc(name, 160)
```

```python
from common import *
import common

import os
VAR = os.environ.get('K3VAR', '')
SCR3 = 131072
K3_LDS = SCR3 + 4 * 4096

def gen_k3(a, name="k3_kernel"):
    common.PV = 166
    kernel_begin(a, name)
    Lend = a.newlabel("k3end")
    a("s_cmp_ge_u32 s2, 256")
    a(f"s_cbranch_scc1 {Lend}")
    a("s_load_dwordx16 s[36:51], s[0:1], 0")
    a("s_load_dwordx8 s[52:59], s[0:1], 64")
    a("v_lshrrev_b32 v1, 6, v0")
    a("s_nop 0")
    a("v_readfirstlane_b32 s28, v1")
    a("v_and_b32 v0, 63, v0")
    common.prof_begin(a)
    a("s_and_b32 s31, s2, 7")
    a("s_lshr_b32 s32, s2, 3")
    a("s_and_b32 s29, s31, 3")
    a("s_lshl_b32 s29, s29, 2")
    a("s_and_b32 s33, s32, 3")
    a("s_add_u32 s29, s29, s33")
    a("s_lshr_b32 s30, s31, 2")
    a("s_lshl_b32 s30, s30, 3")
    a("s_lshr_b32 s33, s32, 2")
    a("s_add_u32 s30, s30, s33")
    a("s_waitcnt lgkmcnt(0)")
    srd(a, 4, 52, 1024 * 1024 * 2)
    srd(a, 8, 54, 2048 * 2048 * 2)
    srd(a, 12, 58, WS_SIZE)
    srd(a, 16, 36, 2048 * 1024 * 2)
    Lcomp = a.newlabel("k3comp")
    a("s_cmp_lt_u32 s28, 4")
    a(f"s_cbranch_scc1 {Lcomp}")
    a("s_sub_u32 s28, s28, 4")
    a("v_lshrrev_b32 v4, 3, v0")
    a("v_and_b32 v5, 7, v0")
    a("v_lshrrev_b32 v6, 1, v4")
    a("v_and_b32 v6, 1, v6")
    a("v_lshlrev_b32 v6, 2, v6")
    a("v_xor_b32 v7, v5, v6")
    a("v_lshlrev_b32 v7, 4, v7")
    a("v_lshl_add_u32 v3, v4, 11, v7")
    a("s_lshl_b32 s60, s30, 7")
    a("s_lshl_b32 s61, s28, 14")
    a("s_add_u32 s60, s60, s61")
    a("s_lshl_b32 s61, s28, 10")
    vm = VM(a)
    if 'pf' in VAR:
        a("v_lshrrev_b32 v20, 2, v0")
        a("v_and_b32 v20, 7, v20")
        a("v_lshlrev_b32 v20, 11, v20")
        a("v_and_b32 v21, 3, v0")
        a("v_lshl_add_u32 v20, v21, 7, v20")
        a("s_lshr_b32 s31, s2, 3")
        a("s_lshl_b32 s31, s31, 16")
        a("s_lshl_b32 s32, s28, 14")
        a("s_add_u32 s31, s31, s32")
        a("s_bfe_u32 s32, s2, 0x20001")
        a("s_lshl_b32 s32, s32, 9")
        a("s_add_u32 s31, s31, s32")
        vm.op("buffer_load_dword v22, v20, s[4:7], s31 offen sc1")
    def wchunk(c):
        for n in range(4*c, 4*c + 4):
            a(f"s_add_u32 m0, s61, {n*4096}")
            a(f"s_add_u32 s31, s60, {n*65536}")
            vm.op("buffer_load_dwordx4 v3, s[4:7], s31 offen lds", ("w", c))
    AH = 3
    for c in range(AH): wchunk(c)
    for c in range(8 - AH):
        vm.wait(("w", c))
        a("s_barrier")
        wchunk(c + AH)
    a("s_lshr_b32 s62, s2, 3")
    a("s_and_b32 s63, s2, 7")
    a("s_lshl_b32 s63, s63, 2")
    a("s_add_u32 s63, s63, s28")
    a("v_lshlrev_b32 v8, 12, v4")
    a("v_lshl_add_u32 v8, v5, 4, v8")
    a("s_lshl_b32 s64, s63, 17")
    a("s_lshl_b32 s65, s62, 7")
    a("s_add_u32 s64, s64, s65")
    a(f"s_add_u32 s64, s64, {WS_YT}")
    a("s_lshl_b32 s66, s28, 12")
    a(f"s_add_u32 s66, s66, {SCR3}")
    for n in range(4):
        a(f"s_add_u32 m0, s66, {n*1024}")
        a(f"s_add_u32 s31, s64, {n*32768}")
        vm.op("buffer_load_dwordx4 v8, s[12:15], s31 offen lds")
    a("v_lshrrev_b32 v9, 4, v0")
    a("v_and_b32 v10, 15, v0")
    a("v_lshlrev_b32 v11, 11, v10")
    a("v_lshl_add_u32 v11, v9, 4, v11")
    a("v_lshlrev_b32 v12, 12, v10")
    a("v_lshl_add_u32 v12, v9, 4, v12")
    a("s_lshl_b32 s64, s62, 17")
    a("s_lshl_b32 s65, s63, 6")
    a("s_add_u32 s67, s64, s65")
    a("s_lshl_b32 s64, s62, 18")
    a("s_add_u32 s68, s64, s65")
    for ps in range(4):
        a(f"s_add_u32 s31, s67, {ps*32768}")
        vm.op(f"buffer_load_dwordx4 v[{32+4*ps}:{35+4*ps}], v11, s[16:19], s31 offen")
    for c in range(8 - AH, 8):
        vm.wait(("w", c))
        a("s_barrier")
    common.stamp(a, 1)
    a("v_lshrrev_b32 v13, 2, v10")
    a("v_lshl_add_u32 v13, v9, 3, v13")
    a("v_lshlrev_b32 v13, 7, v13")
    a("v_and_b32 v14, 3, v10")
    a("v_lshl_add_u32 v13, v14, 3, v13")
    a("v_add_u32 v13, s66, v13")
    a("s_waitcnt vmcnt(0)")
    for ps in range(4):
        for z in range(2):
            a(f"ds_read_b64_tr_b16 v[{48+4*ps+2*z}:{49+4*ps+2*z}], v13 offset:{z*512+ps*32}")
    for ps in range(4):
        a(f"s_waitcnt lgkmcnt({6-2*ps})")
        for dw in range(4):
            qr, yr = 32 + 4 * ps + dw, 48 + 4 * ps + dw
            a(f"v_lshlrev_b32 v16, 16, v{qr}")
            a(f"v_and_b32 v17, 0xffff0000, v{qr}")
            a(f"v_lshlrev_b32 v18, 16, v{yr}")
            a(f"v_and_b32 v19, 0xffff0000, v{yr}")
            a("v_mul_f32 v16, v16, v18")
            a("v_mul_f32 v17, v17, v19")
            a(f"v_cvt_pk_bf16_f32 v{64+4*ps+dw}, v16, v17")
        a(f"s_add_u32 s31, s68, {ps*65536}")
        a(f"buffer_store_dwordx4 v[{64+4*ps}:{67+4*ps}], v12, s[8:11], s31 offen")
    common.endpgm(a, 2)

    a.label(Lcomp)
    a("v_lshlrev_b32 v1, 4, v0")
    a("s_lshl_b32 s60, s29, 2")
    a("s_add_u32 s60, s60, s28")
    a("s_lshl_b32 s61, s60, 16")
    a(f"s_add_u32 s61, s61, {WS_O}")
    NPF = 16
    def OF(i): return 64 + 4 * (i % NPF)
    def oload(f):
        a(f"s_add_u32 s31, s61, {(f//4)*4096}")
        a(f"buffer_load_dwordx4 v[{OF(f)}:{OF(f)+3}], v1, s[12:15], s31 offen offset:{(f%4)*1024}")
    if 'pf' in VAR:
        a("v_lshlrev_b32 v2, 7, v0")
        a("s_and_b32 s31, s2, 1")
        a("s_lshl_b32 s31, s31, 21")
        a("s_lshr_b32 s32, s2, 3")
        a("s_lshl_b32 s32, s32, 16")
        a("s_add_u32 s31, s31, s32")
        a("s_lshl_b32 s32, s28, 13")
        a("s_add_u32 s31, s31, s32")
        a(f"s_add_u32 s31, s31, {WS_O}")
        a("buffer_load_dword v10, v2, s[12:15], s31 offen sc1")
        a("s_add_u32 s31, s31, 32768")
        a("buffer_load_dword v10, v2, s[12:15], s31 offen sc1")
    for f in range(NPF): oload(f)
    a("v_and_b32 v2, 15, v0")
    a("v_lshrrev_b32 v3, 2, v2")
    a("v_and_b32 v2, 3, v2")
    a("v_lshrrev_b32 v4, 4, v0")
    a("v_and_b32 v4, 1, v4")
    a("v_lshlrev_b32 v4, 5, v4")
    a("v_lshl_add_u32 v4, v2, 3, v4")
    a("v_lshrrev_b32 v5, 1, v3")
    a("v_and_b32 v5, 1, v5")
    a("v_lshlrev_b32 v5, 6, v5")
    a("v_xor_b32 v4, v4, v5")
    a("v_lshrrev_b32 v5, 5, v0")
    a("v_lshl_add_u32 v3, v5, 2, v3")
    a("v_lshl_add_u32 v8, v3, 7, v4")
    a("v_xor_b32 v9, 64, v8")
    ACC = 32
    for i in range(32): a(f"v_mov_b32 v{ACC+i}, 0")
    def WF(b, u): return 16 + 8 * b + 4 * u
    def wread(fl, b):
        r = []
        for u in range(2):
            for z in range(2):
                r.append(f"ds_read_b64_tr_b16 v[{WF(b,u)+2*z}:{WF(b,u)+2*z+1}], v{8+u} offset:{fl*2048+z*1024}")
        return r
    for c in range(8):
        a("s_barrier")
        if c == 0: common.stamp(a, 1)
        if c > 0:
            a("v_add_u32 v8, 16384, v8")
            a("v_add_u32 v9, 16384, v9")
        for x in wread(0, 0): a(x)
        for fl in range(8):
            f = 8 * c + fl
            b = fl & 1
            if fl < 7:
                for x in wread(fl + 1, b ^ 1): a(x)
                a("s_waitcnt lgkmcnt(4)")
            else:
                a("s_waitcnt lgkmcnt(0)")
            rem = min(NPF - 1, 63 - f)
            a(f"s_waitcnt vmcnt({rem})")
            for u in range(2):
                a(f"v_mfma_f32_32x32x16_bf16 v[{ACC+16*u}:{ACC+16*u+15}], v[{WF(b,u)}:{WF(b,u)+3}], v[{OF(f)}:{OF(f)+3}], v[{ACC+16*u}:{ACC+16*u+15}]")
            if f + NPF < 64: oload(f + NPF)
    a("s_nop 15")
    common.stamp(a, 2)
    a("v_and_b32 v2, 31, v0")
    a("v_lshlrev_b32 v2, 12, v2")
    a("v_lshl_add_u32 v2, v5, 4, v2")
    a("s_lshl_b32 s62, s60, 17")
    a("s_lshl_b32 s63, s30, 7")
    a("s_add_u32 s62, s62, s63")
    a("s_add_u32 s62, s62, 2048")
    for u in range(2):
        for gp in range(2):
            d = 64 + 8 * u + 4 * gp
            src = ACC + 16 * u + 8 * gp
            for i in range(4):
                a(f"v_cvt_pk_bf16_f32 v{d+i}, v{src+2*i}, v{src+2*i+1}")
            a("s_nop 1")
            a(f"v_permlane32_swap_b32 v{d}, v{d+2}")
            a(f"v_permlane32_swap_b32 v{d+1}, v{d+3}")
            a("s_nop 1")
            a(f"buffer_store_dwordx4 v[{d}:{d+3}], v2, s[8:11], s62 offen offset:{64*u+32*gp}")
    common.endpgm(a, 2)
    a.label(Lend)
    a("s_endpgm")
    return kernel_desc(name, 128)
```

```python
import struct, os
from common import *
import common

QSCALE = 1.4426950408889634 / (32 ** 0.5)
def f32bits(x): return struct.unpack("<I", struct.pack("<f", x))[0]
STP = os.environ.get('STP', '')
VAR = os.environ.get('K1VAR', '')

NSL = 4
K1_LDS = 163840
XS0, XSL = 0, 16384
WS0, WSL = 65536, 24576
SCR = 0

def gen_k1(a, name="k1_kernel"):
    common.PV = 250
    kernel_begin(a, name)
    Lend = a.newlabel("k1end")
    a(f"s_cmp_ge_u32 s2, 256")
    a(f"s_cbranch_scc1 {Lend}")
    a("s_load_dwordx16 s[36:51], s[0:1], 0")
    a("s_load_dwordx8 s[52:59], s[0:1], 64")
    a("v_lshrrev_b32 v1, 6, v0")
    a("s_nop 0")
    a("v_readfirstlane_b32 s28, v1")
    a("v_and_b32 v0, 63, v0")
    common.prof_begin(a)
    a("s_and_b32 s31, s2, 7")
    a("s_lshr_b32 s32, s2, 3")
    a("s_and_b32 s29, s31, 1")
    a("s_lshl_b32 s29, s29, 3")
    a("s_and_b32 s33, s32, 7")
    a("s_add_u32 s29, s29, s33")
    a("s_lshr_b32 s30, s31, 1")
    a("s_lshl_b32 s30, s30, 2")
    a("s_lshr_b32 s33, s32, 3")
    a("s_add_u32 s30, s30, s33")
    a("s_waitcnt lgkmcnt(0)")
    srd(a, 4, 48, 2048 * 1024 * 2)
    srd(a, 8, 50, 1024 * 3072 * 2)
    srd(a, 12, 58, WS_SIZE)
    srd(a, 16, 38, 2048 * 1024 * 2)
    srd(a, 20, 40, 2048 * 1024 * 2)
    srd(a, 24, 42, 1024 * 4 * 2)
    Lcomp = a.newlabel("k1comp")
    a("s_cmp_lt_u32 s28, 4")
    a(f"s_cbranch_scc1 {Lcomp}")

    Lpp = a.newlabel("k1pp"); Ltail = a.newlabel("k1tail")
    a("s_sub_u32 s28, s28, 4")
    a("s_cmp_ge_u32 s28, 2")
    a(f"s_cbranch_scc1 {Lpp}")
    a("v_lshrrev_b32 v4, 3, v0")
    a("v_and_b32 v5, 7, v0")
    a("v_lshrrev_b32 v6, 1, v4")
    a("v_xor_b32 v7, v5, v6")
    a("v_lshlrev_b32 v7, 4, v7")
    a("v_lshl_add_u32 v1, v4, 11, v7")
    a("v_xor_b32 v2, 64, v1")
    a("v_and_b32 v6, 1, v6")
    a("v_lshlrev_b32 v6, 2, v6")
    a("v_xor_b32 v7, v5, v6")
    a("v_lshlrev_b32 v7, 4, v7")
    a("v_mul_u32_u24 v3, 6144, v4")
    a("v_add_u32 v3, v3, v7")
    a("s_lshl_b32 s31, s29, 18")
    a("s_lshl_b32 s32, s28, 17")
    a("s_add_u32 s60, s31, s32")
    a("s_lshl_b32 s61, s30, 7")
    a("s_lshl_b32 s70, s28, 13")
    a("s_mul_i32 s71, s28, 12288")
    a(f"s_add_u32 s71, s71, {WS0}")
    a("s_mov_b32 s72, 0")
    a("s_mov_b32 s73, 0")
    a("s_mov_b32 s74, 0")
    Ld1 = a.newlabel("k1d1")
    a("s_cmp_eq_u32 s28, 1")
    a(f"s_cbranch_scc1 {Ld1}")
    for lw in range(2):
        if lw == 1: a.label(Ld1)
        def issue_stage():
            a("s_lshl_b32 s75, s72, 7")
            a("s_add_u32 s75, s75, s60")
            a(f"s_mul_i32 s76, s72, {64*6144}")
            a("s_add_u32 s76, s76, s61")
            a("s_add_u32 s77, s70, s73")
            a("s_add_u32 s78, s71, s74")
            for j in range(8):
                a(f"s_add_u32 m0, s77, {j*1024}")
                a(f"s_add_u32 s31, s75, {j*16384}")
                a(f"buffer_load_dwordx4 v{1 + (j & 1)}, s[4:7], s31 offen lds")
            for j in range(12):
                i = 12 * lw + j
                a(f"s_add_u32 m0, s78, {j*1024}")
                a(f"s_add_u32 s31, s76, {(i & 7)*49152 + (i >> 3)*2048}")
                a(f"buffer_load_dwordx4 v3, s[8:11], s31 offen lds")
            a("s_add_u32 s72, s72, 1")
            a(f"s_add_u32 s73, s73, {XSL}")
            a(f"s_add_u32 s74, s74, {WSL}")
            a(f"s_cmp_eq_u32 s73, {NSL*XSL}")
            a("s_cselect_b32 s73, 0, s73")
            a("s_cselect_b32 s74, 0, s74")
        issue_stage()
        issue_stage()
        a("s_waitcnt vmcnt(20)")
        common.stamp(a, 1)
        a("s_barrier")
        common.stamp(a, 2)
        issue_stage()
        a("s_mov_b32 s79, 0")
        Lll = a.newlabel("k1ll")
        a.label(Lll)
        issue_stage()
        a("s_waitcnt vmcnt(40)")
        a("s_barrier")
        a("s_add_u32 s79, s79, 1")
        a("s_cmp_lt_u32 s79, 13")
        a(f"s_cbranch_scc1 {Lll}")
        a(f"s_branch {Ltail}")
    a.label(Lpp)
    common.stamp(a, 1)
    for s in range(14): a("s_barrier")
    a.label(Ltail)
    def kreg(i): return 64 + 4 * i
    def vreg(j): return 92 + 4 * j
    a("s_lshr_b32 s80, s2, 4")
    a("s_lshl_b32 s80, s80, 2")
    a("s_add_u32 s80, s80, s28")
    a("s_and_b32 s81, s2, 15")
    a("s_lshl_b32 s82, s80, 5")
    a("s_lshl_b32 s83, s81, 6")
    a("v_lshrrev_b32 v11, 3, v0")
    a("v_and_b32 v12, 7, v0")
    a("s_lshl_b32 s84, s83, 3")
    a("v_lshlrev_b32 v13, 6, v12")
    for i in range(4):
        a(f"buffer_load_dwordx4 v[{200+4*i}:{203+4*i}], v13, s[24:27], s84 offen offset:{16*i}")
    a("s_lshl_b32 s84, s82, 11")
    a("s_lshl_b32 s85, s83, 1")
    a("s_add_u32 s84, s84, s85")
    a("v_lshlrev_b32 v13, 13, v11")
    a("v_lshl_add_u32 v13, v12, 4, v13")
    a("v_add_u32 v13, s84, v13")
    for i in range(3):
        a(f"v_subrev_u32 v{40+i}, {2048*(3-i)}, v13")
    for i in range(3):
        a(f"buffer_load_dwordx4 v[{kreg(i)}:{kreg(i)+3}], v{40+i}, s[16:19], 0 offen")
    for j in range(4):
        a(f"s_mov_b32 s84, {2048*j}")
        a(f"buffer_load_dwordx4 v[{kreg(3+j)}:{kreg(3+j)+3}], v13, s[16:19], s84 offen")
        a(f"buffer_load_dwordx4 v[{vreg(j)}:{vreg(j)+3}], v13, s[20:23], s84 offen")
    NPP = 15
    a(f"s_waitcnt vmcnt({20+NPP})")
    a("s_barrier")
    a(f"s_lshl_b32 s86, s28, 12")
    a("v_lshlrev_b32 v14, 9, v11")
    a("v_lshl_add_u32 v14, v12, 4, v14")
    a("v_add_u32 v14, s86, v14")
    a("v_lshrrev_b32 v11, 4, v0")
    a("v_and_b32 v12, 15, v0")
    a("v_lshrrev_b32 v15, 2, v12")
    a("v_and_b32 v50, 3, v12")
    a("v_lshlrev_b32 v48, 3, v11")
    a("v_add_u32 v48, 3, v48")
    a("v_sub_u32 v48, v48, v15")
    a("v_lshlrev_b32 v48, 7, v48")
    a("v_lshl_add_u32 v48, v50, 3, v48")
    a("v_add_u32 v48, s86, v48")
    a("v_add_u32 v49, s83, v12")
    a(f"v_mul_u32_u24 v49, {UR_STRIDE}, v49")
    a("s_lshl_b32 s85, s82, 1")
    a(f"s_sub_u32 s85, {2*2040}, s85")
    a("v_add_u32 v49, s85, v49")
    a("v_lshlrev_b32 v50, 4, v11")
    a("v_sub_u32 v49, v49, v50")
    a(f"s_waitcnt vmcnt({NPP})")
    a("s_barrier")
    def unpack(dst, src):
        for e in range(8):
            if e % 2 == 0: a(f"v_lshlrev_b32 v{dst+e}, 16, v{src+(e>>1)}")
            else: a(f"v_and_b32 v{dst+e}, 0xffff0000, v{src+(e>>1)}")
    def KU(i): return [108, 116, 124, 132][i % 4]
    a(f"s_waitcnt vmcnt({NPP-4})")
    for e in range(8):
        for i in range(4):
            src = 200 + 2 * e + (i >> 1)
            dst = 164 + 4 * e + i
            if i % 2 == 0: a(f"v_lshlrev_b32 v{dst}, 16, v{src}")
            else: a(f"v_and_b32 v{dst}, 0xffff0000, v{src}")
    a(f"s_waitcnt vmcnt({NPP-7})")
    for i in range(3): unpack(KU(i), kreg(i))
    for j in range(4):
        a(f"s_waitcnt vmcnt({6-2*j})")
        unpack(KU(j + 3), kreg(j + 3))
        unpack(24, vreg(j))
        for i in (3, 2, 1, 0):
            for e in range(8):
                if i == 3: a(f"v_mul_f32 v{16+e}, v{KU(j)+e}, v{164+4*e+3}")
                else: a(f"v_fmac_f32 v{16+e}, v{KU(j+3-i)+e}, v{164+4*e+i}")
        for e in range(8):
            a(f"v_mul_f32 v{16+e}, v{16+e}, v{24+e}")
        for q in range(4):
            a(f"v_cvt_pk_bf16_f32 v{vreg(j)+q}, v{16+2*q}, v{17+2*q}")
        a(f"ds_write_b128 v14, v[{vreg(j)}:{vreg(j)+3}] offset:{128*j}")
    a("s_waitcnt lgkmcnt(0)")
    R = 64
    for dh in range(4):
        for z in range(2):
            a(f"ds_read_b64_tr_b16 v[{R+4*dh+2*z}:{R+4*dh+2*z+1}], v48 offset:{(1 - z) * 512 + dh * 32}")
    for dh in range(4):
        a(f"s_mov_b32 s85, {WS_UR0 + dh * 16 * UR_STRIDE}")
        a(f"s_waitcnt lgkmcnt({6-2*dh})")
        a(f"buffer_store_dwordx4 v[{R+4*dh}:{R+4*dh+3}], v49, s[12:15], s85 offen{STP}")
    a("v_add_u32 v50, s83, v0")
    a(f"v_mul_u32_u24 v50, {UR_STRIDE}, v50")
    for i in range(4): a(f"v_mov_b32 v{52+i}, 0")
    a("s_cmp_eq_u32 s80, 0")
    a(f"s_mov_b32 s84, {WS_SIZE}")
    a(f"s_cselect_b32 s85, {WS_UR0 + 4096}, s84")
    a(f"buffer_store_dwordx4 v[52:55], v50, s[12:15], s85 offen{STP}")
    common.endpgm(a, 0)

    a.label(Lcomp)
    a("s_lshr_b32 s32, s2, 3")
    a("v_lshrrev_b32 v56, 1, v0")
    a("v_lshlrev_b32 v56, 11, v56")
    a("v_and_b32 v57, 1, v0")
    a("v_lshl_add_u32 v56, v57, 7, v56")
    a("s_and_b32 s31, s2, 1")
    a("s_lshl_b32 s31, s31, 10")
    a("s_lshl_b32 s33, s32, 5")
    a("s_add_u32 s31, s31, s33")
    a("s_lshl_b32 s82, s31, 11")
    a("v_lshrrev_b32 v58, 5, v0")
    a(f"v_mul_u32_u24 v58, {64*6144}, v58")
    a("v_bfe_u32 v57, v0, 4, 1")
    a("v_mul_u32_u24 v57, 6144, v57")
    a("v_add_u32 v58, v58, v57")
    a("v_bfe_u32 v57, v0, 2, 2")
    a("v_min_u32 v57, 2, v57")
    a("v_lshl_add_u32 v58, v57, 11, v58")
    a("v_and_b32 v57, 3, v0")
    a("v_lshl_add_u32 v58, v57, 7, v58")
    a("s_lshl_b32 s32, s32, 1")
    a("s_mul_i32 s83, s32, 6144")
    a("s_bfe_u32 s31, s2, 0x20001")
    a("s_lshl_b32 s31, s31, 9")
    a("s_add_u32 s83, s83, s31")
    a("s_bitcmp0_b32 s28, 0")
    a("s_cselect_b32 s88, s4, s8")
    a("s_cselect_b32 s89, s5, s9")
    a("s_cselect_b32 s90, s6, s10")
    a("s_mov_b32 s91, 0x00020000")
    a("s_cselect_b32 s82, s82, s83")
    a(f"s_mov_b32 s31, {2*64*6144}")
    a("s_cselect_b32 s85, 256, s31")
    a("s_cselect_b64 vcc, -1, 0")
    a("v_cndmask_b32 v56, v58, v56, vcc")
    a("s_lshr_b32 s31, s28, 1")
    a("s_add_u32 s31, s31, 1")
    a("s_mul_i32 s31, s31, s85")
    a("s_add_u32 s82, s82, s31")
    a("s_lshl_b32 s85, s85, 1")
    PFS = int(os.environ.get('K1PFS', '2'))
    a("s_lshr_b32 s84, s28, 1")
    a(f"s_mul_i32 s84, s84, {PFS}")
    a(f"s_sub_u32 s84, s84, {PFS}")
    Lnp0 = a.newlabel("k1np0")
    if 'nopf' not in VAR:
        a("s_cmp_ge_u32 s28, 2")
        a(f"s_cbranch_scc1 {Lnp0}")
        a("buffer_load_dword v59, v56, s[88:91], s82 offen sc1")
        a("s_add_u32 s82, s82, s85")
        a(f"s_add_u32 s84, s84, {2*PFS}")
        a.label(Lnp0)
    def pf_loop():
        if 'nopf' in VAR: return
        Lnp = a.newlabel("k1np")
        a("s_cmp_lg_u32 s72, s84")
        a(f"s_cbranch_scc1 {Lnp}")
        a(f"s_cmp_gt_u32 s72, {5*PFS}")
        a(f"s_cbranch_scc1 {Lnp}")
        a("buffer_load_dword v59, v56, s[88:91], s82 offen sc1")
        a("s_add_u32 s82, s82, s85")
        a(f"s_add_u32 s84, s84, {2*PFS}")
        a.label(Lnp)
    a("s_and_b32 s60, s28, 1")
    a("s_lshr_b32 s61, s28, 1")
    a("v_and_b32 v1, 31, v0")
    a("v_lshrrev_b32 v2, 5, v0")
    a("v_lshrrev_b32 v3, 1, v1")
    a("v_and_b32 v3, 7, v3")
    a("s_lshl_b32 s62, s60, 13")
    a("v_lshlrev_b32 v9, 7, v1")
    a("v_add_u32 v9, s62, v9")
    for ks in range(4):
        a(f"v_or_b32 v15, {2*ks}, v2")
        a("v_xor_b32 v15, v15, v3")
        a(f"v_lshl_add_u32 v{4+ks}, v15, 4, v9")
    a("v_and_b32 v1, 15, v0")
    a("v_lshrrev_b32 v3, 2, v1")
    a("v_and_b32 v1, 3, v1")
    a("v_lshrrev_b32 v15, 4, v0")
    a("v_and_b32 v15, 1, v15")
    a("v_lshlrev_b32 v15, 5, v15")
    a("v_lshl_add_u32 v15, v1, 3, v15")
    a("s_lshl_b32 s62, s61, 6")
    a("v_add_u32 v15, s62, v15")
    a("v_lshrrev_b32 v1, 1, v3")
    a("v_and_b32 v1, 1, v1")
    a("v_lshlrev_b32 v1, 6, v1")
    a("v_xor_b32 v15, v15, v1")
    a("v_lshl_add_u32 v3, v2, 3, v3")
    a("v_lshl_add_u32 v8, v3, 7, v15")
    a(f"v_add_u32 v8, {WS0}, v8")
    for i in range(4): a(f"v_mov_b32 v{10+i}, v{4+i}")
    a("v_mov_b32 v14, v8")
    for i in range(96): a(f"v_mov_b32 v{64+i}, 0")
    def Xf(b, mt): return 160 + 20 * b + 4 * mt
    def Wf(b, p): return 168 + 20 * b + 4 * p
    def acc(mt, p): return 64 + 16 * (3 * mt + p)
    def reads(ks, nxt):
        b = ks
        o = 16 if nxt else 10
        r = []
        for mt in range(2):
            r.append(f"ds_read_b128 v[{Xf(b,mt)}:{Xf(b,mt)+3}], v{o+ks} offset:{mt*4096}")
        for p in range(3):
            for z in range(2):
                r.append(f"ds_read_b64_tr_b16 v[{Wf(b,p)+2*z}:{Wf(b,p)+2*z+1}], v{o+4} offset:{p*8192+ks*2048+z*512}")
        return r
    def mfmas(b):
        r = []
        for mt in range(2):
            for p in range(3):
                A, B = (Wf(b, p), Xf(b, mt)) if p < 2 else (Xf(b, mt), Wf(b, p))
                r.append(f"v_mfma_f32_32x32x16_bf16 v[{acc(mt,p)}:{acc(mt,p)+15}], v[{A}:{A+3}], v[{B}:{B+3}], v[{acc(mt,p)}:{acc(mt,p)+15}]")
        return r
    def step(ks, rd, wait):
        a(f"s_waitcnt lgkmcnt({wait})")
        m = mfmas(ks)
        a(m[0]); [a(x) for x in rd[0:2]]
        a(m[1]); [a(x) for x in rd[2:4]]
        a(m[2]); [a(x) for x in rd[4:6]]
        a(m[3]); [a(x) for x in rd[6:8]]
        a(m[4]); a(m[5])
    a("s_mov_b32 s72, 0")
    a("s_mov_b32 s73, 0")
    a("s_mov_b32 s74, 0")
    if 'prio' in VAR: a("s_setprio 1")
    common.stamp(a, 1)
    a("s_barrier")
    common.stamp(a, 2)
    for x in reads(0, False): a(x)
    for x in reads(1, False): a(x)
    Ls = a.newlabel("k1stage")
    Llast = a.newlabel("k1last")
    a.label(Ls)
    pf_loop()
    a(f"s_add_u32 s73, s73, {XSL}")
    a(f"s_add_u32 s74, s74, {WSL}")
    a(f"s_cmp_eq_u32 s73, {NSL*XSL}")
    a("s_cselect_b32 s73, 0, s73")
    a("s_cselect_b32 s74, 0, s74")
    for i in range(4): a(f"v_add_u32 v{16+i}, s73, v{4+i}")
    a("v_add_u32 v20, s74, v8")
    step(0, reads(2, False), 8)
    step(1, reads(3, False), 8)
    step(2, [], 8)
    a("s_waitcnt lgkmcnt(0)")
    a("s_cmp_eq_u32 s72, 15")
    a(f"s_cbranch_scc1 {Llast}")
    a("s_barrier")
    for x in reads(0, True): a(x)
    step(3, reads(1, True), 15)
    for i in range(5): a(f"v_mov_b32 v{10+i}, v{16+i}")
    a("s_add_u32 s72, s72, 1")
    a(f"s_branch {Ls}")
    a.label(Llast)
    step(3, [], 0)
    a("s_nop 15")
    common.stamp(a, 3)
    a("s_lshl_b32 s62, s30, 1")
    a("s_add_u32 s62, s62, s61")
    a("s_lshl_b32 s63, s29, 2")
    a("s_lshl_b32 s64, s60, 1")
    a("s_add_u32 s63, s63, s64")
    a("s_lshl_b32 s64, s62, 6")
    a("s_add_u32 s64, s64, s63")
    a("s_lshl_b32 s64, s64, 11")
    a("v_lshlrev_b32 v1, 4, v0")
    a(f"s_mov_b32 s66, {f32bits(QSCALE)}")
    pk = 160
    for mt in range(2):
        for p in range(3):
            base = acc(mt, p)
            d = pk + 8 * (3 * mt + p)
            if p == 0:
                for i in range(16): a(f"v_mul_f32 v{base+i}, s66, v{base+i}")
            for i in range(8):
                a(f"v_cvt_pk_bf16_f32 v{d+i}, v{base+2*i}, v{base+2*i+1}")
            a(f"s_add_u32 s65, s64, {[WS_Q, WS_K, WS_V][p] + mt*2048}")
            a(f"buffer_store_dwordx4 v[{d}:{d+3}], v1, s[12:15], s65 offen{STP}")
            a(f"buffer_store_dwordx4 v[{d+4}:{d+7}], v1, s[12:15], s65 offen offset:1024{STP}")
    for mt in range(2):
        d = pk + 8 * (3 * mt + 1)
        for i in range(8):
            c = "0" if i == 0 else f"v{16+mt}"
            a(f"v_dot2_f32_bf16 v{16+mt}, v{d+i}, v{d+i}, {c}")
    a("s_nop 3")
    a("v_mov_b32 v18, v16")
    a("v_mov_b32 v19, v17")
    a("s_nop 1")
    a("v_permlane32_swap_b32 v18, v16")
    a("v_permlane32_swap_b32 v19, v17")
    a("s_nop 1")
    a("v_add_f32 v16, v16, v18")
    a("v_add_f32 v17, v17, v19")
    a("v_max_f32 v16, v16, v17")
    for dpp in ("quad_perm:[1,0,3,2]", "quad_perm:[2,3,0,1]", "row_half_mirror", "row_mirror"):
        a("s_nop 1")
        a(f"v_max_f32_dpp v16, v16, v16 {dpp} row_mask:0xf bank_mask:0xf")
    a("s_nop 1")
    a("v_mov_b32 v17, v16")
    a("s_nop 1")
    a("v_permlane16_swap_b32 v17, v16")
    a("s_nop 1")
    a("v_max_f32 v16, v16, v17")
    a("s_lshl_b32 s64, s62, 5")
    a("s_lshl_b32 s65, s29, 1")
    a("s_add_u32 s64, s64, s65")
    a("s_add_u32 s64, s64, s60")
    a("s_lshl_b32 s64, s64, 2")
    a(f"s_add_u32 s64, s64, {WS_KMAX}")
    a("v_mov_b32 v1, 0")
    a("s_mov_b64 exec, 1")
    a("buffer_store_dword v16, v1, s[12:15], s64 offen")
    common.endpgm(a, 0)
    a.label(Lend)
    a("s_endpgm")
    return kernel_desc(name, 240)
```

```python
import struct, os
from common import *
import common
def f32bits(x): return struct.unpack("<I", struct.pack("<f", x))[0]
STP = os.environ.get('STP', '')
VAR = os.environ.get('K2VAR', '')

CONV0 = 65536
CP_STRIDE = 4160
H_OFF = 4 * CP_STRIDE
CH_BYTES = H_OFF + 4608
FLAG_OFF = CONV0 + 4 * CH_BYTES
K2_LDS = FLAG_OFF + 64
K2_BLOCK = 768

Q = 8; CN = 16; O = 32; L = 48; ONES = 52
S = [64, 80]; P = 96; KF = [112, 120]; VF = [128, 136]

def gen_k2(a, name="k2_kernel"):
    common.PV = 166
    kernel_begin(a, name)
    Lend = a.newlabel("k2end")
    a("s_cmp_ge_u32 s2, 256")
    a(f"s_cbranch_scc1 {Lend}")
    a("s_load_dwordx16 s[36:51], s[0:1], 0")
    a("s_load_dwordx8 s[52:59], s[0:1], 64")
    a("v_lshrrev_b32 v1, 6, v0")
    a("s_nop 0")
    a("v_readfirstlane_b32 s28, v1")
    a("v_and_b32 v0, 63, v0")
    common.prof_begin(a)
    a("s_and_b32 s31, s2, 7")
    a("s_lshr_b32 s32, s2, 3")
    a("s_lshl_b32 s29, s31, 2")
    a("s_lshr_b32 s33, s32, 3")
    a("s_add_u32 s29, s29, s33")
    a("s_and_b32 s30, s32, 7")
    a("v_lshlrev_b32 v1, 4, v0")
    a("s_waitcnt lgkmcnt(0)")
    srd(a, 12, 58, WS_SIZE)
    srd(a, 16, 44, 1024 * 2048 * 2)
    srd(a, 20, 52, 1024 * 1024 * 2)
    srd(a, 24, 36, 2048 * 1024 * 2)
    Lmain = a.newlabel("k2main")
    a("s_cmp_lt_u32 s28, 8")
    a(f"s_cbranch_scc1 {Lmain}")

    a("s_sub_u32 s28, s28, 8")
    a(f"s_mul_i32 s63, s28, {CH_BYTES}")
    a(f"s_add_u32 s63, s63, {CONV0}")
    a("s_lshl_b32 s62, s2, 2")
    a("s_add_u32 s62, s62, s28")
    for i in range(4): a(f"v_mov_b32 v{8+i}, 0")
    a("v_and_b32 v2, 7, v0")
    a("v_lshrrev_b32 v3, 1, v2")
    a(f"v_mul_u32_u24 v3, {CP_STRIDE}, v3")
    a("v_and_b32 v2, 1, v2")
    a("v_lshl_add_u32 v2, v2, 4, v3")
    a("v_add_u32 v2, 4096, v2")
    a(f"v_add_u32 v3, {H_OFF}, v1")
    a("v_cmp_gt_u32 vcc, 32, v0")
    a("s_nop 1")
    a("v_cndmask_b32 v2, v2, v3, vcc")
    a("v_add_u32 v2, s63, v2")
    a("ds_write_b128 v2, v[8:11]")
    a(f"v_mov_b32 v2, {FLAG_OFF}")
    a("ds_write_b32 v2, v8")
    a("s_lshr_b32 s31, s62, 1")
    a("s_lshl_b32 s31, s31, 2")
    a("s_add_u32 s4, s46, s31")
    a("s_addc_u32 s5, s47, 0")
    a("s_load_dword s70, s[4:5], 0")
    a("s_lshl_b32 s6, s29, 17")
    a("s_lshl_b32 s31, s28, 11")
    a("s_add_u32 s6, s6, s31")
    a("s_mov_b32 s9, s31")
    a(f"s_mul_i32 s60, s62, {UR_STRIDE}")
    a(f"s_add_u32 s60, s60, {WS_UR0}")
    a("s_lshl_b32 s61, s62, 12")
    a("s_waitcnt lgkmcnt(0)")
    vm = VM(a)
    def issue_chunk(c):
        for kv, base in ((0, WS_K), (1, WS_V)):
            for i in range(2):
                a(f"s_add_u32 m0, s9, {(c % 4)*16384 + kv*8192 + i*1024}")
                a(f"s_add_u32 s31, s6, {base + c*8192 + i*1024}")
                vm.op("buffer_load_dwordx4 v1, s[12:15], s31 offen lds", ("c", c))
    conv = []
    for pc in range(4):
        conv.append((H_OFF + 512 + pc*1024, 61, pc*1024, 16))
    for cc in range(4):
        for pc in range(4):
            conv.append((cc*CP_STRIDE + pc*1024, 60, cc*2 + pc*1024, 12))
    def issue_conv(lo, hi):
        for (dst, sreg, off, srdr) in conv[lo:hi]:
            a(f"s_add_u32 m0, s63, {dst}")
            a(f"s_add_u32 s31, s{sreg}, {off}")
            vm.op(f"buffer_load_dwordx4 v1, s[{srdr}:{srdr+3}], s31 offen lds", "conv")
    issue_chunk(0); issue_chunk(1)
    a("v_and_b32 v2, 15, v0")
    a("v_lshrrev_b32 v3, 4, v0")
    a("v_sub_u32 v4, 3, v2")
    a("v_and_b32 v4, 3, v4")
    a(f"v_mul_u32_u24 v4, {CP_STRIDE}, v4")
    a("v_lshrrev_b32 v5, 2, v2")
    a("v_lshlrev_b32 v6, 1, v3")
    a("v_sub_u32 v5, v6, v5")
    a("v_add_u32 v5, 3, v5")
    a("v_lshl_add_u32 v4, v5, 3, v4")
    a("v_add_u32 v4, s63, v4")
    a("v_lshlrev_b32 v5, 5, v2")
    a("v_lshl_add_u32 v5, v3, 4, v5")
    a(f"s_add_u32 s31, s63, {H_OFF + 32}")
    a("v_add_u32 v5, s31, v5")
    a("v_lshlrev_b32 v6, 5, v2")
    a("v_lshl_add_u32 v6, v3, 3, v6")
    a("s_add_u32 s31, s63, 504")
    a("v_sub_u32 v7, s31, v6")
    a("s_lshl_b32 s64, s62, 12")
    a(f"s_add_u32 s64, s64, {WS_YT}")
    a("s_bitcmp1_b32 s62, 0")
    a("s_cselect_b32 s31, 0, 16")
    a("s_lshl_b32 s70, s70, s31")
    a("s_and_b32 s70, s70, 0xffff0000")
    ACC = 16
    def BFr(b, x): return 48 + 32 * b + 4 * x
    def AFr(i): return 112 + 4 * (i % 4)
    cs = []; nl = [0]; tag = {}
    def lop(txt, tg):
        cs.append(txt); nl[0] += 1; tag[tg] = nl[0]
    def lwait(tg):
        cs.append(f"s_waitcnt lgkmcnt({min(15, nl[0] - tag[tg])})")
    def rdA(g):
        m0, x = divmod(g, 8)
        o = 64 * (63 - (m0 + 8 * x))
        lop(f"ds_read_b64 v[{AFr(g)}:{AFr(g)+1}], v4 offset:{o}", ("A", g))
        lop(f"ds_read_b64 v[{AFr(g)+2}:{AFr(g)+3}], v4 offset:{o+8}", ("A", g))
    def rdB(m0, x):
        lop(f"ds_read_b128 v[{BFr(m0&1,x)}:{BFr(m0&1,x)+3}], v5 offset:{512*x+64*(7-m0)}", ("B", m0, x))
    for x in range(8): rdB(0, x)
    rdA(0); rdA(1)
    for m0 in range(8):
        for x in range(8):
            g = 8 * m0 + x
            if g + 2 < 64: rdA(g + 2)
            if m0 < 7: rdB(m0 + 1, x)
            if x == 0: lwait(("B", m0, 7)) if tag[("B", m0, 7)] > tag[("A", g)] else lwait(("A", g))
            else: lwait(("A", g))
            for tt in range(8 - x):
                T = x + tt
                c = "0" if (m0 == 0 and x == 0) else f"v[{ACC+4*T}:{ACC+4*T+3}]"
                cs.append(f"v_mfma_f32_16x16x32_bf16 v[{ACC+4*T}:{ACC+4*T+3}], v[{AFr(g)}:{AFr(g)+3}], v[{BFr(m0&1,tt)}:{BFr(m0&1,tt)+3}], {c}")
    C0, C1 = 4, 15
    npieces = C1 - C0
    nm = sum("mfma" in x for x in cs)
    pieces = [[] for _ in range(npieces)]
    k = 0
    for x in cs:
        pieces[min(npieces - 1, k * npieces // nm)].append(x)
        if "mfma" in x: k += 1
    vm.wait(("c", 0))
    a("s_barrier")
    issue_chunk(2)
    for c in range(15):
        if c < 3: issue_conv(7 * c, 7 * c + 7)
        if c == C0: vm.wait("conv")
        if C0 <= c < C1:
            for x in pieces[c - C0]: a(x)
        if c == 12 and 'nomall' not in VAR:
            a("v_lshlrev_b32 v2, 7, v0")
            a("s_lshl_b32 s31, s2, 15")
            a("s_lshl_b32 s32, s28, 13")
            a("s_add_u32 s31, s31, s32")
            vm.op("buffer_load_dword v3, v2, s[24:27], s31 offen sc1")
            a(f"s_sub_u32 s31, s31, {4*MB}")
            vm.op("buffer_load_dword v3, v2, s[20:23], s31 offen sc1")
        vm.wait(("c", c + 1))
        a("s_barrier")
        if c + 3 <= 15: issue_chunk(c + 3)
    for T in range(8):
        a(f"ds_read_b64 v[{48+2*T}:{49+2*T}], v7 offset:{512*(7-T)}")
    a("s_waitcnt lgkmcnt(0)")
    a("s_barrier")
    for T in range(8):
        r0, r1 = 48 + 2 * T, 49 + 2 * T
        a(f"v_and_b32 v8, 0xffff0000, v{r1}")
        a(f"v_lshlrev_b32 v9, 16, v{r1}")
        a(f"v_and_b32 v10, 0xffff0000, v{r0}")
        a(f"v_lshlrev_b32 v11, 16, v{r0}")
        for e in range(4):
            a(f"v_fma_f32 v{ACC+4*T+e}, v{8+e}, s70, v{ACC+4*T+e}")
        a(f"v_cvt_pk_bf16_f32 v{64+2*T}, v{ACC+4*T}, v{ACC+4*T+1}")
        a(f"v_cvt_pk_bf16_f32 v{65+2*T}, v{ACC+4*T+2}, v{ACC+4*T+3}")
        a(f"buffer_store_dwordx2 v[{64+2*T}:{65+2*T}], v6, s[12:15], s64 offen offset:{512*T}{STP}")
    a("s_barrier")
    a(f"v_mov_b32 v6, {FLAG_OFF}")
    a("ds_read_b32 v7, v6")
    a("s_waitcnt lgkmcnt(0)")
    a("v_readfirstlane_b32 s31, v7")
    a("s_nop 3")
    a("s_cmp_eq_u32 s31, 0")
    Lhd = a.newlabel("k2hd")
    a(f"s_cbranch_scc1 {Lhd}")
    a("s_waitcnt vmcnt(0)")
    a("s_barrier")
    a("s_mov_b32 s10, 0")
    def issue_dyn():
        a("s_and_b32 s32, s10, 3")
        a("s_lshl_b32 s32, s32, 14")
        a("s_add_u32 s32, s32, s9")
        a("s_lshl_b32 s33, s10, 13")
        a("s_add_u32 s33, s33, s6")
        for kv, base in ((0, WS_K), (1, WS_V)):
            for i in range(2):
                a(f"s_add_u32 m0, s32, {kv*8192 + i*1024}")
                a(f"s_add_u32 s31, s33, {base + i*1024}")
                a("buffer_load_dwordx4 v1, s[12:15], s31 offen lds")
        a("s_add_u32 s10, s10, 1")
    issue_dyn()
    a("s_waitcnt vmcnt(0)")
    a("s_barrier")
    L2p = a.newlabel("k2p2")
    a.label(L2p)
    issue_dyn()
    a("s_waitcnt vmcnt(0)")
    a("s_barrier")
    a("s_cmp_lt_u32 s10, 16")
    a(f"s_cbranch_scc1 {L2p}")
    a("s_barrier")
    a.label(Lhd)
    common.endpgm(a, 1)

    a.label(Lmain)
    a("s_lshl_b32 s31, s29, 7")
    a(f"s_add_u32 s31, s31, {WS_KMAX}")
    a("s_add_u32 s4, s58, s31")
    a("s_addc_u32 s5, s59, 0")
    a("s_load_dwordx16 s[60:75], s[4:5], 0")
    a("s_load_dwordx16 s[76:91], s[4:5], 64")
    a("s_lshl_b32 s31, s29, 6")
    a("s_lshl_b32 s32, s30, 3")
    a("s_add_u32 s31, s31, s32")
    a("s_add_u32 s31, s31, s28")
    a("s_lshl_b32 s31, s31, 11")
    if WS_Q: a(f"s_add_u32 s31, s31, {WS_Q}")
    a(f"buffer_load_dwordx4 v[{Q}:{Q+3}], v1, s[12:15], s31 offen")
    a(f"buffer_load_dwordx4 v[{Q+4}:{Q+7}], v1, s[12:15], s31 offen offset:1024")
    a("v_lshrrev_b32 v2, 4, v0")
    a("v_xor_b32 v2, v2, v0")
    a("v_and_b32 v2, 1, v2")
    a("v_cmp_eq_u32 vcc, 0, v2")
    a("v_mov_b32 v3, 0x3f803f80")
    a("s_nop 1")
    for i in range(4): a(f"v_cndmask_b32 v{ONES+i}, 0, v3, vcc")
    a("s_waitcnt lgkmcnt(0)")
    for i in range(1, 32): a(f"s_max_u32 s60, s60, s{60+i}")
    a("s_waitcnt vmcnt(0)")
    for i in range(8):
        c = "0" if i == 0 else "v4"
        a(f"v_dot2_f32_bf16 v4, v{Q+i}, v{Q+i}, {c}")
    a("s_nop 3")
    a("v_mov_b32 v5, v4")
    a("s_nop 1")
    a("v_permlane32_swap_b32 v5, v4")
    a("s_nop 1")
    a("v_add_f32 v4, v4, v5")
    a("v_mul_f32 v4, s60, v4")
    a("v_sqrt_f32 v4, v4")
    a("s_nop 0")
    a("v_sub_f32 v4, 0, v4")
    a("s_mov_b32 s7, 0")
    Lrestart = a.newlabel("k2restart")
    a.label(Lrestart)
    for i in range(16): a(f"v_mov_b32 v{CN+i}, v4")
    for i in range(16): a(f"v_mov_b32 v{O+i}, 0")
    for i in range(4): a(f"v_mov_b32 v{L+i}, 0")
    for i in range(4, 8): a(f"v_mov_b32 v{P+i}, 0")
    for i in range(4, 8): a(f"v_mov_b32 v{VF[1]+i}, 0")
    a("s_barrier")
    common.stamp(a, 1)
    a("v_mov_b32 v2, v1")
    a("v_add_u32 v3, 16384, v1")
    def kread(buf, areg, tile):
        return [f"ds_read_b128 v[{KF[buf]}:{KF[buf]+3}], v{areg} offset:{tile*2048}",
                f"ds_read_b128 v[{KF[buf]+4}:{KF[buf]+7}], v{areg} offset:{tile*2048+1024}"]
    def vread(buf, areg, tile):
        return [f"ds_read_b128 v[{VF[buf]}:{VF[buf]+3}], v{areg} offset:{8192+tile*2048}",
                f"ds_read_b128 v[{VF[buf]+4}:{VF[buf]+7}], v{areg} offset:{8192+tile*2048+1024}"]
    def qk(sb, kb, half):
        c = f"v[{CN}:{CN+15}]" if half == 0 else f"v[{S[sb]}:{S[sb]+15}]"
        return f"v_mfma_f32_32x32x16_bf16 v[{S[sb]}:{S[sb]+15}], v[{KF[kb]+4*half}:{KF[kb]+4*half+3}], v[{Q+4*half}:{Q+4*half+3}], {c}"
    def pv(vb, half):
        return f"v_mfma_f32_32x32x16_bf16 v[{O}:{O+15}], v[{VF[vb]+4*half}:{VF[vb]+4*half+3}], v[{P+4*half}:{P+4*half+3}], v[{O}:{O+15}]"
    def lsum(half):
        return f"v_mfma_f32_16x16x32_bf16 v[{L}:{L+3}], v[{ONES}:{ONES+3}], v[{P+4*half}:{P+4*half+3}], v[{L}:{L+3}]"
    for x in kread(0, 2, 0): a(x)
    for x in kread(1, 2, 1): a(x)
    for x in vread(0, 2, 0): a(x)
    a("s_waitcnt lgkmcnt(4)")
    a(qk(0, 0, 0)); a(qk(0, 0, 1))
    a("s_mov_b32 s10, 0")
    a("s_nop 11")
    Lloop = a.newlabel("k2loop")
    a.label(Lloop)
    for tl in range(4):
        sb = tl & 1; nb_ = sb ^ 1
        def ex(i): return f"v_exp_f32 v{S[sb]+i}, v{S[sb]+i}"
        def cv(i): return f"v_cvt_pk_bf16_f32 v{P+i}, v{S[sb]+2*i}, v{S[sb]+2*i+1}"
        a("s_waitcnt lgkmcnt(2)")
        a(qk(nb_, nb_, 0))
        for i in range(0, 4): a(ex(i))
        a(qk(nb_, nb_, 1))
        for i in range(4, 6): a(ex(i))
        if tl == 2: a("s_barrier")
        if tl < 2: kr = kread(sb, 2, tl + 2)
        else: kr = kread(sb, 3, tl - 2)
        for x in kr: a(x)
        for i in range(6, 8): a(ex(i))
        a(pv(nb_, 1))
        for i in range(0, 4): a(cv(i))
        a(ex(8))
        a(lsum(1))
        for i in range(9, 12): a(ex(i))
        a("s_waitcnt lgkmcnt(2)")
        a(pv(sb, 0))
        if tl < 3: vr_ = vread(nb_, 2, tl + 1)
        else: vr_ = vread(nb_, 3, 0)
        for x in vr_: a(x)
        for i in range(12, 16): a(ex(i))
        a(lsum(0))
        if tl == 3:
            a("v_mov_b32 v2, v3")
            a("v_add_u32 v3, 16384, v3")
            a("v_and_b32 v3, 0xffff, v3")
            a("s_add_u32 s10, s10, 1")
            a("s_cmp_lt_u32 s10, 16")
        for i in range(4, 8): a(cv(i))
    a(f"s_cbranch_scc1 {Lloop}")
    a("s_nop 1")
    a(pv(1, 1))
    a(lsum(1))
    a("s_waitcnt lgkmcnt(0)")
    a("s_nop 15")
    common.stamp(a, 2)
    a("v_and_b32 v5, 16, v0")
    a("v_cmp_ne_u32 vcc, 0, v5")
    a("s_nop 1")
    a(f"v_cndmask_b32 v5, v{L}, v{L+1}, vcc")
    Lok = a.newlabel("k2ok")
    a("s_cmp_lg_u32 s7, 0")
    a(f"s_cbranch_scc1 {Lok}")
    a(f"v_mov_b32 v6, {f32bits(2.0**-60)}")
    a("v_cmp_nge_f32 vcc, v5, v6")
    Lnf = a.newlabel("k2nf")
    a("s_cmp_eq_u64 vcc, 0")
    a(f"s_cbranch_scc1 {Lnf}")
    a(f"v_mov_b32 v6, {FLAG_OFF}")
    a("v_mov_b32 v7, 1")
    a("ds_write_b32 v6, v7")
    a.label(Lnf)
    a("s_waitcnt lgkmcnt(0)")
    a("s_barrier")
    a(f"v_mov_b32 v6, {FLAG_OFF}")
    a("ds_read_b32 v7, v6")
    a("s_waitcnt lgkmcnt(0)")
    a("v_readfirstlane_b32 s31, v7")
    a("s_nop 3")
    a("s_cmp_eq_u32 s31, 0")
    a(f"s_cbranch_scc1 {Lok}")
    a("s_mov_b32 s7, 1")
    a("v_mov_b32 v4, 0xff800000")
    a("s_lshl_b32 s31, s29, 17")
    a(f"s_add_u32 s31, s31, {WS_K}")
    a("s_mov_b32 s10, 0")
    Lfb = a.newlabel("k2fb")
    a.label(Lfb)
    a(f"buffer_load_dwordx4 v[{KF[0]}:{KF[0]+3}], v1, s[12:15], s31 offen")
    a(f"buffer_load_dwordx4 v[{KF[0]+4}:{KF[0]+7}], v1, s[12:15], s31 offen offset:1024")
    a("s_waitcnt vmcnt(0)")
    a(f"v_mfma_f32_32x32x16_bf16 v[{S[0]}:{S[0]+15}], v[{KF[0]}:{KF[0]+3}], v[{Q}:{Q+3}], 0")
    a(f"v_mfma_f32_32x32x16_bf16 v[{S[0]}:{S[0]+15}], v[{KF[0]+4}:{KF[0]+7}], v[{Q+4}:{Q+7}], v[{S[0]}:{S[0]+15}]")
    a("s_nop 15")
    for i in range(8): a(f"v_max3_f32 v4, v4, v{S[0]+2*i}, v{S[0]+2*i+1}")
    a("s_add_u32 s31, s31, 2048")
    a("s_add_u32 s10, s10, 1")
    a("s_cmp_lt_u32 s10, 64")
    a(f"s_cbranch_scc1 {Lfb}")
    a("v_mov_b32 v5, v4")
    a("s_nop 1")
    a("v_permlane32_swap_b32 v5, v4")
    a("s_nop 1")
    a("v_max_f32 v4, v4, v5")
    a("v_sub_f32 v4, 0, v4")
    a("s_barrier")
    a(f"s_branch {Lrestart}")
    a.label(Lok)
    a("v_rcp_f32 v5, v5")
    a("s_nop 0")
    for i in range(16): a(f"v_mul_f32 v{O+i}, v{O+i}, v5")
    for i in range(8): a(f"v_cvt_pk_bf16_f32 v{P+i}, v{O+2*i}, v{O+2*i+1}")
    a("s_lshl_b32 s31, s30, 3")
    a("s_add_u32 s31, s31, s28")
    a("s_lshl_b32 s31, s31, 5")
    a("s_add_u32 s31, s31, s29")
    a("s_lshl_b32 s31, s31, 11")
    a(f"s_add_u32 s31, s31, {WS_O}")
    a(f"buffer_store_dwordx4 v[{P}:{P+3}], v1, s[12:15], s31 offen{STP}")
    a(f"buffer_store_dwordx4 v[{P+4}:{P+7}], v1, s[12:15], s31 offen offset:1024{STP}")

    common.endpgm(a, 1)
    a.label(Lend)
    a("s_endpgm")
    return kernel_desc(name, 160)
```

```python
import struct, os
from common import *
import common

QSCALE = 1.4426950408889634 / (32 ** 0.5)
def f32bits(x): return struct.unpack("<I", struct.pack("<f", x))[0]
STP = os.environ.get('STP', '')
VAR = os.environ.get('K1VAR', '')

NSL = 4
K1_LDS = 163840
XS0, XSL = 0, 16384
WS0, WSL = 65536, 24576
SCR = 0

def gen_k1(a, name="k1_kernel"):
    common.PV = 250
    kernel_begin(a, name)
    Lend = a.newlabel("k1end")
    a(f"s_cmp_ge_u32 s2, 256")
    a(f"s_cbranch_scc1 {Lend}")
    a("s_load_dwordx16 s[36:51], s[0:1], 0")
    a("s_load_dwordx8 s[52:59], s[0:1], 64")
    a("v_lshrrev_b32 v1, 6, v0")
    a("s_nop 0")
    a("v_readfirstlane_b32 s28, v1")
    a("v_and_b32 v0, 63, v0")
    common.prof_begin(a)
    a("s_and_b32 s31, s2, 7")
    a("s_lshr_b32 s32, s2, 3")
    a("s_and_b32 s29, s31, 1")
    a("s_lshl_b32 s29, s29, 3")
    a("s_and_b32 s33, s32, 7")
    a("s_add_u32 s29, s29, s33")
    a("s_lshr_b32 s30, s31, 1")
    a("s_lshl_b32 s30, s30, 2")
    a("s_lshr_b32 s33, s32, 3")
    a("s_add_u32 s30, s30, s33")
    a("s_waitcnt lgkmcnt(0)")
    srd(a, 4, 48, 2048 * 1024 * 2)
    srd(a, 8, 50, 1024 * 3072 * 2)
    srd(a, 12, 58, WS_SIZE)
    srd(a, 16, 38, 2048 * 1024 * 2)
    srd(a, 20, 40, 2048 * 1024 * 2)
    srd(a, 24, 42, 1024 * 4 * 2)
    Lcomp = a.newlabel("k1comp")
    a("s_cmp_lt_u32 s28, 4")
    a(f"s_cbranch_scc1 {Lcomp}")

    Lpp = a.newlabel("k1pp"); Ltail = a.newlabel("k1tail")
    a("s_sub_u32 s28, s28, 4")
    a("s_cmp_ge_u32 s28, 2")
    a(f"s_cbranch_scc1 {Lpp}")
    a("v_lshrrev_b32 v4, 3, v0")
    a("v_and_b32 v5, 7, v0")
    a("v_lshrrev_b32 v6, 1, v4")
    a("v_xor_b32 v7, v5, v6")
    a("v_lshlrev_b32 v7, 4, v7")
    a("v_lshl_add_u32 v1, v4, 11, v7")
    a("v_xor_b32 v2, 64, v1")
    a("v_and_b32 v6, 1, v6")
    a("v_lshlrev_b32 v6, 2, v6")
    a("v_xor_b32 v7, v5, v6")
    a("v_lshlrev_b32 v7, 4, v7")
    a("v_mul_u32_u24 v3, 6144, v4")
    a("v_add_u32 v3, v3, v7")
    a("s_lshl_b32 s31, s29, 18")
    a("s_lshl_b32 s32, s28, 17")
    a("s_add_u32 s60, s31, s32")
    a("s_lshl_b32 s61, s30, 7")
    a("s_lshl_b32 s70, s28, 13")
    a("s_mul_i32 s71, s28, 12288")
    a(f"s_add_u32 s71, s71, {WS0}")
    a("s_mov_b32 s72, 0")
    a("s_mov_b32 s73, 0")
    a("s_mov_b32 s74, 0")
    Ld1 = a.newlabel("k1d1")
    a("s_cmp_eq_u32 s28, 1")
    a(f"s_cbranch_scc1 {Ld1}")
    for lw in range(2):
        if lw == 1: a.label(Ld1)
        def issue_stage():
            a("s_lshl_b32 s75, s72, 7")
            a("s_add_u32 s75, s75, s60")
            a(f"s_mul_i32 s76, s72, {64*6144}")
            a("s_add_u32 s76, s76, s61")
            a("s_add_u32 s77, s70, s73")
            a("s_add_u32 s78, s71, s74")
            for j in range(8):
                a(f"s_add_u32 m0, s77, {j*1024}")
                a(f"s_add_u32 s31, s75, {j*16384}")
                a(f"buffer_load_dwordx4 v{1 + (j & 1)}, s[4:7], s31 offen lds")
            for j in range(12):
                i = 12 * lw + j
                a(f"s_add_u32 m0, s78, {j*1024}")
                a(f"s_add_u32 s31, s76, {(i & 7)*49152 + (i >> 3)*2048}")
                a(f"buffer_load_dwordx4 v3, s[8:11], s31 offen lds")
            a("s_add_u32 s72, s72, 1")
            a(f"s_add_u32 s73, s73, {XSL}")
            a(f"s_add_u32 s74, s74, {WSL}")
            a(f"s_cmp_eq_u32 s73, {NSL*XSL}")
            a("s_cselect_b32 s73, 0, s73")
            a("s_cselect_b32 s74, 0, s74")
        issue_stage()
        issue_stage()
        a("s_waitcnt vmcnt(20)")
        common.stamp(a, 1)
        a("s_barrier")
        common.stamp(a, 2)
        issue_stage()
        a("s_mov_b32 s79, 0")
        Lll = a.newlabel("k1ll")
        a.label(Lll)
        issue_stage()
        a("s_waitcnt vmcnt(40)")
        a("s_barrier")
        a("s_add_u32 s79, s79, 1")
        a("s_cmp_lt_u32 s79, 13")
        a(f"s_cbranch_scc1 {Lll}")
        a(f"s_branch {Ltail}")
    a.label(Lpp)
    a("s_lshl_b32 s31, s2, 8")
    a(f"s_add_u32 s31, s31, {WS_FLAG}")
    a("s_cmp_lt_u32 s2, 16")
    a(f"s_mov_b32 s32, {WS_SIZE}")
    a("s_cselect_b32 s31, s31, s32")
    a("v_lshlrev_b32 v1, 2, v0")
    a("v_mov_b32 v2, 0")
    a("buffer_store_dword v2, v1, s[12:15], s31 offen")
    common.stamp(a, 1)
    for s in range(14): a("s_barrier")
    a.label(Ltail)
    def kreg(i): return 64 + 4 * i
    def vreg(j): return 92 + 4 * j
    a("s_lshr_b32 s80, s2, 4")
    a("s_lshl_b32 s80, s80, 2")
    a("s_add_u32 s80, s80, s28")
    a("s_and_b32 s81, s2, 15")
    a("s_lshl_b32 s82, s80, 5")
    a("s_lshl_b32 s83, s81, 6")
    a("v_lshrrev_b32 v11, 3, v0")
    a("v_and_b32 v12, 7, v0")
    a("s_lshl_b32 s84, s83, 3")
    a("v_lshlrev_b32 v13, 6, v12")
    for i in range(4):
        a(f"buffer_load_dwordx4 v[{200+4*i}:{203+4*i}], v13, s[24:27], s84 offen offset:{16*i}")
    a("s_lshl_b32 s84, s82, 11")
    a("s_lshl_b32 s85, s83, 1")
    a("s_add_u32 s84, s84, s85")
    a("v_lshlrev_b32 v13, 13, v11")
    a("v_lshl_add_u32 v13, v12, 4, v13")
    a("v_add_u32 v13, s84, v13")
    for i in range(3):
        a(f"v_subrev_u32 v{40+i}, {2048*(3-i)}, v13")
    for i in range(3):
        a(f"buffer_load_dwordx4 v[{kreg(i)}:{kreg(i)+3}], v{40+i}, s[16:19], 0 offen")
    for j in range(4):
        a(f"s_mov_b32 s84, {2048*j}")
        a(f"buffer_load_dwordx4 v[{kreg(3+j)}:{kreg(3+j)+3}], v13, s[16:19], s84 offen")
        a(f"buffer_load_dwordx4 v[{vreg(j)}:{vreg(j)+3}], v13, s[20:23], s84 offen")
    NPP = 15
    a(f"s_waitcnt vmcnt({20+NPP})")
    a("s_barrier")
    a(f"s_lshl_b32 s86, s28, 12")
    a("v_lshlrev_b32 v14, 9, v11")
    a("v_lshl_add_u32 v14, v12, 4, v14")
    a("v_add_u32 v14, s86, v14")
    a("v_lshrrev_b32 v11, 4, v0")
    a("v_and_b32 v12, 15, v0")
    a("v_lshrrev_b32 v15, 2, v12")
    a("v_and_b32 v50, 3, v12")
    a("v_lshlrev_b32 v48, 3, v11")
    a("v_add_u32 v48, 3, v48")
    a("v_sub_u32 v48, v48, v15")
    a("v_lshlrev_b32 v48, 7, v48")
    a("v_lshl_add_u32 v48, v50, 3, v48")
    a("v_add_u32 v48, s86, v48")
    a("v_add_u32 v49, s83, v12")
    a(f"v_mul_u32_u24 v49, {UR_STRIDE}, v49")
    a("s_lshl_b32 s85, s82, 1")
    a(f"s_sub_u32 s85, {2*2040}, s85")
    a("v_add_u32 v49, s85, v49")
    a("v_lshlrev_b32 v50, 4, v11")
    a("v_sub_u32 v49, v49, v50")
    a(f"s_waitcnt vmcnt({NPP})")
    a("s_barrier")
    def unpack(dst, src):
        for e in range(8):
            if e % 2 == 0: a(f"v_lshlrev_b32 v{dst+e}, 16, v{src+(e>>1)}")
            else: a(f"v_and_b32 v{dst+e}, 0xffff0000, v{src+(e>>1)}")
    def KU(i): return [108, 116, 124, 132][i % 4]
    a(f"s_waitcnt vmcnt({NPP-4})")
    for e in range(8):
        for i in range(4):
            src = 200 + 2 * e + (i >> 1)
            dst = 164 + 4 * e + i
            if i % 2 == 0: a(f"v_lshlrev_b32 v{dst}, 16, v{src}")
            else: a(f"v_and_b32 v{dst}, 0xffff0000, v{src}")
    a(f"s_waitcnt vmcnt({NPP-7})")
    for i in range(3): unpack(KU(i), kreg(i))
    for j in range(4):
        a(f"s_waitcnt vmcnt({6-2*j})")
        unpack(KU(j + 3), kreg(j + 3))
        unpack(24, vreg(j))
        for i in (3, 2, 1, 0):
            for e in range(8):
                if i == 3: a(f"v_mul_f32 v{16+e}, v{KU(j)+e}, v{164+4*e+3}")
                else: a(f"v_fmac_f32 v{16+e}, v{KU(j+3-i)+e}, v{164+4*e+i}")
        for e in range(8):
            a(f"v_mul_f32 v{16+e}, v{16+e}, v{24+e}")
        for q in range(4):
            a(f"v_cvt_pk_bf16_f32 v{vreg(j)+q}, v{16+2*q}, v{17+2*q}")
        a(f"ds_write_b128 v14, v[{vreg(j)}:{vreg(j)+3}] offset:{128*j}")
    a("s_waitcnt lgkmcnt(0)")
    R = 64
    for dh in range(4):
        for z in range(2):
            a(f"ds_read_b64_tr_b16 v[{R+4*dh+2*z}:{R+4*dh+2*z+1}], v48 offset:{(1 - z) * 512 + dh * 32}")
    for dh in range(4):
        a(f"s_mov_b32 s85, {WS_UR0 + dh * 16 * UR_STRIDE}")
        a(f"s_waitcnt lgkmcnt({6-2*dh})")
        a(f"buffer_store_dwordx4 v[{R+4*dh}:{R+4*dh+3}], v49, s[12:15], s85 offen{STP}")
    a("v_add_u32 v50, s83, v0")
    a(f"v_mul_u32_u24 v50, {UR_STRIDE}, v50")
    for i in range(4): a(f"v_mov_b32 v{52+i}, 0")
    a("s_cmp_eq_u32 s80, 0")
    a(f"s_mov_b32 s84, {WS_SIZE}")
    a(f"s_cselect_b32 s85, {WS_UR0 + 4096}, s84")
    a(f"buffer_store_dwordx4 v[52:55], v50, s[12:15], s85 offen{STP}")
    common.endpgm(a, 0)

    a.label(Lcomp)
    a("s_lshr_b32 s32, s2, 3")
    a("v_lshrrev_b32 v56, 1, v0")
    a("v_lshlrev_b32 v56, 11, v56")
    a("v_and_b32 v57, 1, v0")
    a("v_lshl_add_u32 v56, v57, 7, v56")
    a("s_and_b32 s31, s2, 1")
    a("s_lshl_b32 s31, s31, 10")
    a("s_lshl_b32 s33, s32, 5")
    a("s_add_u32 s31, s31, s33")
    a("s_lshl_b32 s82, s31, 11")
    a("v_lshrrev_b32 v58, 5, v0")
    a(f"v_mul_u32_u24 v58, {64*6144}, v58")
    a("v_bfe_u32 v57, v0, 4, 1")
    a("v_mul_u32_u24 v57, 6144, v57")
    a("v_add_u32 v58, v58, v57")
    a("v_bfe_u32 v57, v0, 2, 2")
    a("v_min_u32 v57, 2, v57")
    a("v_lshl_add_u32 v58, v57, 11, v58")
    a("v_and_b32 v57, 3, v0")
    a("v_lshl_add_u32 v58, v57, 7, v58")
    a("s_lshl_b32 s32, s32, 1")
    a("s_mul_i32 s83, s32, 6144")
    a("s_bfe_u32 s31, s2, 0x20001")
    a("s_lshl_b32 s31, s31, 9")
    a("s_add_u32 s83, s83, s31")
    a("s_bitcmp0_b32 s28, 0")
    a("s_cselect_b32 s88, s4, s8")
    a("s_cselect_b32 s89, s5, s9")
    a("s_cselect_b32 s90, s6, s10")
    a("s_mov_b32 s91, 0x00020000")
    a("s_cselect_b32 s82, s82, s83")
    a(f"s_mov_b32 s31, {2*64*6144}")
    a("s_cselect_b32 s85, 256, s31")
    a("s_cselect_b64 vcc, -1, 0")
    a("v_cndmask_b32 v56, v58, v56, vcc")
    a("s_lshr_b32 s31, s28, 1")
    a("s_add_u32 s31, s31, 1")
    a("s_mul_i32 s31, s31, s85")
    a("s_add_u32 s82, s82, s31")
    a("s_lshl_b32 s85, s85, 1")
    PFS = int(os.environ.get('K1PFS', '2'))
    a("s_lshr_b32 s84, s28, 1")
    a(f"s_mul_i32 s84, s84, {PFS}")
    a(f"s_sub_u32 s84, s84, {PFS}")
    Lnp0 = a.newlabel("k1np0")
    if 'nopf' not in VAR:
        a("s_cmp_ge_u32 s28, 2")
        a(f"s_cbranch_scc1 {Lnp0}")
        a("buffer_load_dword v59, v56, s[88:91], s82 offen sc1")
        a("s_add_u32 s82, s82, s85")
        a(f"s_add_u32 s84, s84, {2*PFS}")
        a.label(Lnp0)
    def pf_loop():
        if 'nopf' in VAR: return
        Lnp = a.newlabel("k1np")
        a("s_cmp_lg_u32 s72, s84")
        a(f"s_cbranch_scc1 {Lnp}")
        a(f"s_cmp_gt_u32 s72, {5*PFS}")
        a(f"s_cbranch_scc1 {Lnp}")
        a("buffer_load_dword v59, v56, s[88:91], s82 offen sc1")
        a("s_add_u32 s82, s82, s85")
        a(f"s_add_u32 s84, s84, {2*PFS}")
        a.label(Lnp)
    a("s_and_b32 s60, s28, 1")
    a("s_lshr_b32 s61, s28, 1")
    a("v_and_b32 v1, 31, v0")
    a("v_lshrrev_b32 v2, 5, v0")
    a("v_lshrrev_b32 v3, 1, v1")
    a("v_and_b32 v3, 7, v3")
    a("s_lshl_b32 s62, s60, 13")
    a("v_lshlrev_b32 v9, 7, v1")
    a("v_add_u32 v9, s62, v9")
    for ks in range(4):
        a(f"v_or_b32 v15, {2*ks}, v2")
        a("v_xor_b32 v15, v15, v3")
        a(f"v_lshl_add_u32 v{4+ks}, v15, 4, v9")
    a("v_and_b32 v1, 15, v0")
    a("v_lshrrev_b32 v3, 2, v1")
    a("v_and_b32 v1, 3, v1")
    a("v_lshrrev_b32 v15, 4, v0")
    a("v_and_b32 v15, 1, v15")
    a("v_lshlrev_b32 v15, 5, v15")
    a("v_lshl_add_u32 v15, v1, 3, v15")
    a("s_lshl_b32 s62, s61, 6")
    a("v_add_u32 v15, s62, v15")
    a("v_lshrrev_b32 v1, 1, v3")
    a("v_and_b32 v1, 1, v1")
    a("v_lshlrev_b32 v1, 6, v1")
    a("v_xor_b32 v15, v15, v1")
    a("v_lshl_add_u32 v3, v2, 3, v3")
    a("v_lshl_add_u32 v8, v3, 7, v15")
    a(f"v_add_u32 v8, {WS0}, v8")
    for i in range(4): a(f"v_mov_b32 v{10+i}, v{4+i}")
    a("v_mov_b32 v14, v8")
    for i in range(96): a(f"v_mov_b32 v{64+i}, 0")
    def Xf(b, mt): return 160 + 20 * b + 4 * mt
    def Wf(b, p): return 168 + 20 * b + 4 * p
    def acc(mt, p): return 64 + 16 * (3 * mt + p)
    def reads(ks, nxt):
        b = ks
        o = 16 if nxt else 10
        r = []
        for mt in range(2):
            r.append(f"ds_read_b128 v[{Xf(b,mt)}:{Xf(b,mt)+3}], v{o+ks} offset:{mt*4096}")
        for p in range(3):
            for z in range(2):
                r.append(f"ds_read_b64_tr_b16 v[{Wf(b,p)+2*z}:{Wf(b,p)+2*z+1}], v{o+4} offset:{p*8192+ks*2048+z*512}")
        return r
    def mfmas(b):
        r = []
        for mt in range(2):
            for p in range(3):
                A, B = (Wf(b, p), Xf(b, mt)) if p < 2 else (Xf(b, mt), Wf(b, p))
                r.append(f"v_mfma_f32_32x32x16_bf16 v[{acc(mt,p)}:{acc(mt,p)+15}], v[{A}:{A+3}], v[{B}:{B+3}], v[{acc(mt,p)}:{acc(mt,p)+15}]")
        return r
    def step(ks, rd, wait):
        a(f"s_waitcnt lgkmcnt({wait})")
        m = mfmas(ks)
        a(m[0]); [a(x) for x in rd[0:2]]
        a(m[1]); [a(x) for x in rd[2:4]]
        a(m[2]); [a(x) for x in rd[4:6]]
        a(m[3]); [a(x) for x in rd[6:8]]
        a(m[4]); a(m[5])
    a("s_mov_b32 s72, 0")
    a("s_mov_b32 s73, 0")
    a("s_mov_b32 s74, 0")
    if 'prio' in VAR: a("s_setprio 1")
    common.stamp(a, 1)
    a("s_barrier")
    common.stamp(a, 2)
    for x in reads(0, False): a(x)
    for x in reads(1, False): a(x)
    Ls = a.newlabel("k1stage")
    Llast = a.newlabel("k1last")
    a.label(Ls)
    pf_loop()
    a(f"s_add_u32 s73, s73, {XSL}")
    a(f"s_add_u32 s74, s74, {WSL}")
    a(f"s_cmp_eq_u32 s73, {NSL*XSL}")
    a("s_cselect_b32 s73, 0, s73")
    a("s_cselect_b32 s74, 0, s74")
    for i in range(4): a(f"v_add_u32 v{16+i}, s73, v{4+i}")
    a("v_add_u32 v20, s74, v8")
    step(0, reads(2, False), 8)
    step(1, reads(3, False), 8)
    step(2, [], 8)
    a("s_waitcnt lgkmcnt(0)")
    a("s_cmp_eq_u32 s72, 15")
    a(f"s_cbranch_scc1 {Llast}")
    a("s_barrier")
    for x in reads(0, True): a(x)
    step(3, reads(1, True), 15)
    for i in range(5): a(f"v_mov_b32 v{10+i}, v{16+i}")
    a("s_add_u32 s72, s72, 1")
    a(f"s_branch {Ls}")
    a.label(Llast)
    step(3, [], 0)
    a("s_nop 15")
    common.stamp(a, 3)
    a("s_lshl_b32 s62, s30, 1")
    a("s_add_u32 s62, s62, s61")
    a("s_lshl_b32 s63, s29, 2")
    a("s_lshl_b32 s64, s60, 1")
    a("s_add_u32 s63, s63, s64")
    a("s_lshl_b32 s64, s62, 6")
    a("s_add_u32 s64, s64, s63")
    a("s_lshl_b32 s64, s64, 11")
    a("v_lshlrev_b32 v1, 4, v0")
    a(f"s_mov_b32 s66, {f32bits(QSCALE)}")
    pk = 160
    for mt in range(2):
        for p in range(3):
            base = acc(mt, p)
            d = pk + 8 * (3 * mt + p)
            if p == 0:
                for i in range(16): a(f"v_mul_f32 v{base+i}, s66, v{base+i}")
            for i in range(8):
                a(f"v_cvt_pk_bf16_f32 v{d+i}, v{base+2*i}, v{base+2*i+1}")
            a(f"s_add_u32 s65, s64, {[WS_Q, WS_K, WS_V][p] + mt*2048}")
            a(f"buffer_store_dwordx4 v[{d}:{d+3}], v1, s[12:15], s65 offen{STP}")
            a(f"buffer_store_dwordx4 v[{d+4}:{d+7}], v1, s[12:15], s65 offen offset:1024{STP}")
    for mt in range(2):
        d = pk + 8 * (3 * mt + 1)
        for i in range(8):
            c = "0" if i == 0 else f"v{16+mt}"
            a(f"v_dot2_f32_bf16 v{16+mt}, v{d+i}, v{d+i}, {c}")
    a("s_nop 3")
    a("v_mov_b32 v18, v16")
    a("v_mov_b32 v19, v17")
    a("s_nop 1")
    a("v_permlane32_swap_b32 v18, v16")
    a("v_permlane32_swap_b32 v19, v17")
    a("s_nop 1")
    a("v_add_f32 v16, v16, v18")
    a("v_add_f32 v17, v17, v19")
    a("v_max_f32 v16, v16, v17")
    for dpp in ("quad_perm:[1,0,3,2]", "quad_perm:[2,3,0,1]", "row_half_mirror", "row_mirror"):
        a("s_nop 1")
        a(f"v_max_f32_dpp v16, v16, v16 {dpp} row_mask:0xf bank_mask:0xf")
    a("s_nop 1")
    a("v_mov_b32 v17, v16")
    a("s_nop 1")
    a("v_permlane16_swap_b32 v17, v16")
    a("s_nop 1")
    a("v_max_f32 v16, v16, v17")
    a("s_lshl_b32 s64, s62, 5")
    a("s_lshl_b32 s65, s29, 1")
    a("s_add_u32 s64, s64, s65")
    a("s_add_u32 s64, s64, s60")
    a("s_lshl_b32 s64, s64, 2")
    a(f"s_add_u32 s64, s64, {WS_KMAX}")
    a("v_mov_b32 v1, 0")
    a("s_mov_b64 exec, 1")
    a("buffer_store_dword v16, v1, s[12:15], s64 offen")
    common.endpgm(a, 0)
    a.label(Lend)
    a("s_endpgm")
    return kernel_desc(name, 240)
```

```python
import struct, os
from common import *
import common
def f32bits(x): return struct.unpack("<I", struct.pack("<f", x))[0]
STP = os.environ.get('STP', '')
VAR = os.environ.get('K2VAR', '')

CONV0 = 65536
CP_STRIDE = 4160
H_OFF = 4 * CP_STRIDE
CH_BYTES = H_OFF + 4608
FLAG_OFF = CONV0 + 4 * CH_BYTES
K2_LDS = 163840
K2_BLOCK = 768
PC = int(os.environ.get('K2PC', '6'))
EARLY = [0, 1, 2, 3, 4]; LATE = [5, 6, 7]
def WCH(c): return CONV0 + EARLY.index(c) * 16384 if c in EARLY else LATE.index(c) * 16384
SCR3 = 147456

Q = 8; CN = 16; O = 32; L = 48; ONES = 52
S = [64, 80]; P = 96; KF = [112, 120]; VF = [128, 136]

def gen_k2(a, name="k2_kernel"):
    common.PV = 166
    kernel_begin(a, name)
    Lend = a.newlabel("k2end")
    a("s_cmp_ge_u32 s2, 256")
    a(f"s_cbranch_scc1 {Lend}")
    a("s_load_dwordx16 s[36:51], s[0:1], 0")
    a("s_load_dwordx8 s[52:59], s[0:1], 64")
    a("v_lshrrev_b32 v1, 6, v0")
    a("s_nop 0")
    a("v_readfirstlane_b32 s28, v1")
    a("v_and_b32 v0, 63, v0")
    common.prof_begin(a)
    a("s_and_b32 s31, s2, 7")
    a("s_lshr_b32 s32, s2, 3")
    a("s_lshl_b32 s29, s31, 2")
    a("s_lshr_b32 s33, s32, 3")
    a("s_add_u32 s29, s29, s33")
    a("s_and_b32 s30, s32, 7")
    a("v_lshlrev_b32 v1, 4, v0")
    a("s_waitcnt lgkmcnt(0)")
    srd(a, 12, 58, WS_SIZE)
    srd(a, 16, 44, 1024 * 2048 * 2)
    srd(a, 20, 52, 1024 * 1024 * 2)
    srd(a, 24, 36, 2048 * 1024 * 2)
    srd(a, 92, 54, 2048 * 2048 * 2)
    srd(a, 32, 56, 256)
    a("s_and_b32 s31, s2, 7")
    a("s_lshr_b32 s8, s2, 3")
    a("s_and_b32 s3, s31, 3")
    a("s_lshl_b32 s3, s3, 2")
    a("s_and_b32 s11, s8, 3")
    a("s_add_u32 s3, s3, s11")
    a("s_lshr_b32 s11, s31, 2")
    a("s_lshl_b32 s11, s11, 3")
    a("s_lshr_b32 s8, s8, 2")
    a("s_add_u32 s11, s11, s8")
    def poll(off_sreg):
        Lp = a.newlabel("k2poll"); Lpd = a.newlabel("k2polld")
        a("v_and_b32 v8, 31, v0")
        a("v_lshlrev_b32 v8, 2, v8")
        a("s_mov_b32 s10, 0")
        a.label(Lp)
        a(f"buffer_load_dword v9, v8, s[12:15], s{off_sreg} offen sc1")
        a("s_add_u32 s10, s10, 1")
        a("s_waitcnt vmcnt(0)")
        a("v_cmp_ne_u32 vcc, 1, v9")
        a("s_cmp_eq_u64 vcc, 0")
        a(f"s_cbranch_scc1 {Lpd}")
        a(f"s_sleep {int(os.environ.get('K2SLEEP', '4'))}")
        a("s_cmp_lt_u32 s10, 0x400000")
        a(f"s_cbranch_scc1 {Lp}")
        a.label(Lpd)
    Lmain = a.newlabel("k2main")
    a("s_cmp_lt_u32 s28, 8")
    a(f"s_cbranch_scc1 {Lmain}")

    a("s_sub_u32 s28, s28, 8")
    a(f"s_mul_i32 s63, s28, {CH_BYTES}")
    a(f"s_add_u32 s63, s63, {CONV0}")
    a("s_lshl_b32 s62, s2, 2")
    a("s_add_u32 s62, s62, s28")
    for i in range(4): a(f"v_mov_b32 v{8+i}, 0")
    a("v_and_b32 v2, 7, v0")
    a("v_lshrrev_b32 v3, 1, v2")
    a(f"v_mul_u32_u24 v3, {CP_STRIDE}, v3")
    a("v_and_b32 v2, 1, v2")
    a("v_lshl_add_u32 v2, v2, 4, v3")
    a("v_add_u32 v2, 4096, v2")
    a(f"v_add_u32 v3, {H_OFF}, v1")
    a("v_cmp_gt_u32 vcc, 32, v0")
    a("s_nop 1")
    a("v_cndmask_b32 v2, v2, v3, vcc")
    a("v_add_u32 v2, s63, v2")
    a("ds_write_b128 v2, v[8:11]")
    a(f"v_mov_b32 v2, {FLAG_OFF}")
    a("ds_write_b32 v2, v8")
    a("s_lshr_b32 s31, s62, 1")
    a("s_lshl_b32 s31, s31, 2")
    a("s_add_u32 s4, s46, s31")
    a("s_addc_u32 s5, s47, 0")
    a("s_load_dword s70, s[4:5], 0")
    a("s_lshl_b32 s6, s29, 17")
    a("s_lshl_b32 s31, s28, 11")
    a("s_add_u32 s6, s6, s31")
    a("s_mov_b32 s9, s31")
    a(f"s_mul_i32 s60, s62, {UR_STRIDE}")
    a(f"s_add_u32 s60, s60, {WS_UR0}")
    a("s_lshl_b32 s61, s62, 12")
    a("s_waitcnt lgkmcnt(0)")
    vm = VM(a)
    def issue_chunk(c):
        for kv, base in ((0, WS_K), (1, WS_V)):
            for i in range(2):
                a(f"s_add_u32 m0, s9, {(c % 4)*16384 + kv*8192 + i*1024}")
                a(f"s_add_u32 s31, s6, {base + c*8192 + i*1024}")
                vm.op("buffer_load_dwordx4 v1, s[12:15], s31 offen lds", ("c", c))
    conv = []
    for pc in range(4):
        conv.append((H_OFF + 512 + pc*1024, 61, pc*1024, 16))
    for cc in range(4):
        for pc in range(4):
            conv.append((cc*CP_STRIDE + pc*1024, 60, cc*2 + pc*1024, 12))
    def issue_conv(lo, hi):
        for (dst, sreg, off, srdr) in conv[lo:hi]:
            a(f"s_add_u32 m0, s63, {dst}")
            a(f"s_add_u32 s31, s{sreg}, {off}")
            vm.op(f"buffer_load_dwordx4 v1, s[{srdr}:{srdr+3}], s31 offen lds", "conv")
    issue_chunk(0); issue_chunk(1)
    a("v_and_b32 v2, 15, v0")
    a("v_lshrrev_b32 v3, 4, v0")
    a("v_sub_u32 v4, 3, v2")
    a("v_and_b32 v4, 3, v4")
    a(f"v_mul_u32_u24 v4, {CP_STRIDE}, v4")
    a("v_lshrrev_b32 v5, 2, v2")
    a("v_lshlrev_b32 v6, 1, v3")
    a("v_sub_u32 v5, v6, v5")
    a("v_add_u32 v5, 3, v5")
    a("v_lshl_add_u32 v4, v5, 3, v4")
    a("v_add_u32 v4, s63, v4")
    a("v_lshlrev_b32 v5, 5, v2")
    a("v_lshl_add_u32 v5, v3, 4, v5")
    a(f"s_add_u32 s31, s63, {H_OFF + 32}")
    a("v_add_u32 v5, s31, v5")
    a("v_lshlrev_b32 v6, 5, v2")
    a("v_lshl_add_u32 v6, v3, 3, v6")
    a("s_add_u32 s31, s63, 504")
    a("v_sub_u32 v7, s31, v6")
    a("s_lshl_b32 s64, s62, 12")
    a(f"s_add_u32 s64, s64, {WS_YT}")
    a("s_bitcmp1_b32 s62, 0")
    a("s_cselect_b32 s31, 0, 16")
    a("s_lshl_b32 s70, s70, s31")
    a("s_and_b32 s70, s70, 0xffff0000")
    ACC = 16
    def BFr(b, x): return 48 + 32 * b + 4 * x
    def AFr(i): return 112 + 4 * (i % 4)
    cs = []; nl = [0]; tag = {}
    def lop(txt, tg):
        cs.append(txt); nl[0] += 1; tag[tg] = nl[0]
    def lwait(tg):
        cs.append(f"s_waitcnt lgkmcnt({min(15, nl[0] - tag[tg])})")
    def rdA(g):
        m0, x = divmod(g, 8)
        o = 64 * (63 - (m0 + 8 * x))
        lop(f"ds_read_b64 v[{AFr(g)}:{AFr(g)+1}], v4 offset:{o}", ("A", g))
        lop(f"ds_read_b64 v[{AFr(g)+2}:{AFr(g)+3}], v4 offset:{o+8}", ("A", g))
    def rdB(m0, x):
        lop(f"ds_read_b128 v[{BFr(m0&1,x)}:{BFr(m0&1,x)+3}], v5 offset:{512*x+64*(7-m0)}", ("B", m0, x))
    for x in range(8): rdB(0, x)
    rdA(0); rdA(1)
    for m0 in range(8):
        for x in range(8):
            g = 8 * m0 + x
            if g + 2 < 64: rdA(g + 2)
            if m0 < 7: rdB(m0 + 1, x)
            if x == 0: lwait(("B", m0, 7)) if tag[("B", m0, 7)] > tag[("A", g)] else lwait(("A", g))
            else: lwait(("A", g))
            for tt in range(8 - x):
                T = x + tt
                c = "0" if (m0 == 0 and x == 0) else f"v[{ACC+4*T}:{ACC+4*T+3}]"
                cs.append(f"v_mfma_f32_16x16x32_bf16 v[{ACC+4*T}:{ACC+4*T+3}], v[{AFr(g)}:{AFr(g)+3}], v[{BFr(m0&1,tt)}:{BFr(m0&1,tt)+3}], {c}")
    C0, C1 = 4, 14
    npieces = C1 - C0
    nm = sum("mfma" in x for x in cs)
    pieces = [[] for _ in range(npieces)]
    k = 0
    for x in cs:
        pieces[min(npieces - 1, k * npieces // nm)].append(x)
        if "mfma" in x: k += 1
    vm.wait(("c", 0))
    a("s_barrier")
    issue_chunk(2)
    for c in range(15):
        if c < 3: issue_conv(7 * c, 7 * c + 7)
        if c == C0: vm.wait("conv")
        if C0 <= c < C1:
            for x in pieces[c - C0]: a(x)
        if c == 12 and 'nomall' not in VAR:
            a("v_lshlrev_b32 v2, 7, v0")
            a("s_lshl_b32 s31, s2, 15")
            a("s_lshl_b32 s90, s28, 13")
            a("s_add_u32 s31, s31, s90")
            vm.op("buffer_load_dword v3, v2, s[24:27], s31 offen sc1")
            a(f"s_sub_u32 s31, s31, {4*MB}")
            vm.op("buffer_load_dword v3, v2, s[20:23], s31 offen sc1")
        if c == 14:
            for T in range(8):
                a(f"ds_read_b64 v[{48+2*T}:{49+2*T}], v7 offset:{512*(7-T)}")
            a("s_waitcnt lgkmcnt(0)")
            for T in range(8):
                r0, r1 = 48 + 2 * T, 49 + 2 * T
                a(f"v_and_b32 v8, 0xffff0000, v{r1}")
                a(f"v_lshlrev_b32 v9, 16, v{r1}")
                a(f"v_and_b32 v10, 0xffff0000, v{r0}")
                a(f"v_lshlrev_b32 v11, 16, v{r0}")
                for e in range(4):
                    a(f"v_fma_f32 v{ACC+4*T+e}, v{8+e}, s70, v{ACC+4*T+e}")
                a(f"v_cvt_pk_bf16_f32 v{64+2*T}, v{ACC+4*T}, v{ACC+4*T+1}")
                a(f"v_cvt_pk_bf16_f32 v{65+2*T}, v{ACC+4*T+2}, v{ACC+4*T+3}")
                vm.op(f"buffer_store_dwordx2 v[{64+2*T}:{65+2*T}], v6, s[12:15], s64 offen offset:{512*T} sc1", "y")
        vm.wait(("c", c + 1))
        a("s_barrier")
        if c + 3 <= 15: issue_chunk(c + 3)
    a("v_lshrrev_b32 v4, 3, v0")
    a("v_and_b32 v5, 7, v0")
    a("v_lshrrev_b32 v6, 1, v4")
    a("v_and_b32 v6, 1, v6")
    a("v_lshlrev_b32 v6, 2, v6")
    a("v_xor_b32 v7, v5, v6")
    a("v_lshlrev_b32 v7, 4, v7")
    a("v_lshl_add_u32 v3, v4, 11, v7")
    a("s_lshl_b32 s60, s11, 7")
    a("s_lshl_b32 s61, s28, 14")
    a("s_add_u32 s60, s60, s61")
    a("s_lshl_b32 s61, s28, 10")
    def wchunk(c):
        for n in range(4):
            a(f"s_add_u32 m0, s61, {WCH(c) + n*4096}")
            a(f"s_add_u32 s31, s60, {(4*c+n)*65536}")
            vm.op("buffer_load_dwordx4 v3, s[20:23], s31 offen lds", ("w", c))
    for c in EARLY: wchunk(c)
    vm.wait("y")
    a("s_barrier")
    Lny = a.newlabel("k2ny")
    a("s_cmp_lg_u32 s28, 0")
    a(f"s_cbranch_scc1 {Lny}")
    a("s_lshr_b32 s31, s2, 5")
    a("s_lshl_b32 s31, s31, 8")
    a("s_and_b32 s90, s2, 31")
    a("s_lshl_b32 s90, s90, 2")
    a("s_add_u32 s31, s31, s90")
    a(f"s_add_u32 s31, s31, {WS_FLAG + 8*256}")
    a("v_mov_b32 v8, 0")
    a("v_mov_b32 v9, 1")
    a("s_mov_b64 exec, 1")
    a("buffer_store_dword v9, v8, s[12:15], s31 offen sc1")
    a("s_mov_b64 exec, -1")
    a.label(Lny)
    a("s_barrier")
    a(f"v_mov_b32 v6, {FLAG_OFF}")
    a("ds_read_b32 v7, v6")
    a("s_waitcnt lgkmcnt(0)")
    a("v_readfirstlane_b32 s31, v7")
    a("s_nop 3")
    a("s_cmp_eq_u32 s31, 0")
    Lhd = a.newlabel("k2hd")
    a(f"s_cbranch_scc1 {Lhd}")
    a("s_waitcnt vmcnt(0)")
    a("s_barrier")
    a("s_mov_b32 s10, 0")
    def issue_dyn():
        a("s_and_b32 s90, s10, 3")
        a("s_lshl_b32 s90, s90, 14")
        a("s_add_u32 s90, s90, s9")
        a("s_lshl_b32 s91, s10, 13")
        a("s_add_u32 s91, s91, s6")
        for kv, base in ((0, WS_K), (1, WS_V)):
            for i in range(2):
                a(f"s_add_u32 m0, s90, {kv*8192 + i*1024}")
                a(f"s_add_u32 s31, s91, {base + i*1024}")
                a("buffer_load_dwordx4 v1, s[12:15], s31 offen lds")
        a("s_add_u32 s10, s10, 1")
    issue_dyn()
    a("s_waitcnt vmcnt(0)")
    a("s_barrier")
    L2p = a.newlabel("k2p2")
    a.label(L2p)
    issue_dyn()
    a("s_waitcnt vmcnt(0)")
    a("s_barrier")
    a("s_cmp_lt_u32 s10, 16")
    a(f"s_cbranch_scc1 {L2p}")
    a("s_barrier")
    a.label(Lhd)
    a("s_barrier")
    for c in LATE: wchunk(c)
    vm.wait(("w", 4))
    a("s_barrier")
    a("s_waitcnt vmcnt(0)")
    a("s_barrier")
    common.endpgm(a, 1)

    a.label(Lmain)
    a("s_lshl_b32 s31, s29, 7")
    a(f"s_add_u32 s31, s31, {WS_KMAX}")
    a("s_add_u32 s4, s58, s31")
    a("s_addc_u32 s5, s59, 0")
    a("s_load_dwordx16 s[60:75], s[4:5], 0")
    a("s_load_dwordx16 s[76:91], s[4:5], 64")
    a("s_lshl_b32 s31, s29, 6")
    a("s_lshl_b32 s8, s30, 3")
    a("s_add_u32 s31, s31, s8")
    a("s_add_u32 s31, s31, s28")
    a("s_lshl_b32 s31, s31, 11")
    if WS_Q: a(f"s_add_u32 s31, s31, {WS_Q}")
    a(f"buffer_load_dwordx4 v[{Q}:{Q+3}], v1, s[12:15], s31 offen")
    a(f"buffer_load_dwordx4 v[{Q+4}:{Q+7}], v1, s[12:15], s31 offen offset:1024")
    a("v_lshrrev_b32 v2, 4, v0")
    a("v_xor_b32 v2, v2, v0")
    a("v_and_b32 v2, 1, v2")
    a("v_cmp_eq_u32 vcc, 0, v2")
    a("v_mov_b32 v3, 0x3f803f80")
    a("s_nop 1")
    for i in range(4): a(f"v_cndmask_b32 v{ONES+i}, 0, v3, vcc")
    a("s_waitcnt lgkmcnt(0)")
    for i in range(1, 32): a(f"s_max_u32 s60, s60, s{60+i}")
    a("s_waitcnt vmcnt(0)")
    for i in range(8):
        c = "0" if i == 0 else "v4"
        a(f"v_dot2_f32_bf16 v4, v{Q+i}, v{Q+i}, {c}")
    a("s_nop 3")
    a("v_mov_b32 v5, v4")
    a("s_nop 1")
    a("v_permlane32_swap_b32 v5, v4")
    a("s_nop 1")
    a("v_add_f32 v4, v4, v5")
    a("v_mul_f32 v4, s60, v4")
    a("v_sqrt_f32 v4, v4")
    a("s_nop 0")
    a("v_sub_f32 v4, 0, v4")
    a("s_mov_b32 s7, 0")
    Lrestart = a.newlabel("k2restart")
    a.label(Lrestart)
    for i in range(16): a(f"v_mov_b32 v{CN+i}, v4")
    for i in range(16): a(f"v_mov_b32 v{O+i}, 0")
    for i in range(4): a(f"v_mov_b32 v{L+i}, 0")
    for i in range(4, 8): a(f"v_mov_b32 v{P+i}, 0")
    for i in range(4, 8): a(f"v_mov_b32 v{VF[1]+i}, 0")
    a("s_barrier")
    common.stamp(a, 1)
    a("v_mov_b32 v2, v1")
    a("v_add_u32 v3, 16384, v1")
    def kread(buf, areg, tile):
        return [f"ds_read_b128 v[{KF[buf]}:{KF[buf]+3}], v{areg} offset:{tile*2048}",
                f"ds_read_b128 v[{KF[buf]+4}:{KF[buf]+7}], v{areg} offset:{tile*2048+1024}"]
    def vread(buf, areg, tile):
        return [f"ds_read_b128 v[{VF[buf]}:{VF[buf]+3}], v{areg} offset:{8192+tile*2048}",
                f"ds_read_b128 v[{VF[buf]+4}:{VF[buf]+7}], v{areg} offset:{8192+tile*2048+1024}"]
    def qk(sb, kb, half):
        c = f"v[{CN}:{CN+15}]" if half == 0 else f"v[{S[sb]}:{S[sb]+15}]"
        return f"v_mfma_f32_32x32x16_bf16 v[{S[sb]}:{S[sb]+15}], v[{KF[kb]+4*half}:{KF[kb]+4*half+3}], v[{Q+4*half}:{Q+4*half+3}], {c}"
    def pv(vb, half):
        return f"v_mfma_f32_32x32x16_bf16 v[{O}:{O+15}], v[{VF[vb]+4*half}:{VF[vb]+4*half+3}], v[{P+4*half}:{P+4*half+3}], v[{O}:{O+15}]"
    def lsum(half):
        return f"v_mfma_f32_16x16x32_bf16 v[{L}:{L+3}], v[{ONES}:{ONES+3}], v[{P+4*half}:{P+4*half+3}], v[{L}:{L+3}]"
    for x in kread(0, 2, 0): a(x)
    for x in kread(1, 2, 1): a(x)
    for x in vread(0, 2, 0): a(x)
    a("s_waitcnt lgkmcnt(4)")
    a(qk(0, 0, 0)); a(qk(0, 0, 1))
    a("s_mov_b32 s10, 0")
    a("s_nop 11")
    Lloop = a.newlabel("k2loop")
    a.label(Lloop)
    for tl in range(4):
        sb = tl & 1; nb_ = sb ^ 1
        def ex(i): return f"v_exp_f32 v{S[sb]+i}, v{S[sb]+i}"
        def cv(i): return f"v_cvt_pk_bf16_f32 v{P+i}, v{S[sb]+2*i}, v{S[sb]+2*i+1}"
        a("s_waitcnt lgkmcnt(2)")
        a(qk(nb_, nb_, 0))
        for i in range(0, 4): a(ex(i))
        a(qk(nb_, nb_, 1))
        for i in range(4, 6): a(ex(i))
        if tl == 2: a("s_barrier")
        if tl < 2: kr = kread(sb, 2, tl + 2)
        else: kr = kread(sb, 3, tl - 2)
        for x in kr: a(x)
        for i in range(6, 8): a(ex(i))
        a(pv(nb_, 1))
        for i in range(0, 4): a(cv(i))
        a(ex(8))
        a(lsum(1))
        for i in range(9, 12): a(ex(i))
        a("s_waitcnt lgkmcnt(2)")
        a(pv(sb, 0))
        if tl < 3: vr_ = vread(nb_, 2, tl + 1)
        else: vr_ = vread(nb_, 3, 0)
        for x in vr_: a(x)
        for i in range(12, 16): a(ex(i))
        a(lsum(0))
        if tl == 3:
            a("v_mov_b32 v2, v3")
            a("v_add_u32 v3, 16384, v3")
            a("v_and_b32 v3, 0xffff, v3")
            a("s_add_u32 s10, s10, 1")
            a("s_cmp_lt_u32 s10, 16")
        for i in range(4, 8): a(cv(i))
    a(f"s_cbranch_scc1 {Lloop}")
    a("s_nop 1")
    a(pv(1, 1))
    a(lsum(1))
    a("s_waitcnt lgkmcnt(0)")
    a("s_nop 15")
    common.stamp(a, 2)
    a("v_and_b32 v5, 16, v0")
    a("v_cmp_ne_u32 vcc, 0, v5")
    a("s_nop 1")
    a(f"v_cndmask_b32 v5, v{L}, v{L+1}, vcc")
    Lok = a.newlabel("k2ok")
    a("s_cmp_lg_u32 s7, 0")
    a(f"s_cbranch_scc1 {Lok}")
    a(f"v_mov_b32 v6, {f32bits(2.0**-60)}")
    a("v_cmp_nge_f32 vcc, v5, v6")
    Lnf = a.newlabel("k2nf")
    a("s_cmp_eq_u64 vcc, 0")
    a(f"s_cbranch_scc1 {Lnf}")
    a(f"v_mov_b32 v6, {FLAG_OFF}")
    a("v_mov_b32 v7, 1")
    a("ds_write_b32 v6, v7")
    a.label(Lnf)
    a("s_waitcnt lgkmcnt(0)")
    a("s_barrier")
    a(f"v_mov_b32 v6, {FLAG_OFF}")
    a("ds_read_b32 v7, v6")
    a("s_waitcnt lgkmcnt(0)")
    a("v_readfirstlane_b32 s31, v7")
    a("s_nop 3")
    a("s_cmp_eq_u32 s31, 0")
    a(f"s_cbranch_scc1 {Lok}")
    a("s_mov_b32 s7, 1")
    a("v_mov_b32 v4, 0xff800000")
    a("s_lshl_b32 s31, s29, 17")
    a(f"s_add_u32 s31, s31, {WS_K}")
    a("s_mov_b32 s10, 0")
    Lfb = a.newlabel("k2fb")
    a.label(Lfb)
    a(f"buffer_load_dwordx4 v[{KF[0]}:{KF[0]+3}], v1, s[12:15], s31 offen")
    a(f"buffer_load_dwordx4 v[{KF[0]+4}:{KF[0]+7}], v1, s[12:15], s31 offen offset:1024")
    a("s_waitcnt vmcnt(0)")
    a(f"v_mfma_f32_32x32x16_bf16 v[{S[0]}:{S[0]+15}], v[{KF[0]}:{KF[0]+3}], v[{Q}:{Q+3}], 0")
    a(f"v_mfma_f32_32x32x16_bf16 v[{S[0]}:{S[0]+15}], v[{KF[0]+4}:{KF[0]+7}], v[{Q+4}:{Q+7}], v[{S[0]}:{S[0]+15}]")
    a("s_nop 15")
    for i in range(8): a(f"v_max3_f32 v4, v4, v{S[0]+2*i}, v{S[0]+2*i+1}")
    a("s_add_u32 s31, s31, 2048")
    a("s_add_u32 s10, s10, 1")
    a("s_cmp_lt_u32 s10, 64")
    a(f"s_cbranch_scc1 {Lfb}")
    a("v_mov_b32 v5, v4")
    a("s_nop 1")
    a("v_permlane32_swap_b32 v5, v4")
    a("s_nop 1")
    a("v_max_f32 v4, v4, v5")
    a("v_sub_f32 v4, 0, v4")
    a("s_barrier")
    a(f"s_branch {Lrestart}")
    a.label(Lok)
    a("v_rcp_f32 v5, v5")
    a("s_nop 0")
    for i in range(16): a(f"v_mul_f32 v{O+i}, v{O+i}, v5")
    for i in range(8): a(f"v_cvt_pk_bf16_f32 v{P+i}, v{O+2*i}, v{O+2*i+1}")
    a("s_lshl_b32 s31, s30, 3")
    a("s_add_u32 s31, s31, s28")
    a("s_lshl_b32 s31, s31, 5")
    a("s_add_u32 s31, s31, s29")
    a("s_lshl_b32 s31, s31, 11")
    a(f"s_add_u32 s31, s31, {WS_O}")
    a(f"buffer_store_dwordx4 v[{P}:{P+3}], v1, s[12:15], s31 offen sc1")
    a(f"buffer_store_dwordx4 v[{P+4}:{P+7}], v1, s[12:15], s31 offen offset:1024 sc1")
    a("s_waitcnt vmcnt(0)")
    a("s_barrier")
    common.stamp(a, 3)
    Lepi = a.newlabel("k2epi")
    a("s_cmp_ge_u32 s28, 4")
    a(f"s_cbranch_scc1 {Lepi}")
    Lnp = a.newlabel("k2np")
    a("s_cmp_lg_u32 s28, 0")
    a(f"s_cbranch_scc1 {Lnp}")
    a("s_lshl_b32 s31, s30, 8")
    a("s_lshl_b32 s8, s29, 2")
    a("s_add_u32 s31, s31, s8")
    a(f"s_add_u32 s31, s31, {WS_FLAG}")
    a("v_mov_b32 v8, 0")
    a("v_mov_b32 v9, 1")
    a("s_mov_b64 exec, 1")
    a("buffer_store_dword v9, v8, s[12:15], s31 offen sc1")
    a("s_mov_b64 exec, -1")
    a("s_lshr_b32 s8, s3, 1")
    a("s_lshl_b32 s8, s8, 8")
    a(f"s_add_u32 s8, s8, {WS_FLAG}")
    poll(8)
    a.label(Lnp)
    a("s_lshl_b32 s60, s3, 2")
    a("s_add_u32 s60, s60, s28")
    a("s_lshl_b32 s61, s60, 16")
    a(f"s_add_u32 s61, s61, {WS_O}")
    NPF = 24
    def OF(i): return 64 + 4 * (i % NPF)
    def oload(f):
        a(f"s_add_u32 s31, s61, {(f//4)*4096}")
        a(f"buffer_load_dwordx4 v[{OF(f)}:{OF(f)+3}], v1, s[12:15], s31 offen offset:{(f%4)*1024} sc1")
    a("v_and_b32 v2, 15, v0")
    a("v_lshrrev_b32 v3, 2, v2")
    a("v_and_b32 v2, 3, v2")
    a("v_lshrrev_b32 v4, 4, v0")
    a("v_and_b32 v4, 1, v4")
    a("v_lshlrev_b32 v4, 5, v4")
    a("v_lshl_add_u32 v4, v2, 3, v4")
    a("v_lshrrev_b32 v5, 1, v3")
    a("v_and_b32 v5, 1, v5")
    a("v_lshlrev_b32 v5, 6, v5")
    a("v_xor_b32 v4, v4, v5")
    a("v_lshrrev_b32 v5, 5, v0")
    a("v_lshl_add_u32 v3, v5, 2, v3")
    a("v_lshl_add_u32 v10, v3, 7, v4")
    a("v_xor_b32 v11, 64, v10")
    GA = 32
    for i in range(32): a(f"v_mov_b32 v{GA+i}, 0")
    def WF(b, u): return 16 + 8 * b + 4 * u
    def wread(fl, b):
        r = []
        for u in range(2):
            for z in range(2):
                r.append(f"ds_read_b64_tr_b16 v[{WF(b,u)+2*z}:{WF(b,u)+2*z+1}], v{8+u} offset:{fl*2048+z*1024}")
        return r
    a("s_barrier")
    common.stamp(a, 4)
    for f in range(NPF): oload(f)
    for c in range(8):
        if c == 2: a("s_barrier")
        if c == PC: a("s_barrier")
        a(f"v_add_u32 v8, {WCH(c)}, v10")
        a(f"v_add_u32 v9, {WCH(c)}, v11")
        for x in wread(0, 0): a(x)
        for fl in range(8):
            f = 8 * c + fl
            b = fl & 1
            if fl < 7:
                for x in wread(fl + 1, b ^ 1): a(x)
                a("s_waitcnt lgkmcnt(4)")
            else:
                a("s_waitcnt lgkmcnt(0)")
            rem = min(NPF - 1, 63 - f)
            a(f"s_waitcnt vmcnt({rem})")
            for u in range(2):
                a(f"v_mfma_f32_32x32x16_bf16 v[{GA+16*u}:{GA+16*u+15}], v[{WF(b,u)}:{WF(b,u)+3}], v[{OF(f)}:{OF(f)+3}], v[{GA+16*u}:{GA+16*u+15}]")
            if f + NPF < 64: oload(f + NPF)
    a("s_nop 15")
    common.stamp(a, 5)
    a("v_and_b32 v2, 31, v0")
    a("v_lshlrev_b32 v2, 12, v2")
    a("v_lshl_add_u32 v2, v5, 4, v2")
    a("s_lshl_b32 s62, s60, 17")
    a("s_lshl_b32 s63, s11, 7")
    a("s_add_u32 s62, s62, s63")
    a("s_add_u32 s62, s62, 2048")
    for u in range(2):
        for gp in range(2):
            d = 64 + 8 * u + 4 * gp
            src = GA + 16 * u + 8 * gp
            for i in range(4):
                a(f"v_cvt_pk_bf16_f32 v{d+i}, v{src+2*i}, v{src+2*i+1}")
            a("s_nop 1")
            a(f"v_permlane32_swap_b32 v{d}, v{d+2}")
            a(f"v_permlane32_swap_b32 v{d+1}, v{d+3}")
            a("s_nop 1")
            a(f"buffer_store_dwordx4 v[{d}:{d+3}], v2, s[92:95], s62 offen offset:{64*u+32*gp}")
    common.endpgm(a, 1)
    a.label(Lepi)
    a("s_sub_u32 s28, s28, 4")
    a("v_lshrrev_b32 v4, 3, v0")
    a("v_and_b32 v5, 7, v0")
    a("s_lshr_b32 s62, s2, 3")
    a("s_and_b32 s63, s2, 7")
    a("s_lshl_b32 s8, s63, 8")
    a(f"s_add_u32 s8, s8, {WS_FLAG + 8*256}")
    a("s_lshl_b32 s63, s63, 2")
    a("s_add_u32 s63, s63, s28")
    a("v_lshrrev_b32 v20, 4, v0")
    a("v_and_b32 v10, 15, v0")
    a("v_lshlrev_b32 v11, 11, v10")
    a("v_lshl_add_u32 v11, v20, 4, v11")
    a("v_lshlrev_b32 v12, 12, v10")
    a("v_lshl_add_u32 v12, v20, 4, v12")
    a("s_lshl_b32 s64, s62, 17")
    a("s_lshl_b32 s65, s63, 6")
    a("s_add_u32 s67, s64, s65")
    a("s_lshl_b32 s64, s62, 18")
    a("s_add_u32 s68, s64, s65")
    for ps in range(4):
        a(f"s_add_u32 s31, s67, {ps*32768}")
        a(f"buffer_load_dwordx4 v[{32+4*ps}:{35+4*ps}], v11, s[24:27], s31 offen")
    a("v_lshrrev_b32 v13, 2, v10")
    a("v_lshl_add_u32 v13, v20, 3, v13")
    a("v_lshlrev_b32 v13, 7, v13")
    a("v_and_b32 v14, 3, v10")
    a("v_lshl_add_u32 v13, v14, 3, v13")
    a("s_lshl_b32 s66, s28, 12")
    a(f"s_add_u32 s66, s66, {SCR3}")
    a("v_add_u32 v13, s66, v13")
    a("v_add_u32 v15, s66, v1")
    a("v_lshlrev_b32 v14, 12, v4")
    a("v_lshl_add_u32 v14, v5, 4, v14")
    a("s_lshl_b32 s64, s63, 17")
    a("s_lshl_b32 s65, s62, 7")
    a("s_add_u32 s64, s64, s65")
    a(f"s_add_u32 s64, s64, {WS_YT}")
    Lnq = a.newlabel("k2nq")
    a("s_cmp_lg_u32 s28, 0")
    a(f"s_cbranch_scc1 {Lnq}")
    poll(8)
    a.label(Lnq)
    a("s_barrier")
    for n in range(4):
        a(f"s_add_u32 s31, s64, {n*32768}")
        a(f"buffer_load_dwordx4 v[{64+4*n}:{67+4*n}], v14, s[12:15], s31 offen sc1")
    a("s_barrier")
    a("s_barrier")
    a("s_waitcnt vmcnt(0)")
    for n in range(4):
        a(f"ds_write_b128 v15, v[{64+4*n}:{67+4*n}] offset:{n*1024}")
    a("s_waitcnt lgkmcnt(0)")
    for ps in range(4):
        for z in range(2):
            a(f"ds_read_b64_tr_b16 v[{48+4*ps+2*z}:{49+4*ps+2*z}], v13 offset:{z*512+ps*32}")
    for ps in range(4):
        a(f"s_waitcnt lgkmcnt({6-2*ps})")
        for dw in range(4):
            qr, yr = 32 + 4 * ps + dw, 48 + 4 * ps + dw
            a(f"v_lshlrev_b32 v16, 16, v{qr}")
            a(f"v_and_b32 v17, 0xffff0000, v{qr}")
            a(f"v_lshlrev_b32 v18, 16, v{yr}")
            a(f"v_and_b32 v19, 0xffff0000, v{yr}")
            a("v_mul_f32 v16, v16, v18")
            a("v_mul_f32 v17, v17, v19")
            a(f"v_cvt_pk_bf16_f32 v{80+4*ps+dw}, v16, v17")
        a(f"s_add_u32 s31, s68, {ps*65536}")
        a(f"buffer_store_dwordx4 v[{80+4*ps}:{83+4*ps}], v12, s[92:95], s31 offen")
    common.endpgm(a, 1)
    a.label(Lend)
    a("s_endpgm")
    return kernel_desc(name, 160)
```

```python
import struct, os
from common import *
import common
def f32bits(x): return struct.unpack("<I", struct.pack("<f", x))[0]
VAR = os.environ.get('KFVAR', '')
QSCALE = 1.4426950408889634 / (32 ** 0.5)

KF_LDS = 163840
KF_BLOCK = 768
SLOT = 40960
PPSCR = 147456
CONV0 = 65536
CP_STRIDE = 4160
H_OFF = 4 * CP_STRIDE
CH_BYTES = H_OFF + 4608
FLAG_OFF = CONV0 + 4 * CH_BYTES
QOFF = 49152
KMOFF = FLAG_OFF + 64
def WCH(c): return CONV0 + c * 16384 if c < 5 else (c - 5) * 16384
FL_O, FL_Y, FL_UR, FL_QKV = 0, 8, 16, 32
PUBM = int(os.environ.get('KFPUBM', '2'))

Q = 8; CN = 16; O = 32; L = 48; ONES = 52
S = [64, 80]; P = 96; KF = [112, 120]; VF = [128, 136]
WS_, SSMK, WO, AQ, DBG, OUT, XS, WQ, AK, AV, SH = 12, 16, 20, 24, 32, 36, 40, 44, 48, 52, 56
def R4(b): return f"s[{b}:{b+3}]"

def gen_kf(a, name="kf_kernel"):
    common.PV = 166
    kernel_begin(a, name)
    Lend = a.newlabel("kfend")
    a("s_cmp_ge_u32 s2, 256")
    a(f"s_cbranch_scc1 {Lend}")
    a("s_load_dwordx16 s[60:75], s[0:1], 0")
    a("s_load_dwordx8 s[76:83], s[0:1], 64")
    a("v_lshrrev_b32 v1, 6, v0")
    a("s_nop 0")
    a("v_readfirstlane_b32 s28, v1")
    a("v_and_b32 v0, 63, v0")
    common.prof_begin(a)
    a("s_and_b32 s31, s2, 7")
    a("s_lshr_b32 s8, s2, 3")
    a("s_lshl_b32 s29, s31, 2")
    a("s_lshr_b32 s9, s8, 3")
    a("s_add_u32 s29, s29, s9")
    a("s_and_b32 s30, s8, 7")
    a("s_and_b32 s3, s31, 3")
    a("s_lshl_b32 s3, s3, 2")
    a("s_and_b32 s9, s8, 3")
    a("s_add_u32 s3, s3, s9")
    a("s_lshr_b32 s4, s31, 2")
    a("s_lshl_b32 s4, s4, 3")
    a("s_lshr_b32 s9, s8, 2")
    a("s_add_u32 s4, s4, s9")
    a("s_and_b32 s5, s31, 1")
    a("s_lshl_b32 s5, s5, 3")
    a("s_and_b32 s9, s8, 7")
    a("s_add_u32 s5, s5, s9")
    a("s_lshr_b32 s6, s31, 1")
    a("s_lshl_b32 s6, s6, 2")
    a("s_lshr_b32 s9, s8, 3")
    a("s_add_u32 s6, s6, s9")
    a("v_lshlrev_b32 v1, 4, v0")
    a("s_waitcnt lgkmcnt(0)")
    srd(a, WS_, 82, WS_SIZE)
    srd(a, SSMK, 68, 1024 * 2048 * 2)
    srd(a, WO, 76, 1024 * 1024 * 2)
    srd(a, AQ, 60, 2048 * 1024 * 2)
    srd(a, DBG, 80, 256)
    srd(a, OUT, 78, 2048 * 2048 * 2)
    srd(a, XS, 72, 2048 * 1024 * 2)
    srd(a, WQ, 74, 1024 * 3072 * 2)
    srd(a, AK, 62, 2048 * 1024 * 2)
    srd(a, AV, 64, 2048 * 1024 * 2)
    srd(a, SH, 66, 1024 * 4 * 2)
    a("s_mov_b32 s10, s70")
    a("s_mov_b32 s11, s71")

    def get_nonce(v=2):
        Ln = a.newlabel("tag"); Lnd = a.newlabel("tagd")
        a(f"v_mov_b32 v{v}, 0")
        a("s_mov_b32 s95, 0")
        a.label(Ln)
        a(f"buffer_load_dword v{v+1}, v{v}, {R4(DBG)}, 0 offen sc1")
        a("s_add_u32 s95, s95, 1")
        a("s_waitcnt vmcnt(0)")
        a(f"v_readfirstlane_b32 s9, v{v+1}")
        a("s_nop 3")
        a("s_cmp_lg_u32 s9, 0")
        a(f"s_cbranch_scc1 {Lnd}")
        a("s_sleep 4")
        a("s_cmp_lt_u32 s95, 0x400000")
        a(f"s_cbranch_scc1 {Ln}")
        a.label(Lnd)
    def publish(line_sreg, entry_sreg, base, v=8):
        a(f"s_lshl_b32 s31, s{line_sreg}, 8")
        a(f"s_lshl_b32 s95, s{entry_sreg}, 2")
        a("s_add_u32 s31, s31, s95")
        a(f"s_add_u32 s31, s31, {WS_FLAG + base*256}")
        a(f"v_mov_b32 v{v}, 0")
        a(f"v_mov_b32 v{v+1}, s9")
        a("s_mov_b64 exec, 1")
        a(f"buffer_store_dword v{v+1}, v{v}, {R4(WS_)}, s31 offen sc1")
        a("s_mov_b64 exec, -1")
    def poll(line_sreg, base, n, v=8):
        Lp = a.newlabel("poll"); Lpd = a.newlabel("polld")
        a(f"s_lshl_b32 s94, s{line_sreg}, 8")
        a(f"s_add_u32 s94, s94, {WS_FLAG + base*256}")
        a(f"v_and_b32 v{v}, {n-1}, v0")
        a(f"v_lshlrev_b32 v{v}, 2, v{v}")
        a("s_mov_b32 s95, 0")
        a.label(Lp)
        a(f"buffer_load_dword v{v+1}, v{v}, {R4(WS_)}, s94 offen sc1")
        a("s_add_u32 s95, s95, 1")
        a("s_waitcnt vmcnt(0)")
        a(f"v_cmp_ne_u32 vcc, s9, v{v+1}")
        a("s_cmp_eq_u64 vcc, 0")
        a(f"s_cbranch_scc1 {Lpd}")
        a("s_sleep 4")
        a("s_cmp_lt_u32 s95, 0x400000")
        a(f"s_cbranch_scc1 {Lp}")
        a.label(Lpd)

    LC = a.newlabel("roleC"); LD = a.newlabel("roleD"); LP = a.newlabel("roleP"); LH = a.newlabel("roleH")
    Lcdma = a.newlabel("convdma"); Lconv = a.newlabel("conv")
    a("s_cmp_lt_u32 s28, 4")
    a(f"s_cbranch_scc1 {LC}")
    a("s_cmp_lt_u32 s28, 6")
    a(f"s_cbranch_scc1 {LD}")
    a("s_cmp_lt_u32 s28, 8")
    a(f"s_cbranch_scc1 {LP}")
    a(f"s_branch {LH}")

    a.label(LD)
    a("s_sub_u32 s60, s28, 4")
    a("v_lshrrev_b32 v4, 3, v0")
    a("v_and_b32 v5, 7, v0")
    a("v_lshrrev_b32 v6, 1, v4")
    a("v_xor_b32 v7, v5, v6")
    a("v_lshlrev_b32 v7, 4, v7")
    a("v_lshl_add_u32 v10, v4, 11, v7")
    a("v_xor_b32 v11, 64, v10")
    a("v_and_b32 v6, 1, v6")
    a("v_lshlrev_b32 v6, 2, v6")
    a("v_xor_b32 v7, v5, v6")
    a("v_lshlrev_b32 v7, 4, v7")
    a("v_mul_u32_u24 v12, 6144, v4")
    a("v_add_u32 v12, v12, v7")
    a("s_lshl_b32 s31, s5, 18")
    a("s_lshl_b32 s61, s60, 17")
    a("s_add_u32 s61, s61, s31")
    a("s_lshl_b32 s62, s6, 7")
    a("s_lshl_b32 s70, s60, 13")
    a("s_mul_i32 s71, s60, 12288")
    a("s_add_u32 s71, s71, 16384")
    a("s_mov_b32 s72, 0")
    a("s_mov_b32 s73, 0")
    Ld1 = a.newlabel("d1")
    a("s_cmp_eq_u32 s60, 1")
    a(f"s_cbranch_scc1 {Ld1}")
    for lw in range(2):
        if lw == 1: a.label(Ld1)
        def issue_stage():
            a("s_lshl_b32 s75, s72, 7")
            a("s_add_u32 s75, s75, s61")
            a(f"s_mul_i32 s76, s72, {64*6144}")
            a("s_add_u32 s76, s76, s62")
            a("s_add_u32 s77, s70, s73")
            a("s_add_u32 s78, s71, s73")
            for j in range(8):
                a(f"s_add_u32 m0, s77, {j*1024}")
                a(f"s_add_u32 s31, s75, {j*16384}")
                a(f"buffer_load_dwordx4 v{10 + (j & 1)}, {R4(XS)}, s31 offen lds")
            for j in range(12):
                i = 12 * lw + j
                a(f"s_add_u32 m0, s78, {j*1024}")
                a(f"s_add_u32 s31, s76, {(i & 7)*49152 + (i >> 3)*2048}")
                a(f"buffer_load_dwordx4 v12, {R4(WQ)}, s31 offen lds")
            a("s_add_u32 s72, s72, 1")
            a("s_cmp_eq_u32 s73, 0")
            a(f"s_cselect_b32 s73, {3*SLOT}, s73")
            a(f"s_sub_u32 s73, s73, {SLOT}")
        issue_stage()
        issue_stage()
        a("s_waitcnt vmcnt(20)")
        a("s_barrier")
        a("s_mov_b32 s79, 0")
        Lll = a.newlabel("dl")
        a.label(Lll)
        issue_stage()
        a("s_waitcnt vmcnt(20)")
        a("s_barrier")
        a("s_add_u32 s79, s79, 1")
        a("s_cmp_lt_u32 s79, 14")
        a(f"s_cbranch_scc1 {Lll}")
        a(f"s_branch {Lcdma}")

    a.label(LP)
    Lnt = a.newlabel("notag")
    a("s_lshl_b32 s31, s2, 4")
    a("s_add_u32 s31, s31, s28")
    a("s_cmp_lg_u32 s31, 6")
    a(f"s_cbranch_scc1 {Lnt}")
    a("s_memrealtime s[60:61]")
    a("s_waitcnt lgkmcnt(0)")
    a("s_or_b32 s60, s60, 1")
    a("v_mov_b32 v2, s60")
    a("v_mov_b32 v4, 0")
    a("s_mov_b64 exec, 1")
    a(f"buffer_store_dword v2, v4, {R4(DBG)}, 0 offen sc1")
    a("s_mov_b64 exec, -1")
    a.label(Lnt)
    a("s_lshr_b32 s8, s2, 3")
    a("v_lshrrev_b32 v6, 1, v0")
    a("v_lshlrev_b32 v6, 11, v6")
    a("v_and_b32 v7, 1, v0")
    a("v_lshl_add_u32 v6, v7, 7, v6")
    a("s_and_b32 s31, s2, 1")
    a("s_lshl_b32 s31, s31, 10")
    a("s_lshl_b32 s60, s8, 5")
    a("s_add_u32 s31, s31, s60")
    a("s_lshl_b32 s62, s31, 11")
    a("v_lshrrev_b32 v8, 5, v0")
    a(f"v_mul_u32_u24 v8, {64*6144}, v8")
    a("v_bfe_u32 v7, v0, 4, 1")
    a("v_mul_u32_u24 v7, 6144, v7")
    a("v_add_u32 v8, v8, v7")
    a("v_bfe_u32 v7, v0, 2, 2")
    a("v_min_u32 v7, 2, v7")
    a("v_lshl_add_u32 v8, v7, 11, v8")
    a("v_and_b32 v7, 3, v0")
    a("v_lshl_add_u32 v8, v7, 7, v8")
    a("s_lshl_b32 s8, s8, 1")
    a("s_mul_i32 s63, s8, 6144")
    a("s_bfe_u32 s31, s2, 0x20001")
    a("s_lshl_b32 s31, s31, 9")
    a("s_add_u32 s63, s63, s31")
    a("s_cmp_eq_u32 s28, 6")
    a(f"s_cselect_b32 s88, s{XS}, s{WQ}")
    a(f"s_cselect_b32 s89, s{XS+1}, s{WQ+1}")
    a(f"s_cselect_b32 s90, s{XS+2}, s{WQ+2}")
    a("s_mov_b32 s91, 0x00020000")
    a("s_cselect_b32 s62, s62, s63")
    a(f"s_mov_b32 s31, {2*64*6144}")
    a("s_cselect_b32 s65, 256, s31")
    a("s_cselect_b64 vcc, -1, 0")
    a("v_cndmask_b32 v6, v8, v6, vcc")
    def pf():
        a("s_add_u32 s62, s62, s65")
        a("buffer_load_dword v9, v6, s[88:91], s62 offen sc1")
    pf()
    def conv_setup():
        a("s_sub_u32 s60, s28, 4")
        a(f"s_mul_i32 s63, s60, {CH_BYTES}")
        a(f"s_add_u32 s63, s63, {CONV0}")
        a("s_lshl_b32 s62, s2, 2")
        a("s_add_u32 s62, s62, s60")
        a(f"s_mul_i32 s64, s62, {UR_STRIDE}")
        a(f"s_add_u32 s64, s64, {WS_UR0}")
        a("s_lshl_b32 s65, s62, 12")
    def conv_dma():
        for pc in range(4):
            a(f"s_add_u32 m0, s63, {H_OFF + 512 + pc*1024}")
            a(f"s_add_u32 s31, s65, {pc*1024}")
            a(f"buffer_load_dwordx4 v1, {R4(SSMK)}, s31 offen lds")
        for cc in range(4):
            for pc in range(4):
                a(f"s_add_u32 m0, s63, {cc*CP_STRIDE + pc*1024}")
                a(f"s_add_u32 s31, s64, {cc*2 + pc*1024}")
                a(f"buffer_load_dwordx4 v1, {R4(WS_)}, s31 offen sc1 lds")
        a(f"s_mov_b32 s31, {WS_SIZE}")
        a("s_mov_b32 exec_hi, 0")
        a(f"s_add_u32 m0, s63, {H_OFF}")
        a("s_nop 0")
        a(f"buffer_load_dwordx4 v1, {R4(WS_)}, s31 offen lds")
        a("s_mov_b64 exec, 3")
        for cc in range(4):
            a(f"s_add_u32 m0, s63, {cc*CP_STRIDE + 4096}")
            a("s_nop 0")
            a(f"buffer_load_dwordx4 v1, {R4(WS_)}, s31 offen lds")
        a("s_mov_b64 exec, -1")
    for s in range(15):
        if s == 4: get_nonce()
        if s == 13:
            a("s_lshr_b32 s66, s2, 4")
            poll(66, FL_UR, 16)
        a("s_barrier")
        if s % 2 == 0 and s <= 10: pf()
    conv_setup()
    conv_dma()
    a("s_barrier")
    a("s_waitcnt vmcnt(0)")
    a(f"s_branch {Lconv}")
    a.label(Lcdma)
    a("s_waitcnt vmcnt(0)")
    a("s_barrier")
    conv_setup()
    conv_dma()
    a("s_waitcnt vmcnt(0)")
    a(f"s_branch {Lconv}")

    a.label(LC)
    a("s_and_b32 s60, s28, 1")
    a("s_lshr_b32 s61, s28, 1")
    a("v_and_b32 v56, 31, v0")
    a("v_lshrrev_b32 v2, 5, v0")
    a("v_lshrrev_b32 v3, 1, v56")
    a("v_and_b32 v3, 7, v3")
    a("s_lshl_b32 s62, s60, 13")
    a("v_lshlrev_b32 v9, 7, v56")
    a("v_add_u32 v9, s62, v9")
    for ks in range(4):
        a(f"v_or_b32 v15, {2*ks}, v2")
        a("v_xor_b32 v15, v15, v3")
        a(f"v_lshl_add_u32 v{4+ks}, v15, 4, v9")
    a("v_and_b32 v56, 15, v0")
    a("v_lshrrev_b32 v3, 2, v56")
    a("v_and_b32 v56, 3, v56")
    a("v_lshrrev_b32 v15, 4, v0")
    a("v_and_b32 v15, 1, v15")
    a("v_lshlrev_b32 v15, 5, v15")
    a("v_lshl_add_u32 v15, v56, 3, v15")
    a("s_lshl_b32 s62, s61, 6")
    a("v_add_u32 v15, s62, v15")
    a("v_lshrrev_b32 v56, 1, v3")
    a("v_and_b32 v56, 1, v56")
    a("v_lshlrev_b32 v56, 6, v56")
    a("v_xor_b32 v15, v15, v56")
    a("v_lshl_add_u32 v3, v2, 3, v3")
    a("v_lshl_add_u32 v8, v3, 7, v15")
    a("v_add_u32 v8, 16384, v8")
    for i in range(4): a(f"v_mov_b32 v{10+i}, v{4+i}")
    a("v_mov_b32 v14, v8")
    for i in range(96): a(f"v_mov_b32 v{64+i}, 0")
    def Xf(b, mt): return 16 + 8 * b + 4 * mt
    def Wf(b, p): return 32 + 12 * b + 4 * p
    def acc(mt, p): return 64 + 16 * (3 * mt + p)
    def reads(ks, b):
        r = []
        for mt in range(2):
            r.append(f"ds_read_b128 v[{Xf(b,mt)}:{Xf(b,mt)+3}], v{10+ks} offset:{mt*4096}")
        for p in range(3):
            for z in range(2):
                r.append(f"ds_read_b64_tr_b16 v[{Wf(b,p)+2*z}:{Wf(b,p)+2*z+1}], v14 offset:{p*8192+ks*2048+z*512}")
        return r
    def mfmas(b):
        r = []
        for mt in range(2):
            for p in range(3):
                A, B = (Wf(b, p), Xf(b, mt)) if p < 2 else (Xf(b, mt), Wf(b, p))
                r.append(f"v_mfma_f32_32x32x16_bf16 v[{acc(mt,p)}:{acc(mt,p)+15}], v[{A}:{A+3}], v[{B}:{B+3}], v[{acc(mt,p)}:{acc(mt,p)+15}]")
        return r
    a("s_mov_b32 s72, 0")
    a("s_mov_b32 s73, 0")
    a("s_barrier")
    common.stamp(a, 1)
    for x in reads(0, 0): a(x)
    Ls = a.newlabel("stage"); Llast = a.newlabel("last")
    a.label(Ls)
    for ks in range(3):
        b = ks & 1
        a("s_waitcnt lgkmcnt(0)")
        m = mfmas(b); r = reads(ks + 1, b ^ 1)
        a(m[0]); [a(x) for x in r[0:4]]
        a(m[1]); [a(x) for x in r[4:8]]
        for x in m[2:]: a(x)
    a("s_waitcnt lgkmcnt(0)")
    a("s_cmp_eq_u32 s72, 15")
    a(f"s_cbranch_scc1 {Llast}")
    a("s_barrier")
    a("s_cmp_eq_u32 s73, 0")
    a(f"s_cselect_b32 s73, {3*SLOT}, s73")
    a(f"s_sub_u32 s73, s73, {SLOT}")
    for i in range(4): a(f"v_add_u32 v{10+i}, s73, v{4+i}")
    a("v_add_u32 v14, s73, v8")
    for x in reads(0, 0): a(x)
    for x in mfmas(1): a(x)
    a("s_add_u32 s72, s72, 1")
    a(f"s_branch {Ls}")
    a.label(Llast)
    for x in mfmas(1): a(x)
    a("v_mov_b32 v56, 0")
    a(f"buffer_load_dword v57, v56, {R4(DBG)}, 0 offen sc1")
    a("s_nop 15")
    common.stamp(a, 2)
    a("s_lshl_b32 s62, s6, 1")
    a("s_add_u32 s62, s62, s61")
    a("s_lshl_b32 s63, s5, 2")
    a("s_lshl_b32 s64, s60, 1")
    a("s_add_u32 s63, s63, s64")
    a("s_lshl_b32 s64, s62, 6")
    a("s_add_u32 s64, s64, s63")
    a("s_lshl_b32 s64, s64, 11")
    a(f"s_mov_b32 s66, {f32bits(QSCALE)}")
    for p in (1, 2, 0):
        for mt in range(2):
            base = acc(mt, p)
            if p == 0:
                for i in range(16): a(f"v_mul_f32 v{base+i}, s66, v{base+i}")
            for i in range(8):
                a(f"v_cvt_pk_bf16_f32 v{base+i}, v{base+2*i}, v{base+2*i+1}")
            a(f"s_add_u32 s65, s64, {[WS_Q, WS_K, WS_V][p] + mt*2048}")
            a(f"buffer_store_dwordx4 v[{base}:{base+3}], v1, {R4(WS_)}, s65 offen sc1")
            a(f"buffer_store_dwordx4 v[{base+4}:{base+7}], v1, {R4(WS_)}, s65 offen offset:1024 sc1")
    for mt in range(2):
        d = acc(mt, 1)
        for i in range(8):
            c = "0" if i == 0 else f"v{16+mt}"
            a(f"v_dot2_f32_bf16 v{16+mt}, v{d+i}, v{d+i}, {c}")
    a("s_nop 3")
    a("v_mov_b32 v18, v16")
    a("v_mov_b32 v19, v17")
    a("s_nop 1")
    a("v_permlane32_swap_b32 v18, v16")
    a("v_permlane32_swap_b32 v19, v17")
    a("s_nop 1")
    a("v_add_f32 v16, v16, v18")
    a("v_add_f32 v17, v17, v19")
    a("v_max_f32 v16, v16, v17")
    for dpp in ("quad_perm:[1,0,3,2]", "quad_perm:[2,3,0,1]", "row_half_mirror", "row_mirror"):
        a("s_nop 1")
        a(f"v_max_f32_dpp v16, v16, v16 {dpp} row_mask:0xf bank_mask:0xf")
    a("s_nop 1")
    a("v_mov_b32 v17, v16")
    a("s_nop 1")
    a("v_permlane16_swap_b32 v17, v16")
    a("s_nop 1")
    a("v_max_f32 v16, v16, v17")
    a("s_lshl_b32 s64, s62, 5")
    a("s_lshl_b32 s65, s5, 1")
    a("s_add_u32 s64, s64, s65")
    a("s_add_u32 s64, s64, s60")
    a("s_lshl_b32 s64, s64, 2")
    a(f"s_add_u32 s64, s64, {WS_KMAX}")
    a("s_mov_b64 exec, 1")
    a(f"buffer_store_dword v16, v56, {R4(WS_)}, s64 offen sc1")
    a("s_mov_b64 exec, -1")
    a("s_mov_b32 s86, s62")
    a("s_lshl_b32 s87, s5, 1")
    a("s_add_u32 s87, s87, s60")
    a("s_waitcnt vmcnt(13)")
    a("v_readfirstlane_b32 s9, v57")

    a.label(Lconv)
    a("s_and_b32 s60, s28, 3")
    a("s_lshr_b32 s61, s28, 2")
    a("s_lshl_b32 s62, s2, 2")
    a("s_add_u32 s62, s62, s60")
    a(f"s_mul_i32 s63, s60, {CH_BYTES}")
    a(f"s_add_u32 s63, s63, {CONV0}")
    a("s_lshr_b32 s31, s62, 1")
    a("s_lshl_b32 s31, s31, 2")
    a("s_add_u32 s66, s10, s31")
    a("s_addc_u32 s67, s11, 0")
    a("s_load_dword s70, s[66:67], 0")
    a("v_and_b32 v2, 15, v0")
    a("v_lshrrev_b32 v3, 4, v0")
    a("v_sub_u32 v4, 3, v2")
    a("v_and_b32 v4, 3, v4")
    a(f"v_mul_u32_u24 v4, {CP_STRIDE}, v4")
    a("v_lshrrev_b32 v5, 2, v2")
    a("v_lshlrev_b32 v6, 1, v3")
    a("v_sub_u32 v5, v6, v5")
    a("v_add_u32 v5, 3, v5")
    a("v_lshl_add_u32 v4, v5, 3, v4")
    a("v_add_u32 v4, s63, v4")
    a("v_lshlrev_b32 v5, 5, v2")
    a("v_lshl_add_u32 v5, v3, 4, v5")
    a(f"s_add_u32 s31, s63, {H_OFF + 32}")
    a("v_add_u32 v5, s31, v5")
    a("v_lshlrev_b32 v6, 5, v2")
    a("v_lshl_add_u32 v6, v3, 3, v6")
    a("s_add_u32 s31, s63, 504")
    a("v_sub_u32 v7, s31, v6")
    a("s_lshl_b32 s64, s62, 12")
    a(f"s_add_u32 s64, s64, {WS_YT}")
    a("s_waitcnt lgkmcnt(0)")
    a("s_barrier")
    common.stamp(a, 3)
    a("s_bitcmp1_b32 s62, 0")
    a("s_cselect_b32 s31, 0, 16")
    a("s_lshl_b32 s70, s70, s31")
    a("s_and_b32 s70, s70, 0xffff0000")
    ACC = 8
    def AF(b, x): return 32 + 64 * b + 4 * x
    def BF(b, x): return 64 + 64 * b + 4 * x
    Lh1 = a.newlabel("h1"); Lcd = a.newlabel("cdone")
    a("s_cmp_eq_u32 s61, 1")
    a(f"s_cbranch_scc1 {Lh1}")
    for hw in range(2):
        if hw == 1: a.label(Lh1)
        Ts = [0, 3, 4, 7] if hw == 0 else [1, 2, 5, 6]
        mx = max(Ts)
        def rd(m0, b):
            r = []
            for x in range(mx + 1):
                o = 64*(63-(m0+8*x))
                r.append(f"ds_read_b64 v[{AF(b,x)}:{AF(b,x)+1}], v4 offset:{o}")
                r.append(f"ds_read_b64 v[{AF(b,x)+2}:{AF(b,x)+3}], v4 offset:{o+8}")
                r.append(f"ds_read_b128 v[{BF(b,x)}:{BF(b,x)+3}], v5 offset:{512*x+64*(7-m0)}")
            return r
        for x in rd(0, 0): a(x)
        for m0 in range(8):
            b = m0 & 1
            a("s_waitcnt lgkmcnt(0)")
            if hw == 0 and m0 == PUBM:
                a("s_waitcnt vmcnt(0)")
                publish(86, 87, FL_QKV, v=24)
            nxt = rd(m0 + 1, b ^ 1) if m0 < 7 else []
            mf = []
            for ti, T in enumerate(Ts):
                for x in range(T + 1):
                    c = "0" if (m0 == 0 and x == 0) else f"v[{ACC+4*ti}:{ACC+4*ti+3}]"
                    mf.append(f"v_mfma_f32_16x16x32_bf16 v[{ACC+4*ti}:{ACC+4*ti+3}], v[{AF(b,x)}:{AF(b,x)+3}], v[{BF(b,T-x)}:{BF(b,T-x)+3}], {c}")
            k = 0
            for i, m in enumerate(mf):
                a(m)
                for _ in range(2):
                    if k < len(nxt): a(nxt[k]); k += 1
        for ti, T in enumerate(Ts):
            a(f"ds_read_b64 v[{32+2*ti}:{33+2*ti}], v7 offset:{512*(7-T)}")
        a("s_waitcnt lgkmcnt(0)")
        a("s_nop 7")
        for ti, T in enumerate(Ts):
            r0, r1 = 32 + 2 * ti, 33 + 2 * ti
            a(f"v_and_b32 v48, 0xffff0000, v{r1}")
            a(f"v_lshlrev_b32 v49, 16, v{r1}")
            a(f"v_and_b32 v50, 0xffff0000, v{r0}")
            a(f"v_lshlrev_b32 v51, 16, v{r0}")
            for e in range(4):
                a(f"v_fma_f32 v{ACC+4*ti+e}, v{48+e}, s70, v{ACC+4*ti+e}")
            a(f"v_cvt_pk_bf16_f32 v{56+2*ti}, v{ACC+4*ti}, v{ACC+4*ti+1}")
            a(f"v_cvt_pk_bf16_f32 v{57+2*ti}, v{ACC+4*ti+2}, v{ACC+4*ti+3}")
            a(f"buffer_store_dwordx2 v[{56+2*ti}:{57+2*ti}], v6, {R4(WS_)}, s64 offen offset:{512*T} sc1")
        if hw == 0: a(f"s_branch {Lcd}")
    a.label(Lcd)
    a("v_lshrrev_b32 v2, 4, v0")
    a("v_xor_b32 v2, v2, v0")
    a("v_and_b32 v2, 1, v2")
    a("v_cmp_eq_u32 vcc, 0, v2")
    a("v_mov_b32 v3, 0x3f803f80")
    a("s_nop 1")
    for i in range(4): a(f"v_cndmask_b32 v{ONES+i}, 0, v3, vcc")
    a("s_lshl_b32 s31, s28, 11")
    a(f"s_add_u32 s31, s31, {QOFF}")
    a("v_add_u32 v2, s31, v1")
    a("v_and_b32 v3, 31, v0")
    a("v_lshlrev_b32 v3, 2, v3")
    a(f"v_add_u32 v3, {KMOFF}, v3")
    a("s_barrier")
    common.stamp(a, 4)
    a(f"ds_read_b128 v[{Q}:{Q+3}], v2")
    a(f"ds_read_b128 v[{Q+4}:{Q+7}], v2 offset:1024")
    a("ds_read_b32 v6, v3")
    a("s_waitcnt lgkmcnt(0)")
    for i in range(8):
        c = "0" if i == 0 else "v4"
        a(f"v_dot2_f32_bf16 v4, v{Q+i}, v{Q+i}, {c}")
    for dpp in ("quad_perm:[1,0,3,2]", "quad_perm:[2,3,0,1]", "row_half_mirror", "row_mirror"):
        a("s_nop 1")
        a(f"v_max_f32_dpp v6, v6, v6 {dpp} row_mask:0xf bank_mask:0xf")
    a("s_nop 1")
    a("v_mov_b32 v7, v6")
    a("v_mov_b32 v5, v4")
    a("s_nop 1")
    a("v_permlane16_swap_b32 v7, v6")
    a("v_permlane32_swap_b32 v5, v4")
    a("s_nop 1")
    a("v_max_f32 v6, v6, v7")
    a("v_add_f32 v4, v4, v5")
    a("v_mul_f32 v4, v6, v4")
    a("v_sqrt_f32 v4, v4")
    a("s_nop 0")
    a("v_sub_f32 v4, 0, v4")
    a("s_mov_b32 s7, 0")
    Lgo = a.newlabel("go"); Lrestart = a.newlabel("restart")
    a(f"s_branch {Lgo}")
    a.label(Lrestart)
    a("s_barrier")
    a.label(Lgo)
    for i in range(16): a(f"v_mov_b32 v{CN+i}, v4")
    for i in range(16): a(f"v_mov_b32 v{O+i}, 0")
    for i in range(4): a(f"v_mov_b32 v{L+i}, 0")
    for i in range(4, 8): a(f"v_mov_b32 v{P+i}, 0")
    for i in range(4, 8): a(f"v_mov_b32 v{VF[1]+i}, 0")
    a("v_mov_b32 v2, v1")
    a("v_add_u32 v3, 16384, v1")
    def kread(buf, areg, tile):
        return [f"ds_read_b128 v[{KF[buf]}:{KF[buf]+3}], v{areg} offset:{tile*2048}",
                f"ds_read_b128 v[{KF[buf]+4}:{KF[buf]+7}], v{areg} offset:{tile*2048+1024}"]
    def vread(buf, areg, tile):
        return [f"ds_read_b128 v[{VF[buf]}:{VF[buf]+3}], v{areg} offset:{8192+tile*2048}",
                f"ds_read_b128 v[{VF[buf]+4}:{VF[buf]+7}], v{areg} offset:{8192+tile*2048+1024}"]
    def qk(sb, kb, half):
        c = f"v[{CN}:{CN+15}]" if half == 0 else f"v[{S[sb]}:{S[sb]+15}]"
        return f"v_mfma_f32_32x32x16_bf16 v[{S[sb]}:{S[sb]+15}], v[{KF[kb]+4*half}:{KF[kb]+4*half+3}], v[{Q+4*half}:{Q+4*half+3}], {c}"
    def pv(vb, half):
        return f"v_mfma_f32_32x32x16_bf16 v[{O}:{O+15}], v[{VF[vb]+4*half}:{VF[vb]+4*half+3}], v[{P+4*half}:{P+4*half+3}], v[{O}:{O+15}]"
    def lsum(half):
        return f"v_mfma_f32_16x16x32_bf16 v[{L}:{L+3}], v[{ONES}:{ONES+3}], v[{P+4*half}:{P+4*half+3}], v[{L}:{L+3}]"
    for x in kread(0, 2, 0): a(x)
    for x in kread(1, 2, 1): a(x)
    for x in vread(0, 2, 0): a(x)
    a("s_waitcnt lgkmcnt(4)")
    a(qk(0, 0, 0)); a(qk(0, 0, 1))
    a("s_mov_b32 s8, 0")
    a("s_waitcnt vmcnt(0)")
    a("s_nop 11")
    Lloop = a.newlabel("loop")
    a.label(Lloop)
    for tl in range(4):
        sb = tl & 1; nb_ = sb ^ 1
        def ex(i): return f"v_exp_f32 v{S[sb]+i}, v{S[sb]+i}"
        def cv(i): return f"v_cvt_pk_bf16_f32 v{P+i}, v{S[sb]+2*i}, v{S[sb]+2*i+1}"
        a("s_waitcnt lgkmcnt(2)")
        a(qk(nb_, nb_, 0))
        for i in range(0, 4): a(ex(i))
        a(qk(nb_, nb_, 1))
        for i in range(4, 6): a(ex(i))
        if tl == 2: a("s_barrier")
        kr = kread(sb, 2, tl + 2) if tl < 2 else kread(sb, 3, tl - 2)
        for x in kr: a(x)
        for i in range(6, 8): a(ex(i))
        a(pv(nb_, 1))
        for i in range(0, 4): a(cv(i))
        a(ex(8))
        a(lsum(1))
        for i in range(9, 12): a(ex(i))
        a("s_waitcnt lgkmcnt(2)")
        a(pv(sb, 0))
        vr_ = vread(nb_, 2, tl + 1) if tl < 3 else vread(nb_, 3, 0)
        for x in vr_: a(x)
        for i in range(12, 16): a(ex(i))
        a(lsum(0))
        if tl == 3:
            a("v_mov_b32 v2, v3")
            a("v_add_u32 v3, 16384, v3")
            a("v_and_b32 v3, 0xffff, v3")
            a("s_add_u32 s8, s8, 1")
            a("s_cmp_lt_u32 s8, 16")
        for i in range(4, 8): a(cv(i))
    a(f"s_cbranch_scc1 {Lloop}")
    a("s_nop 1")
    a(pv(1, 1))
    a(lsum(1))
    a("s_waitcnt lgkmcnt(0)")
    a("s_nop 15")
    common.stamp(a, 5)
    a("v_and_b32 v5, 16, v0")
    a("v_cmp_ne_u32 vcc, 0, v5")
    a("s_nop 1")
    a(f"v_cndmask_b32 v5, v{L}, v{L+1}, vcc")
    Lok = a.newlabel("ok")
    a("s_cmp_lg_u32 s7, 0")
    a(f"s_cbranch_scc1 {Lok}")
    a(f"v_mov_b32 v6, {f32bits(2.0**-60)}")
    a("v_cmp_nge_f32 vcc, v5, v6")
    Lnf = a.newlabel("nf")
    a("s_cmp_eq_u64 vcc, 0")
    a(f"s_cbranch_scc1 {Lnf}")
    a(f"v_mov_b32 v6, {FLAG_OFF}")
    a("v_mov_b32 v7, 1")
    a("ds_write_b32 v6, v7")
    a.label(Lnf)
    a("s_waitcnt lgkmcnt(0)")
    a("s_barrier")
    a(f"v_mov_b32 v6, {FLAG_OFF}")
    a("ds_read_b32 v7, v6")
    a("s_waitcnt lgkmcnt(0)")
    a("v_readfirstlane_b32 s31, v7")
    a("s_nop 3")
    a("s_cmp_eq_u32 s31, 0")
    a(f"s_cbranch_scc1 {Lok}")
    a("s_mov_b32 s7, 1")
    a("v_mov_b32 v4, 0xff800000")
    a("s_lshl_b32 s31, s29, 17")
    a(f"s_add_u32 s31, s31, {WS_K}")
    a("s_mov_b32 s8, 0")
    Lfb = a.newlabel("fb")
    a.label(Lfb)
    a(f"buffer_load_dwordx4 v[{KF[0]}:{KF[0]+3}], v1, {R4(WS_)}, s31 offen sc1")
    a(f"buffer_load_dwordx4 v[{KF[0]+4}:{KF[0]+7}], v1, {R4(WS_)}, s31 offen offset:1024 sc1")
    a("s_waitcnt vmcnt(0)")
    a(f"v_mfma_f32_32x32x16_bf16 v[{S[0]}:{S[0]+15}], v[{KF[0]}:{KF[0]+3}], v[{Q}:{Q+3}], 0")
    a(f"v_mfma_f32_32x32x16_bf16 v[{S[0]}:{S[0]+15}], v[{KF[0]+4}:{KF[0]+7}], v[{Q+4}:{Q+7}], v[{S[0]}:{S[0]+15}]")
    a("s_nop 15")
    for i in range(8): a(f"v_max3_f32 v4, v4, v{S[0]+2*i}, v{S[0]+2*i+1}")
    a("s_add_u32 s31, s31, 2048")
    a("s_add_u32 s8, s8, 1")
    a("s_cmp_lt_u32 s8, 64")
    a(f"s_cbranch_scc1 {Lfb}")
    a("v_mov_b32 v5, v4")
    a("s_nop 1")
    a("v_permlane32_swap_b32 v5, v4")
    a("s_nop 1")
    a("v_max_f32 v4, v4, v5")
    a("v_sub_f32 v4, 0, v4")
    a(f"s_branch {Lrestart}")
    a.label(Lok)
    a("v_rcp_f32 v5, v5")
    a("s_nop 0")
    for i in range(16): a(f"v_mul_f32 v{O+i}, v{O+i}, v5")
    for i in range(8): a(f"v_cvt_pk_bf16_f32 v{P+i}, v{O+2*i}, v{O+2*i+1}")
    a("s_lshl_b32 s31, s30, 3")
    a("s_add_u32 s31, s31, s28")
    a("s_lshl_b32 s31, s31, 5")
    a("s_add_u32 s31, s31, s29")
    a("s_lshl_b32 s31, s31, 11")
    a(f"s_add_u32 s31, s31, {WS_O}")
    a(f"buffer_store_dwordx4 v[{P}:{P+3}], v1, {R4(WS_)}, s31 offen sc1")
    a(f"buffer_store_dwordx4 v[{P+4}:{P+7}], v1, {R4(WS_)}, s31 offen offset:1024 sc1")
    a("s_waitcnt vmcnt(0)")
    a("s_barrier")
    common.stamp(a, 6)
    Lg3 = a.newlabel("g3")
    a("s_cmp_lt_u32 s28, 4")
    a(f"s_cbranch_scc1 {Lg3}")
    common.endpgm(a, 0)
    a.label(Lg3)
    Lnp = a.newlabel("np3")
    a("s_cmp_lg_u32 s28, 0")
    a(f"s_cbranch_scc1 {Lnp}")
    publish(30, 29, FL_O)
    a("s_lshr_b32 s8, s3, 1")
    poll(8, FL_O, 32)
    a.label(Lnp)
    a("s_lshl_b32 s60, s3, 2")
    a("s_add_u32 s60, s60, s28")
    a("s_lshl_b32 s61, s60, 16")
    a(f"s_add_u32 s61, s61, {WS_O}")
    NPF = 24
    def OF(i): return 64 + 4 * (i % NPF)
    def oload(f):
        a(f"s_add_u32 s31, s61, {(f//4)*4096}")
        a(f"buffer_load_dwordx4 v[{OF(f)}:{OF(f)+3}], v1, {R4(WS_)}, s31 offen offset:{(f%4)*1024} sc1")
    a("v_and_b32 v2, 15, v0")
    a("v_lshrrev_b32 v3, 2, v2")
    a("v_and_b32 v2, 3, v2")
    a("v_lshrrev_b32 v4, 4, v0")
    a("v_and_b32 v4, 1, v4")
    a("v_lshlrev_b32 v4, 5, v4")
    a("v_lshl_add_u32 v4, v2, 3, v4")
    a("v_lshrrev_b32 v5, 1, v3")
    a("v_and_b32 v5, 1, v5")
    a("v_lshlrev_b32 v5, 6, v5")
    a("v_xor_b32 v4, v4, v5")
    a("v_lshrrev_b32 v5, 5, v0")
    a("v_lshl_add_u32 v3, v5, 2, v3")
    a("v_lshl_add_u32 v10, v3, 7, v4")
    a("v_xor_b32 v11, 64, v10")
    GA = 32
    for i in range(32): a(f"v_mov_b32 v{GA+i}, 0")
    def WF(b, u): return 16 + 8 * b + 4 * u
    def wread(fl, b):
        r = []
        for u in range(2):
            for z in range(2):
                r.append(f"ds_read_b64_tr_b16 v[{WF(b,u)+2*z}:{WF(b,u)+2*z+1}], v{8+u} offset:{fl*2048+z*1024}")
        return r
    a("s_barrier")
    common.stamp(a, 7)
    for f in range(NPF): oload(f)
    for c in range(8):
        a(f"v_add_u32 v8, {WCH(c)}, v10")
        a(f"v_add_u32 v9, {WCH(c)}, v11")
        for x in wread(0, 0): a(x)
        for fl in range(8):
            f = 8 * c + fl
            b = fl & 1
            if fl < 7:
                for x in wread(fl + 1, b ^ 1): a(x)
                a("s_waitcnt lgkmcnt(4)")
            else:
                a("s_waitcnt lgkmcnt(0)")
            rem = min(NPF - 1, 63 - f)
            a(f"s_waitcnt vmcnt({rem})")
            for u in range(2):
                a(f"v_mfma_f32_32x32x16_bf16 v[{GA+16*u}:{GA+16*u+15}], v[{WF(b,u)}:{WF(b,u)+3}], v[{OF(f)}:{OF(f)+3}], v[{GA+16*u}:{GA+16*u+15}]")
            if f + NPF < 64: oload(f + NPF)
    a("s_nop 15")
    a("v_and_b32 v2, 31, v0")
    a("v_lshlrev_b32 v2, 12, v2")
    a("v_lshl_add_u32 v2, v5, 4, v2")
    a("s_lshl_b32 s62, s60, 17")
    a("s_lshl_b32 s63, s4, 7")
    a("s_add_u32 s62, s62, s63")
    a("s_add_u32 s62, s62, 2048")
    for u in range(2):
        for gp in range(2):
            d = 64 + 8 * u + 4 * gp
            src = GA + 16 * u + 8 * gp
            for i in range(4):
                a(f"v_cvt_pk_bf16_f32 v{d+i}, v{src+2*i}, v{src+2*i+1}")
            a("s_nop 1")
            a(f"v_permlane32_swap_b32 v{d}, v{d+2}")
            a(f"v_permlane32_swap_b32 v{d+1}, v{d+3}")
            a("s_nop 1")
            a(f"buffer_store_dwordx4 v[{d}:{d+3}], v2, {R4(OUT)}, s62 offen offset:{64*u+32*gp}")
    common.endpgm(a, 0)

    a.label(LH)
    a("s_sub_u32 s28, s28, 8")
    def kreg(i): return 64 + 4 * i
    def vreg(j): return 92 + 4 * j
    a("s_lshr_b32 s80, s2, 4")
    a("s_lshl_b32 s80, s80, 2")
    a("s_add_u32 s80, s80, s28")
    a("s_and_b32 s81, s2, 15")
    a("s_lshl_b32 s82, s80, 5")
    a("s_lshl_b32 s83, s81, 6")
    a("v_lshrrev_b32 v11, 3, v0")
    a("v_and_b32 v12, 7, v0")
    a("s_lshl_b32 s84, s83, 3")
    a("v_lshlrev_b32 v13, 6, v12")
    for i in range(4):
        a(f"buffer_load_dwordx4 v[{140+4*i}:{143+4*i}], v13, {R4(SH)}, s84 offen offset:{16*i}")
    a("s_lshl_b32 s84, s82, 11")
    a("s_lshl_b32 s85, s83, 1")
    a("s_add_u32 s84, s84, s85")
    a("v_lshlrev_b32 v13, 13, v11")
    a("v_lshl_add_u32 v13, v12, 4, v13")
    a("v_add_u32 v13, s84, v13")
    for i in range(3):
        a(f"v_subrev_u32 v{8+i}, {2048*(3-i)}, v13")
    for i in range(3):
        a(f"buffer_load_dwordx4 v[{kreg(i)}:{kreg(i)+3}], v{8+i}, {R4(AK)}, 0 offen")
    for j in range(4):
        a(f"s_mov_b32 s84, {2048*j}")
        a(f"buffer_load_dwordx4 v[{kreg(3+j)}:{kreg(3+j)+3}], v13, {R4(AK)}, s84 offen")
        a(f"buffer_load_dwordx4 v[{vreg(j)}:{vreg(j)+3}], v13, {R4(AV)}, s84 offen")
    a("s_lshl_b32 s86, s28, 12")
    a(f"s_add_u32 s86, s86, {PPSCR}")
    a("v_lshlrev_b32 v14, 9, v11")
    a("v_lshl_add_u32 v14, v12, 4, v14")
    a("v_add_u32 v14, s86, v14")
    a("v_lshrrev_b32 v11, 4, v0")
    a("v_and_b32 v12, 15, v0")
    a("v_lshrrev_b32 v15, 2, v12")
    a("v_and_b32 v4, 3, v12")
    a("v_lshlrev_b32 v2, 3, v11")
    a("v_add_u32 v2, 3, v2")
    a("v_sub_u32 v2, v2, v15")
    a("v_lshlrev_b32 v2, 7, v2")
    a("v_lshl_add_u32 v2, v4, 3, v2")
    a("v_add_u32 v2, s86, v2")
    a("v_add_u32 v3, s83, v12")
    a(f"v_mul_u32_u24 v3, {UR_STRIDE}, v3")
    a("s_lshl_b32 s85, s82, 1")
    a(f"s_sub_u32 s85, {2*2040}, s85")
    a("v_add_u32 v3, s85, v3")
    a("v_lshlrev_b32 v4, 4, v11")
    a("v_sub_u32 v3, v3, v4")
    a("s_barrier")
    a("s_barrier")
    a("s_barrier")
    def unpack(dst, src):
        for e in range(8):
            if e % 2 == 0: a(f"v_lshlrev_b32 v{dst+e}, 16, v{src+(e>>1)}")
            else: a(f"v_and_b32 v{dst+e}, 0xffff0000, v{src+(e>>1)}")
    def KU(i): return [108, 116, 124, 132][i % 4]
    WT = 32
    a("s_waitcnt vmcnt(0)")
    for e in range(8):
        for i in range(4):
            src = 140 + 2 * e + (i >> 1)
            dst = WT + 4 * e + i
            if i % 2 == 0: a(f"v_lshlrev_b32 v{dst}, 16, v{src}")
            else: a(f"v_and_b32 v{dst}, 0xffff0000, v{src}")
    for i in range(3): unpack(KU(i), kreg(i))
    for j in range(4):
        if j in (1, 3): a("s_barrier")
        unpack(KU(j + 3), kreg(j + 3))
        unpack(24, vreg(j))
        for i in (3, 2, 1, 0):
            for e in range(8):
                if i == 3: a(f"v_mul_f32 v{16+e}, v{KU(j)+e}, v{WT+4*e+3}")
                else: a(f"v_fmac_f32 v{16+e}, v{KU(j+3-i)+e}, v{WT+4*e+i}")
        for e in range(8):
            a(f"v_mul_f32 v{16+e}, v{16+e}, v{24+e}")
        for q in range(4):
            a(f"v_cvt_pk_bf16_f32 v{vreg(j)+q}, v{16+2*q}, v{17+2*q}")
    a("s_barrier")
    for j in range(4):
        a(f"ds_write_b128 v14, v[{vreg(j)}:{vreg(j)+3}] offset:{128*j}")
    a("s_waitcnt lgkmcnt(0)")
    R = 64
    for dh in range(4):
        for z in range(2):
            a(f"ds_read_b64_tr_b16 v[{R+4*dh+2*z}:{R+4*dh+2*z+1}], v2 offset:{(1 - z) * 512 + dh * 32}")
    for dh in range(4):
        a(f"s_mov_b32 s85, {WS_UR0 + dh * 16 * UR_STRIDE}")
        a(f"s_waitcnt lgkmcnt({6-2*dh})")
        a(f"buffer_store_dwordx4 v[{R+4*dh}:{R+4*dh+3}], v3, {R4(WS_)}, s85 offen sc1")
    a("v_add_u32 v4, s83, v0")
    a(f"v_mul_u32_u24 v4, {UR_STRIDE}, v4")
    for i in range(4): a(f"v_mov_b32 v{16+i}, 0")
    a("s_cmp_eq_u32 s80, 0")
    a(f"s_mov_b32 s84, {WS_SIZE}")
    a(f"s_cselect_b32 s85, {WS_UR0 + 4096}, s84")
    a(f"buffer_store_dwordx4 v[16:19], v4, {R4(WS_)}, s85 offen sc1")
    a("v_mov_b32 v20, 0")
    a(f"buffer_load_dword v21, v20, {R4(DBG)}, 0 offen sc1")
    a("s_barrier")
    a("s_barrier")
    a("s_waitcnt vmcnt(0)")
    a("v_readfirstlane_b32 s9, v21")
    a("s_barrier")
    Lnu = a.newlabel("nu")
    a("s_cmp_lg_u32 s28, 0")
    a(f"s_cbranch_scc1 {Lnu}")
    a("s_lshr_b32 s84, s2, 4")
    publish(81, 84, FL_UR)
    a.label(Lnu)
    for s in range(9, 16): a("s_barrier")
    a("s_barrier")
    a(f"v_mov_b32 v2, {FLAG_OFF}")
    a("v_mov_b32 v3, 0")
    a("ds_write_b32 v2, v3")
    poll(29, FL_QKV, 32)
    vm = VM(a)
    a("s_lshl_b32 s60, s29, 17")
    a("s_lshl_b32 s61, s28, 11")
    a("s_add_u32 s60, s60, s61")
    def issue_chunk(c):
        for kv, base in ((0, WS_K), (1, WS_V)):
            for i in range(2):
                a(f"s_add_u32 m0, s61, {(c % 4)*16384 + kv*8192 + i*1024}")
                a(f"s_add_u32 s31, s60, {base + c*8192 + i*1024}")
                vm.op(f"buffer_load_dwordx4 v1, {R4(WS_)}, s31 offen sc1 lds", ("c", c))
    a("s_lshl_b32 s62, s29, 6")
    a("s_lshl_b32 s31, s30, 3")
    a("s_add_u32 s62, s62, s31")
    a("s_lshl_b32 s62, s62, 11")
    a("s_lshl_b32 s63, s28, 12")
    a("s_add_u32 s62, s62, s63")
    for i in range(4):
        a(f"s_add_u32 m0, s63, {QOFF + i*1024}")
        a(f"s_add_u32 s31, s62, {WS_Q + i*1024}")
        vm.op(f"buffer_load_dwordx4 v1, {R4(WS_)}, s31 offen sc1 lds")
    a("s_lshl_b32 s31, s29, 7")
    a(f"s_add_u32 s31, s31, {WS_KMAX}")
    a(f"s_mov_b32 m0, {KMOFF}")
    a("s_mov_b64 exec, 0xff")
    vm.op(f"buffer_load_dwordx4 v1, {R4(WS_)}, s31 offen sc1 lds")
    a("s_mov_b64 exec, -1")
    issue_chunk(0); issue_chunk(1)
    vm.wait(("c", 0))
    a("s_waitcnt lgkmcnt(0)")
    a("s_barrier")
    issue_chunk(2)
    a("v_lshrrev_b32 v4, 3, v0")
    a("v_and_b32 v5, 7, v0")
    a("v_lshrrev_b32 v6, 1, v4")
    a("v_and_b32 v6, 1, v6")
    a("v_lshlrev_b32 v6, 2, v6")
    a("v_xor_b32 v7, v5, v6")
    a("v_lshlrev_b32 v7, 4, v7")
    a("v_lshl_add_u32 v3, v4, 11, v7")
    a("s_lshl_b32 s70, s4, 7")
    a("s_lshl_b32 s71, s28, 14")
    a("s_add_u32 s70, s70, s71")
    a("s_lshl_b32 s71, s28, 10")
    def wchunk(c):
        for n in range(4):
            a(f"s_add_u32 m0, s71, {WCH(c) + n*4096}")
            a(f"s_add_u32 s31, s70, {(4*c+n)*65536}")
            vm.op(f"buffer_load_dwordx4 v3, {R4(WO)}, s31 offen lds", ("w", c))
    a("s_lshr_b32 s72, s2, 3")
    a("s_and_b32 s73, s2, 7")
    a("s_lshl_b32 s74, s73, 2")
    a("s_add_u32 s74, s74, s28")
    a("v_lshrrev_b32 v20, 4, v0")
    a("v_and_b32 v10, 15, v0")
    a("v_lshlrev_b32 v11, 11, v10")
    a("v_lshl_add_u32 v11, v20, 4, v11")
    a("v_lshlrev_b32 v12, 12, v10")
    a("v_lshl_add_u32 v12, v20, 4, v12")
    a("s_lshl_b32 s75, s72, 17")
    a("s_lshl_b32 s76, s74, 6")
    a("s_add_u32 s77, s75, s76")
    a("s_lshl_b32 s75, s72, 18")
    a("s_add_u32 s78, s75, s76")
    a("v_lshrrev_b32 v13, 2, v10")
    a("v_lshl_add_u32 v13, v20, 3, v13")
    a("v_lshlrev_b32 v13, 7, v13")
    a("v_and_b32 v14, 3, v10")
    a("v_lshl_add_u32 v13, v14, 3, v13")
    a("s_mul_i32 s79, s28, 3072")
    a(f"s_add_u32 s79, s79, {KMOFF + 192}")
    a("s_lshl_b32 s79, s28, 12")
    a(f"s_add_u32 s79, s79, {CONV0}")
    a("v_add_u32 v13, s79, v13")
    a("v_add_u32 v15, s79, v1")
    a("v_lshlrev_b32 v14, 12, v4")
    a("v_lshl_add_u32 v14, v5, 4, v14")
    a("s_lshl_b32 s75, s74, 17")
    a("s_lshl_b32 s76, s72, 7")
    a("s_add_u32 s75, s75, s76")
    a(f"s_add_u32 s75, s75, {WS_YT}")
    for c in range(15):
        if c == 1:
            Lny = a.newlabel("ny")
            a("s_cmp_lg_u32 s28, 0")
            a(f"s_cbranch_scc1 {Lny}")
            a("s_lshr_b32 s84, s2, 5")
            a("s_and_b32 s85, s2, 31")
            publish(84, 85, FL_Y)
            a.label(Lny)
        if c == 4:
            for ps in range(4):
                a(f"s_add_u32 s31, s77, {ps*32768}")
                vm.op(f"buffer_load_dwordx4 v[{32+4*ps}:{35+4*ps}], v11, {R4(AQ)}, s31 offen")
        if c == 6:
            poll(73, FL_Y, 32)
            for n in range(4):
                a(f"s_add_u32 s31, s75, {n*32768}")
                vm.op(f"buffer_load_dwordx4 v[{64+4*n}:{67+4*n}], v14, {R4(WS_)}, s31 offen sc1", "yl")
        if c == 8:
            vm.wait("yl")
            for n in range(4):
                a(f"ds_write_b128 v15, v[{64+4*n}:{67+4*n}] offset:{n*1024}")
            a("s_waitcnt lgkmcnt(0)")
            for ps in range(4):
                for z in range(2):
                    a(f"ds_read_b64_tr_b16 v[{48+4*ps+2*z}:{49+4*ps+2*z}], v13 offset:{z*512+ps*32}")
            for ps in range(4):
                a(f"s_waitcnt lgkmcnt({6-2*ps})")
                for dw in range(4):
                    qr, yr = 32 + 4 * ps + dw, 48 + 4 * ps + dw
                    a(f"v_lshlrev_b32 v16, 16, v{qr}")
                    a(f"v_and_b32 v17, 0xffff0000, v{qr}")
                    a(f"v_lshlrev_b32 v18, 16, v{yr}")
                    a(f"v_and_b32 v19, 0xffff0000, v{yr}")
                    a("v_mul_f32 v16, v16, v18")
                    a("v_mul_f32 v17, v17, v19")
                    a(f"v_cvt_pk_bf16_f32 v{80+4*ps+dw}, v16, v17")
                a(f"s_add_u32 s31, s78, {ps*65536}")
                vm.op(f"buffer_store_dwordx4 v[{80+4*ps}:{83+4*ps}], v12, {R4(OUT)}, s31 offen")
        if 10 <= c < 15: wchunk(c - 10)
        vm.wait(("c", c + 1))
        a("s_barrier")
        if c + 3 <= 15: issue_chunk(c + 3)
    a("s_barrier")
    a("s_barrier")
    a(f"v_mov_b32 v6, {FLAG_OFF}")
    a("ds_read_b32 v7, v6")
    a("s_waitcnt lgkmcnt(0)")
    a("v_readfirstlane_b32 s31, v7")
    a("s_nop 3")
    a("s_cmp_eq_u32 s31, 0")
    Lhd = a.newlabel("hd")
    a(f"s_cbranch_scc1 {Lhd}")
    a("s_mov_b32 s8, 0")
    def issue_dyn():
        a("s_and_b32 s84, s8, 3")
        a("s_lshl_b32 s84, s84, 14")
        a("s_add_u32 s84, s84, s61")
        a("s_lshl_b32 s85, s8, 13")
        a("s_add_u32 s85, s85, s60")
        for kv, base in ((0, WS_K), (1, WS_V)):
            for i in range(2):
                a(f"s_add_u32 m0, s84, {kv*8192 + i*1024}")
                a(f"s_add_u32 s31, s85, {base + i*1024}")
                a(f"buffer_load_dwordx4 v1, {R4(WS_)}, s31 offen sc1 lds")
        a("s_add_u32 s8, s8, 1")
    issue_dyn()
    a("s_waitcnt vmcnt(0)")
    a("s_barrier")
    L2p = a.newlabel("p2")
    a.label(L2p)
    issue_dyn()
    a("s_waitcnt vmcnt(0)")
    a("s_barrier")
    a("s_cmp_lt_u32 s8, 16")
    a(f"s_cbranch_scc1 {L2p}")
    a("s_barrier")
    a.label(Lhd)
    a("s_barrier")
    for c in range(5, 8): wchunk(c)
    a("s_waitcnt vmcnt(0)")
    common.endpgm(a, 0)
    a.label(Lend)
    a("s_endpgm")
    return kernel_desc(name, 160)
```

```python
class Asm:
    def __init__(self):
        self.lines = []
        self.lbl = 0
    def __call__(self, s):
        for ln in s.split("\n"):
            ln = ln.strip()
            if ln:
                self.lines.append("    " + ln if not ln.endswith(":") else ln)
    def label(self, name):
        self.lines.append(name + ":")
    def newlabel(self, base):
        self.lbl += 1
        return f"L_{base}_{self.lbl}"
    def text(self):
        return "\n".join(self.lines) + "\n"

def vr(a, n=1):
    return f"v{a}" if n == 1 else f"v[{a}:{a+n-1}]"
def sr(a, n=1):
    return f"s{a}" if n == 1 else f"s[{a}:{a+n-1}]"

MB = 1 << 20
WS_Q = 0
WS_K = 4 * MB
WS_V = 8 * MB
WS_O = 12 * MB
WS_UR0 = 16 * MB
WS_UR1 = 21 * MB
UR_STRIDE = 4224
WS_YT = 26 * MB
WS_KMAX = 30 * MB
WS_FLAG = 30 * MB + 65536
WS_SIZE = 40 * MB

KA_AQ, KA_AK, KA_AV, KA_SHIFT, KA_SSMK, KA_SSMD, KA_X, KA_WQKV, KA_WO, KA_OUT, KA_DBG, KA_WS = [8 * i for i in range(12)]

def srd(a, s, base_pair, nbytes):
    a(f"s_mov_b32 s{s}, s{base_pair}")
    a(f"s_and_b32 s{s+1}, s{base_pair+1}, 0xffff")
    a(f"s_mov_b32 s{s+2}, {nbytes}")
    a(f"s_mov_b32 s{s+3}, 0x00020000")

def kernel_begin(a, name):
    a.lines.append(f".globl {name}")
    a.lines.append(".p2align 8")
    a.lines.append(f".type {name},@function")
    a.lines.append(f"{name}:")

def kernel_desc(name, vgpr, sgpr=102):
    import common
    if common.PROF: vgpr = max(vgpr, common.PV + 2)
    acc = (vgpr + 3) // 4 * 4
    return f""".p2align 6
.amdhsa_kernel {name}
  .amdhsa_next_free_vgpr {vgpr}
  .amdhsa_next_free_sgpr {sgpr}
  .amdhsa_accum_offset {acc}
  .amdhsa_group_segment_fixed_size 0
  .amdhsa_kernarg_size 96
  .amdhsa_user_sgpr_count 2
  .amdhsa_user_sgpr_kernarg_segment_ptr 1
  .amdhsa_system_sgpr_workgroup_id_x 1
.end_amdhsa_kernel
"""

PROF = False
PV = 166
WS_PROF = 32 * MB
def stamp(a, k):
    if not PROF: return
    a("s_memrealtime s[96:97]")
    a("s_memtime s[100:101]")
    a("s_waitcnt lgkmcnt(0)")
    a(f"v_writelane_b32 v{PV}, s96, {k}")
    a(f"v_writelane_b32 v{PV}, s100, {32 + (k & 15)}" if k != 63 else f"v_writelane_b32 v{PV}, s100, 62")
def prof_begin(a):
    if not PROF: return
    a("s_mov_b32 s98, s28")
    a(f"v_mov_b32 v{PV}, 0")
    stamp(a, 0)
DBGOUT = False
def endpgm(a, kidx):
    if PROF and DBGOUT:
        stamp(a, 63)
        a("s_mov_b64 exec, -1")
        a(f"v_readlane_b32 s96, v{PV}, 0")
        a(f"v_readlane_b32 s97, v{PV}, 63")
        a("s_not_b32 s96, s96")
        a(f"v_mov_b32 v{PV+1}, 0")
        a("s_mov_b64 exec, 1")
        a("v_mov_b32 v2, s96")
        a("v_mov_b32 v3, s97")
        a(f"buffer_atomic_umax v2, v{PV+1}, s[32:35], 0 offen offset:4")
        a(f"buffer_atomic_umax v3, v{PV+1}, s[32:35], 0 offen offset:8")
        a("s_mov_b64 exec, -1")
        L = a.newlabel("dbgo")
        a("s_lshl_b32 s96, s2, 4")
        a("s_add_u32 s96, s96, s98")
        a("s_cmp_lg_u32 s96, 0")
        a(f"s_cbranch_scc1 {L}")
        a(f"v_lshlrev_b32 v{PV+1}, 2, v0")
        a("s_mov_b64 exec, 0xff")
        a(f"buffer_store_dword v{PV}, v{PV+1}, s[32:35], 0 offen offset:16")
        a.label(L)
        a("s_endpgm")
        return
    if PROF:
        stamp(a, 63)
        a("s_mov_b64 exec, -1")
        a(f"s_lshl_b32 s96, s2, 4")
        a("s_add_u32 s96, s96, s98")
        a("s_lshl_b32 s96, s96, 8")
        a(f"s_add_u32 s96, s96, {WS_PROF + kidx * 256 * 16 * 256}")
        a(f"v_lshlrev_b32 v{PV+1}, 2, v0")
        a(f"buffer_store_dword v{PV}, v{PV+1}, s[12:15], s96 offen")
    a("s_endpgm")

class VM:
    def __init__(self, a):
        self.a = a; self.n = 0; self.tags = {}
    def op(self, text, tag=None):
        self.a(text); self.n += 1
        if tag is not None: self.tags[tag] = self.n
    def wait(self, tag):
        k = self.n - self.tags[tag]
        self.a(f"s_waitcnt vmcnt({min(k, 63)})")

def stamp_dyn(a, sreg, base):
    if not PROF: return
    a("s_memrealtime s[96:97]")
    a(f"s_add_u32 m0, s{sreg}, {base}")
    a("s_waitcnt lgkmcnt(0)")
    a(f"v_writelane_b32 v{PV}, s96, m0")
```

```python
import sys
from common import *
import k1
HEADER = open("concat_heads__ssm_conv_h3__softmax_full_mha__prompt.s.ref").read().split("; Override launch")[0]
def build(which, path):
    a = Asm()
    launches = []
    descs = []
    if "k1" in which:
        descs.append(k1.gen_k1(a)); launches.append(f"; @launch kernel=k1_kernel grid=(256,1,1) block=(512,1,1) lds={k1.K1_LDS}")
    if "k2" in which:
        import k2
        descs.append(k2.gen_k2(a)); launches.append(f"; @launch kernel=k2_kernel grid=(256,1,1) block=({k2.K2_BLOCK},1,1) lds={k2.K2_LDS}")
    if "k3" in which:
        import k3
        descs.append(k3.gen_k3(a)); launches.append(f"; @launch kernel=k3_kernel grid=(256,1,1) block=(512,1,1) lds={k3.K3_LDS}")
    if "kf" in which:
        import kf
        if "single" in which:
            descs.append(kf.gen_kf(a, "concat_heads__ssm_conv_h3__softmax_full_mha__prompt_kernel")); launches.append(f"; @launch grid=(256,1,1) block=({kf.KF_BLOCK},1,1) lds={kf.KF_LDS}")
        else:
            descs.append(kf.gen_kf(a)); launches.append(f"; @launch kernel=kf_kernel grid=(256,1,1) block=({kf.KF_BLOCK},1,1) lds={kf.KF_LDS}")
    txt = HEADER + "\n".join(launches) + "\n" + '.amdgcn_target "amdgcn-amd-amdhsa--gfx950"\n.text\n' + a.text() + '.section .rodata,"a"\n' + "".join(descs)
    open(path, "w").write(txt)
if __name__ == "__main__":
    import common
    if len(sys.argv) > 3 and sys.argv[3] in ("prof", "dbg"): common.PROF = True
    if len(sys.argv) > 3 and sys.argv[3] == "dbg": common.DBGOUT = True
    build(sys.argv[1].split(","), sys.argv[2])
```

```python
import struct, os
from common import *
import common
def f32bits(x): return struct.unpack("<I", struct.pack("<f", x))[0]
VAR = os.environ.get('KFVAR', '')
QSCALE = 1.4426950408889634 / (32 ** 0.5)

KF_LDS = 163840
KF_BLOCK = 768
SLOT = 40960
PPSCR = 147456
CONV0 = 65536
CP_STRIDE = 4160
H_OFF = 4 * CP_STRIDE
CH_BYTES = H_OFF + 4608
CPB = [103168, 81920, 144128, 122880]
HB = [65536, 98560, 70144, 139520]
FLAG_OFF = 160768
QOFF = 49152
KMOFF = FLAG_OFF + 64
def WCH(c): return CONV0 + c * 16384 if c < 5 else (c - 5) * 16384
FL_O, FL_Y, FL_UR, FL_QKV = 0, 8, 16, 32
PPB = int(os.environ.get('KFPPB', '0'))
PUBM = int(os.environ.get('KFPUBM', '2'))

Q = 8; CN = 16; O = 32; L = 48; ONES = 52
S = [64, 80]; P = 96; KF = [112, 120]; VF = [128, 136]
WS_, SSMK, WO, AQ, DBG, OUT, XS, WQ, AK, AV, SH = 12, 16, 20, 24, 32, 36, 40, 44, 48, 52, 56
def R4(b): return f"s[{b}:{b+3}]"

def gen_kf(a, name="kf_kernel"):
    common.PV = 166
    kernel_begin(a, name)
    Lend = a.newlabel("kfend")
    a("s_cmp_ge_u32 s2, 256")
    a(f"s_cbranch_scc1 {Lend}")
    a("s_load_dwordx16 s[60:75], s[0:1], 0")
    a("s_load_dwordx8 s[76:83], s[0:1], 64")
    a("v_lshrrev_b32 v1, 6, v0")
    a("s_nop 0")
    a("v_readfirstlane_b32 s28, v1")
    a("v_and_b32 v0, 63, v0")
    common.prof_begin(a)
    a("s_and_b32 s31, s2, 7")
    a("s_lshr_b32 s8, s2, 3")
    a("s_lshl_b32 s29, s31, 2")
    a("s_lshr_b32 s9, s8, 3")
    a("s_add_u32 s29, s29, s9")
    a("s_and_b32 s30, s8, 7")
    a("s_and_b32 s3, s31, 3")
    a("s_lshl_b32 s3, s3, 2")
    a("s_and_b32 s9, s8, 3")
    a("s_add_u32 s3, s3, s9")
    a("s_lshr_b32 s4, s31, 2")
    a("s_lshl_b32 s4, s4, 3")
    a("s_lshr_b32 s9, s8, 2")
    a("s_add_u32 s4, s4, s9")
    a("s_and_b32 s5, s31, 1")
    a("s_lshl_b32 s5, s5, 3")
    a("s_and_b32 s9, s8, 7")
    a("s_add_u32 s5, s5, s9")
    a("s_lshr_b32 s6, s31, 1")
    a("s_lshl_b32 s6, s6, 2")
    a("s_lshr_b32 s9, s8, 3")
    a("s_add_u32 s6, s6, s9")
    a("v_lshlrev_b32 v1, 4, v0")
    a("s_waitcnt lgkmcnt(0)")
    srd(a, WS_, 82, WS_SIZE)
    srd(a, SSMK, 68, 1024 * 2048 * 2)
    srd(a, WO, 76, 1024 * 1024 * 2)
    srd(a, AQ, 60, 2048 * 1024 * 2)
    srd(a, DBG, 80, 256)
    srd(a, OUT, 78, 2048 * 2048 * 2)
    srd(a, XS, 72, 2048 * 1024 * 2)
    srd(a, WQ, 74, 1024 * 3072 * 2)
    srd(a, AK, 62, 2048 * 1024 * 2)
    srd(a, AV, 64, 2048 * 1024 * 2)
    srd(a, SH, 66, 1024 * 4 * 2)
    a("s_mov_b32 s10, s70")
    a("s_mov_b32 s11, s71")

    def get_nonce(v=2):
        Ln = a.newlabel("tag"); Lnd = a.newlabel("tagd")
        a(f"v_mov_b32 v{v}, 0")
        a("s_mov_b32 s95, 0")
        a.label(Ln)
        a(f"buffer_load_dword v{v+1}, v{v}, {R4(DBG)}, 0 offen sc1")
        a("s_add_u32 s95, s95, 1")
        a("s_waitcnt vmcnt(0)")
        a(f"v_readfirstlane_b32 s9, v{v+1}")
        a("s_nop 3")
        a("s_cmp_lg_u32 s9, 0")
        a(f"s_cbranch_scc1 {Lnd}")
        a("s_sleep 4")
        a("s_cmp_lt_u32 s95, 0x400000")
        a(f"s_cbranch_scc1 {Ln}")
        a.label(Lnd)
    def publish(line_sreg, entry_sreg, base, v=8):
        a(f"s_lshl_b32 s31, s{line_sreg}, 8")
        a(f"s_lshl_b32 s95, s{entry_sreg}, 2")
        a("s_add_u32 s31, s31, s95")
        a(f"s_add_u32 s31, s31, {WS_FLAG + base*256}")
        a(f"v_mov_b32 v{v}, 0")
        a(f"v_mov_b32 v{v+1}, s9")
        a("s_mov_b64 exec, 1")
        a(f"buffer_store_dword v{v+1}, v{v}, {R4(WS_)}, s31 offen sc1")
        a("s_mov_b64 exec, -1")
    def poll(line_sreg, base, n, v=8):
        Lp = a.newlabel("poll"); Lpd = a.newlabel("polld")
        a(f"s_lshl_b32 s94, s{line_sreg}, 8")
        a(f"s_add_u32 s94, s94, {WS_FLAG + base*256}")
        a(f"v_and_b32 v{v}, {n-1}, v0")
        a(f"v_lshlrev_b32 v{v}, 2, v{v}")
        a("s_mov_b32 s95, 0")
        a.label(Lp)
        a(f"buffer_load_dword v{v+1}, v{v}, {R4(WS_)}, s94 offen sc1")
        a("s_add_u32 s95, s95, 1")
        a("s_waitcnt vmcnt(0)")
        a(f"v_cmp_ne_u32 vcc, s9, v{v+1}")
        a("s_cmp_eq_u64 vcc, 0")
        a(f"s_cbranch_scc1 {Lpd}")
        a("s_sleep 4")
        a("s_cmp_lt_u32 s95, 0x400000")
        a(f"s_cbranch_scc1 {Lp}")
        a.label(Lpd)

    LC = a.newlabel("roleC"); LD = a.newlabel("roleD"); LP = a.newlabel("roleP"); LH = a.newlabel("roleH")
    Lcdma = a.newlabel("convdma"); Lconv = a.newlabel("conv")
    a("s_cmp_lt_u32 s28, 4")
    a(f"s_cbranch_scc1 {LC}")
    a("s_cmp_lt_u32 s28, 6")
    a(f"s_cbranch_scc1 {LD}")
    a("s_cmp_lt_u32 s28, 8")
    a(f"s_cbranch_scc1 {LP}")
    a(f"s_branch {LH}")

    a.label(LD)
    a("s_sub_u32 s60, s28, 4")
    a("v_lshrrev_b32 v4, 3, v0")
    a("v_and_b32 v5, 7, v0")
    a("v_lshrrev_b32 v6, 1, v4")
    a("v_xor_b32 v7, v5, v6")
    a("v_lshlrev_b32 v7, 4, v7")
    a("v_lshl_add_u32 v10, v4, 11, v7")
    a("v_xor_b32 v11, 64, v10")
    a("v_and_b32 v6, 1, v6")
    a("v_lshlrev_b32 v6, 2, v6")
    a("v_xor_b32 v7, v5, v6")
    a("v_lshlrev_b32 v7, 4, v7")
    a("v_mul_u32_u24 v12, 6144, v4")
    a("v_add_u32 v12, v12, v7")
    a("s_lshl_b32 s31, s5, 18")
    a("s_lshl_b32 s61, s60, 17")
    a("s_add_u32 s61, s61, s31")
    a("s_lshl_b32 s62, s6, 7")
    a("s_lshl_b32 s70, s60, 13")
    a("s_mul_i32 s71, s60, 12288")
    a("s_add_u32 s71, s71, 16384")
    a("s_mov_b32 s72, 0")
    a("s_mov_b32 s73, 0")
    Ld1 = a.newlabel("d1")
    a("s_cmp_eq_u32 s60, 1")
    a(f"s_cbranch_scc1 {Ld1}")
    for lw in range(2):
        if lw == 1: a.label(Ld1)
        def issue_stage():
            a("s_lshl_b32 s75, s72, 7")
            a("s_add_u32 s75, s75, s61")
            a(f"s_mul_i32 s76, s72, {64*6144}")
            a("s_add_u32 s76, s76, s62")
            a("s_add_u32 s77, s70, s73")
            a("s_add_u32 s78, s71, s73")
            for j in range(8):
                a(f"s_add_u32 m0, s77, {j*1024}")
                a(f"s_add_u32 s31, s75, {j*16384}")
                a(f"buffer_load_dwordx4 v{10 + (j & 1)}, {R4(XS)}, s31 offen lds")
            for j in range(12):
                i = 12 * lw + j
                a(f"s_add_u32 m0, s78, {j*1024}")
                a(f"s_add_u32 s31, s76, {(i & 7)*49152 + (i >> 3)*2048}")
                a(f"buffer_load_dwordx4 v12, {R4(WQ)}, s31 offen lds")
            a("s_add_u32 s72, s72, 1")
            a("s_cmp_eq_u32 s73, 0")
            a(f"s_cselect_b32 s73, {3*SLOT}, s73")
            a(f"s_sub_u32 s73, s73, {SLOT}")
        issue_stage()
        issue_stage()
        a("s_waitcnt vmcnt(20)")
        a("s_barrier")
        a("s_mov_b32 s79, 0")
        Lll = a.newlabel("dl")
        a.label(Lll)
        issue_stage()
        a("s_waitcnt vmcnt(20)")
        a("s_barrier")
        a("s_add_u32 s79, s79, 1")
        a("s_cmp_lt_u32 s79, 14")
        a(f"s_cbranch_scc1 {Lll}")
        a(f"s_branch {Lcdma}")

    a.label(LP)
    Lnt = a.newlabel("notag")
    a("s_lshl_b32 s31, s2, 4")
    a("s_add_u32 s31, s31, s28")
    a("s_cmp_lg_u32 s31, 6")
    a(f"s_cbranch_scc1 {Lnt}")
    a("s_memrealtime s[60:61]")
    a("s_waitcnt lgkmcnt(0)")
    a("s_or_b32 s60, s60, 1")
    a("v_mov_b32 v2, s60")
    a("v_mov_b32 v4, 0")
    a("s_mov_b64 exec, 1")
    a(f"buffer_store_dword v2, v4, {R4(DBG)}, 0 offen sc1")
    a("s_mov_b64 exec, -1")
    a.label(Lnt)
    a("s_lshr_b32 s8, s2, 3")
    a("v_lshrrev_b32 v6, 1, v0")
    a("v_lshlrev_b32 v6, 11, v6")
    a("v_and_b32 v7, 1, v0")
    a("v_lshl_add_u32 v6, v7, 7, v6")
    a("s_and_b32 s31, s2, 1")
    a("s_lshl_b32 s31, s31, 10")
    a("s_lshl_b32 s60, s8, 5")
    a("s_add_u32 s31, s31, s60")
    a("s_lshl_b32 s62, s31, 11")
    a("v_lshrrev_b32 v8, 5, v0")
    a(f"v_mul_u32_u24 v8, {64*6144}, v8")
    a("v_bfe_u32 v7, v0, 4, 1")
    a("v_mul_u32_u24 v7, 6144, v7")
    a("v_add_u32 v8, v8, v7")
    a("v_bfe_u32 v7, v0, 2, 2")
    a("v_min_u32 v7, 2, v7")
    a("v_lshl_add_u32 v8, v7, 11, v8")
    a("v_and_b32 v7, 3, v0")
    a("v_lshl_add_u32 v8, v7, 7, v8")
    a("s_lshl_b32 s8, s8, 1")
    a("s_mul_i32 s63, s8, 6144")
    a("s_bfe_u32 s31, s2, 0x20001")
    a("s_lshl_b32 s31, s31, 9")
    a("s_add_u32 s63, s63, s31")
    a("s_cmp_eq_u32 s28, 6")
    a(f"s_cselect_b32 s88, s{XS}, s{WQ}")
    a(f"s_cselect_b32 s89, s{XS+1}, s{WQ+1}")
    a(f"s_cselect_b32 s90, s{XS+2}, s{WQ+2}")
    a("s_mov_b32 s91, 0x00020000")
    a("s_cselect_b32 s62, s62, s63")
    a(f"s_mov_b32 s31, {2*64*6144}")
    a("s_cselect_b32 s65, 256, s31")
    a("s_cselect_b64 vcc, -1, 0")
    a("v_cndmask_b32 v6, v8, v6, vcc")
    def pf():
        a("s_add_u32 s62, s62, s65")
        a("buffer_load_dword v9, v6, s[88:91], s62 offen sc1")
    pf()
    a(f"s_mul_i32 s66, s2, {4*UR_STRIDE}")
    a(f"s_add_u32 s66, s66, {WS_UR0}")
    a("s_lshl_b32 s67, s2, 14")
    def dma_h(ch):
        for pc in range(4):
            a(f"s_mov_b32 m0, {HB[ch] + 512 + pc*1024}")
            a(f"s_add_u32 s31, s67, {ch*4096 + pc*1024}")
            a(f"buffer_load_dwordx4 v1, {R4(SSMK)}, s31 offen lds")
        a(f"s_mov_b32 s31, {WS_SIZE}")
        a("s_mov_b32 exec_hi, 0")
        a(f"s_mov_b32 m0, {HB[ch]}")
        a("s_nop 0")
        a(f"buffer_load_dwordx4 v1, {R4(WS_)}, s31 offen lds")
        a("s_mov_b64 exec, -1")
    def dma_u(ch):
        for cc in range(4):
            for pc in range(4):
                a(f"s_mov_b32 m0, {CPB[ch] + cc*CP_STRIDE + pc*1024}")
                a(f"s_add_u32 s31, s66, {ch*UR_STRIDE + cc*2 + pc*1024}")
                a(f"buffer_load_dwordx4 v1, {R4(WS_)}, s31 offen sc1 lds")
        a(f"s_mov_b32 s31, {WS_SIZE}")
        a("s_mov_b64 exec, 3")
        for cc in range(4):
            a(f"s_mov_b32 m0, {CPB[ch] + cc*CP_STRIDE + 4096}")
            a("s_nop 0")
            a(f"buffer_load_dwordx4 v1, {R4(WS_)}, s31 offen lds")
        a("s_mov_b64 exec, -1")
    def by_wave(f6, f7):
        L7 = a.newlabel("w7"); Le = a.newlabel("we")
        a("s_bitcmp1_b32 s28, 0")
        a(f"s_cbranch_scc1 {L7}")
        f6()
        a(f"s_branch {Le}")
        a.label(L7)
        f7()
        a.label(Le)
    UP = int(os.environ.get('KFUP', '11'))
    for s in range(15):
        if s == 4: get_nonce()
        a("s_barrier")
        if s % 2 == 0 and s <= 10: pf()
        if s == 3:
            a("v_lshlrev_b32 v10, 7, v0")
            a("s_and_b32 s31, s28, 1")
            a("s_lshl_b32 s31, s31, 13")
            a("s_add_u32 s31, s31, s67")
            a(f"buffer_load_dword v9, v10, {R4(SSMK)}, s31 offen sc1")
        if s == UP:
            a("s_lshr_b32 s68, s2, 4")
            poll(68, FL_UR, 16)
            by_wave(lambda: (dma_u(3), dma_h(3)), lambda: dma_u(2))
    by_wave(lambda: (dma_u(1), dma_h(1)), lambda: dma_u(0))
    a("s_barrier")
    a("s_waitcnt vmcnt(0)")
    a(f"s_branch {Lconv}")
    a.label(Lcdma)
    a("s_lshl_b32 s67, s2, 14")
    a("s_waitcnt vmcnt(0)")
    a("s_barrier")
    by_wave(lambda: dma_h(0), lambda: dma_h(2))
    a("s_waitcnt vmcnt(0)")
    a(f"s_branch {Lconv}")

    a.label(LC)
    a("s_and_b32 s60, s28, 1")
    a("s_lshr_b32 s61, s28, 1")
    a("v_and_b32 v56, 31, v0")
    a("v_lshrrev_b32 v2, 5, v0")
    a("v_lshrrev_b32 v3, 1, v56")
    a("v_and_b32 v3, 7, v3")
    a("s_lshl_b32 s62, s60, 13")
    a("v_lshlrev_b32 v9, 7, v56")
    a("v_add_u32 v9, s62, v9")
    for ks in range(4):
        a(f"v_or_b32 v15, {2*ks}, v2")
        a("v_xor_b32 v15, v15, v3")
        a(f"v_lshl_add_u32 v{4+ks}, v15, 4, v9")
    a("v_and_b32 v56, 15, v0")
    a("v_lshrrev_b32 v3, 2, v56")
    a("v_and_b32 v56, 3, v56")
    a("v_lshrrev_b32 v15, 4, v0")
    a("v_and_b32 v15, 1, v15")
    a("v_lshlrev_b32 v15, 5, v15")
    a("v_lshl_add_u32 v15, v56, 3, v15")
    a("s_lshl_b32 s62, s61, 6")
    a("v_add_u32 v15, s62, v15")
    a("v_lshrrev_b32 v56, 1, v3")
    a("v_and_b32 v56, 1, v56")
    a("v_lshlrev_b32 v56, 6, v56")
    a("v_xor_b32 v15, v15, v56")
    a("v_lshl_add_u32 v3, v2, 3, v3")
    a("v_lshl_add_u32 v8, v3, 7, v15")
    a("v_add_u32 v8, 16384, v8")
    for i in range(4): a(f"v_mov_b32 v{10+i}, v{4+i}")
    a("v_mov_b32 v14, v8")
    for i in range(96): a(f"v_mov_b32 v{64+i}, 0")
    def Xf(b, mt): return 16 + 8 * b + 4 * mt
    def Wf(b, p): return 32 + 12 * b + 4 * p
    def acc(mt, p): return 64 + 16 * (3 * mt + p)
    def reads(ks, b):
        r = []
        for mt in range(2):
            r.append(f"ds_read_b128 v[{Xf(b,mt)}:{Xf(b,mt)+3}], v{10+ks} offset:{mt*4096}")
        for p in range(3):
            for z in range(2):
                r.append(f"ds_read_b64_tr_b16 v[{Wf(b,p)+2*z}:{Wf(b,p)+2*z+1}], v14 offset:{p*8192+ks*2048+z*512}")
        return r
    def mfmas(b):
        r = []
        for mt in range(2):
            for p in range(3):
                A, B = (Wf(b, p), Xf(b, mt)) if p < 2 else (Xf(b, mt), Wf(b, p))
                r.append(f"v_mfma_f32_32x32x16_bf16 v[{acc(mt,p)}:{acc(mt,p)+15}], v[{A}:{A+3}], v[{B}:{B+3}], v[{acc(mt,p)}:{acc(mt,p)+15}]")
        return r
    a("s_mov_b32 s72, 0")
    a("s_mov_b32 s73, 0")
    a("s_barrier")
    common.stamp(a, 1)
    for x in reads(0, 0): a(x)
    Ls = a.newlabel("stage"); Llast = a.newlabel("last")
    a.label(Ls)
    for ks in range(3):
        b = ks & 1
        a("s_waitcnt lgkmcnt(0)")
        m = mfmas(b); r = reads(ks + 1, b ^ 1)
        a(m[0]); [a(x) for x in r[0:4]]
        a(m[1]); [a(x) for x in r[4:8]]
        for x in m[2:]: a(x)
    a("s_waitcnt lgkmcnt(0)")
    a("s_cmp_eq_u32 s72, 15")
    a(f"s_cbranch_scc1 {Llast}")
    a("s_barrier")
    a("s_cmp_eq_u32 s73, 0")
    a(f"s_cselect_b32 s73, {3*SLOT}, s73")
    a(f"s_sub_u32 s73, s73, {SLOT}")
    for i in range(4): a(f"v_add_u32 v{10+i}, s73, v{4+i}")
    a("v_add_u32 v14, s73, v8")
    for x in reads(0, 0): a(x)
    for x in mfmas(1): a(x)
    a("s_add_u32 s72, s72, 1")
    a(f"s_branch {Ls}")
    a.label(Llast)
    for x in mfmas(1): a(x)
    a("v_mov_b32 v56, 0")
    a(f"buffer_load_dword v57, v56, {R4(DBG)}, 0 offen sc1")
    a("s_nop 15")
    common.stamp(a, 2)
    a("s_lshl_b32 s62, s6, 1")
    a("s_add_u32 s62, s62, s61")
    a("s_lshl_b32 s63, s5, 2")
    a("s_lshl_b32 s64, s60, 1")
    a("s_add_u32 s63, s63, s64")
    a("s_lshl_b32 s64, s62, 6")
    a("s_add_u32 s64, s64, s63")
    a("s_lshl_b32 s64, s64, 11")
    a(f"s_mov_b32 s66, {f32bits(QSCALE)}")
    for p in (1, 2, 0):
        for mt in range(2):
            base = acc(mt, p)
            if p == 0:
                for i in range(16): a(f"v_mul_f32 v{base+i}, s66, v{base+i}")
            for i in range(8):
                a(f"v_cvt_pk_bf16_f32 v{base+i}, v{base+2*i}, v{base+2*i+1}")
            a(f"s_add_u32 s65, s64, {[WS_Q, WS_K, WS_V][p] + mt*2048}")
            a(f"buffer_store_dwordx4 v[{base}:{base+3}], v1, {R4(WS_)}, s65 offen sc1")
            a(f"buffer_store_dwordx4 v[{base+4}:{base+7}], v1, {R4(WS_)}, s65 offen offset:1024 sc1")
    for mt in range(2):
        d = acc(mt, 1)
        for i in range(8):
            c = "0" if i == 0 else f"v{16+mt}"
            a(f"v_dot2_f32_bf16 v{16+mt}, v{d+i}, v{d+i}, {c}")
    a("s_nop 3")
    a("v_mov_b32 v18, v16")
    a("v_mov_b32 v19, v17")
    a("s_nop 1")
    a("v_permlane32_swap_b32 v18, v16")
    a("v_permlane32_swap_b32 v19, v17")
    a("s_nop 1")
    a("v_add_f32 v16, v16, v18")
    a("v_add_f32 v17, v17, v19")
    a("v_max_f32 v16, v16, v17")
    for dpp in ("quad_perm:[1,0,3,2]", "quad_perm:[2,3,0,1]", "row_half_mirror", "row_mirror"):
        a("s_nop 1")
        a(f"v_max_f32_dpp v16, v16, v16 {dpp} row_mask:0xf bank_mask:0xf")
    a("s_nop 1")
    a("v_mov_b32 v17, v16")
    a("s_nop 1")
    a("v_permlane16_swap_b32 v17, v16")
    a("s_nop 1")
    a("v_max_f32 v16, v16, v17")
    a("s_lshl_b32 s64, s62, 5")
    a("s_lshl_b32 s65, s5, 1")
    a("s_add_u32 s64, s64, s65")
    a("s_add_u32 s64, s64, s60")
    a("s_lshl_b32 s64, s64, 2")
    a(f"s_add_u32 s64, s64, {WS_KMAX}")
    a("s_mov_b64 exec, 1")
    a(f"buffer_store_dword v16, v56, {R4(WS_)}, s64 offen sc1")
    a("s_mov_b64 exec, -1")
    a("s_mov_b32 s86, s62")
    a("s_lshl_b32 s87, s5, 1")
    a("s_add_u32 s87, s87, s60")
    a("s_waitcnt vmcnt(13)")
    a("v_readfirstlane_b32 s9, v57")

    a.label(Lconv)
    a("s_and_b32 s60, s28, 3")
    a("s_lshr_b32 s61, s28, 2")
    a("s_lshl_b32 s62, s2, 2")
    a("s_add_u32 s62, s62, s60")
    a(f"s_mov_b32 s63, {CPB[0]}")
    a(f"s_mov_b32 s65, {HB[0]}")
    for ch in range(1, 4):
        a(f"s_cmp_eq_u32 s60, {ch}")
        a(f"s_cselect_b32 s63, {CPB[ch]}, s63")
        a(f"s_cselect_b32 s65, {HB[ch]}, s65")
    a("s_lshr_b32 s31, s62, 1")
    a("s_lshl_b32 s31, s31, 2")
    a("s_add_u32 s66, s10, s31")
    a("s_addc_u32 s67, s11, 0")
    a("s_load_dword s70, s[66:67], 0")
    a("v_and_b32 v2, 15, v0")
    a("v_lshrrev_b32 v3, 4, v0")
    a("v_sub_u32 v4, 3, v2")
    a("v_and_b32 v4, 3, v4")
    a(f"v_mul_u32_u24 v4, {CP_STRIDE}, v4")
    a("v_lshrrev_b32 v5, 2, v2")
    a("v_lshlrev_b32 v6, 1, v3")
    a("v_sub_u32 v5, v6, v5")
    a("v_add_u32 v5, 3, v5")
    a("v_lshl_add_u32 v4, v5, 3, v4")
    a("v_add_u32 v4, s63, v4")
    a("v_lshlrev_b32 v5, 5, v2")
    a("v_lshl_add_u32 v5, v3, 4, v5")
    a("s_add_u32 s31, s65, 32")
    a("v_add_u32 v5, s31, v5")
    a("v_lshlrev_b32 v6, 5, v2")
    a("v_lshl_add_u32 v6, v3, 3, v6")
    a("s_add_u32 s31, s63, 504")
    a("v_sub_u32 v7, s31, v6")
    a("s_lshl_b32 s64, s62, 12")
    a(f"s_add_u32 s64, s64, {WS_YT}")
    a("s_waitcnt lgkmcnt(0)")
    a("s_barrier")
    common.stamp(a, 3)
    a("s_bitcmp1_b32 s62, 0")
    a("s_cselect_b32 s31, 0, 16")
    a("s_lshl_b32 s70, s70, s31")
    a("s_and_b32 s70, s70, 0xffff0000")
    ACC = 8
    def AF(b, x): return 32 + 64 * b + 4 * x
    def BF(b, x): return 64 + 64 * b + 4 * x
    Lh1 = a.newlabel("h1"); Lcd = a.newlabel("cdone")
    a("s_cmp_eq_u32 s61, 1")
    a(f"s_cbranch_scc1 {Lh1}")
    for hw in range(2):
        if hw == 1: a.label(Lh1)
        Ts = [0, 3, 4, 7] if hw == 0 else [1, 2, 5, 6]
        mx = max(Ts)
        def rd(m0, b):
            r = []
            for x in range(mx + 1):
                o = 64*(63-(m0+8*x))
                r.append(f"ds_read_b64 v[{AF(b,x)}:{AF(b,x)+1}], v4 offset:{o}")
                r.append(f"ds_read_b64 v[{AF(b,x)+2}:{AF(b,x)+3}], v4 offset:{o+8}")
                r.append(f"ds_read_b128 v[{BF(b,x)}:{BF(b,x)+3}], v5 offset:{512*x+64*(7-m0)}")
            return r
        for x in rd(0, 0): a(x)
        for m0 in range(8):
            b = m0 & 1
            a("s_waitcnt lgkmcnt(0)")
            if hw == 0 and m0 == PUBM:
                a("s_waitcnt vmcnt(0)")
                publish(86, 87, FL_QKV, v=24)
            nxt = rd(m0 + 1, b ^ 1) if m0 < 7 else []
            mf = []
            for ti, T in enumerate(Ts):
                for x in range(T + 1):
                    c = "0" if (m0 == 0 and x == 0) else f"v[{ACC+4*ti}:{ACC+4*ti+3}]"
                    mf.append(f"v_mfma_f32_16x16x32_bf16 v[{ACC+4*ti}:{ACC+4*ti+3}], v[{AF(b,x)}:{AF(b,x)+3}], v[{BF(b,T-x)}:{BF(b,T-x)+3}], {c}")
            k = 0
            for i, m in enumerate(mf):
                a(m)
                for _ in range(2):
                    if k < len(nxt): a(nxt[k]); k += 1
        for ti, T in enumerate(Ts):
            a(f"ds_read_b64 v[{32+2*ti}:{33+2*ti}], v7 offset:{512*(7-T)}")
        a("s_waitcnt lgkmcnt(0)")
        a("s_nop 7")
        for ti, T in enumerate(Ts):
            r0, r1 = 32 + 2 * ti, 33 + 2 * ti
            a(f"v_and_b32 v48, 0xffff0000, v{r1}")
            a(f"v_lshlrev_b32 v49, 16, v{r1}")
            a(f"v_and_b32 v50, 0xffff0000, v{r0}")
            a(f"v_lshlrev_b32 v51, 16, v{r0}")
            for e in range(4):
                a(f"v_fma_f32 v{ACC+4*ti+e}, v{48+e}, s70, v{ACC+4*ti+e}")
            a(f"v_cvt_pk_bf16_f32 v{56+2*ti}, v{ACC+4*ti}, v{ACC+4*ti+1}")
            a(f"v_cvt_pk_bf16_f32 v{57+2*ti}, v{ACC+4*ti+2}, v{ACC+4*ti+3}")
            a(f"buffer_store_dwordx2 v[{56+2*ti}:{57+2*ti}], v6, {R4(WS_)}, s64 offen offset:{512*T} sc1")
        if hw == 0: a(f"s_branch {Lcd}")
    a.label(Lcd)
    a("v_lshrrev_b32 v2, 4, v0")
    a("v_xor_b32 v2, v2, v0")
    a("v_and_b32 v2, 1, v2")
    a("v_cmp_eq_u32 vcc, 0, v2")
    a("v_mov_b32 v3, 0x3f803f80")
    a("s_nop 1")
    for i in range(4): a(f"v_cndmask_b32 v{ONES+i}, 0, v3, vcc")
    a("s_lshl_b32 s31, s28, 11")
    a(f"s_add_u32 s31, s31, {QOFF}")
    a("v_add_u32 v2, s31, v1")
    a("v_and_b32 v3, 31, v0")
    a("v_lshlrev_b32 v3, 2, v3")
    a(f"v_add_u32 v3, {KMOFF}, v3")
    a("s_barrier")
    common.stamp(a, 4)
    a(f"ds_read_b128 v[{Q}:{Q+3}], v2")
    a(f"ds_read_b128 v[{Q+4}:{Q+7}], v2 offset:1024")
    a("ds_read_b32 v6, v3")
    a("s_waitcnt lgkmcnt(0)")
    for i in range(8):
        c = "0" if i == 0 else "v4"
        a(f"v_dot2_f32_bf16 v4, v{Q+i}, v{Q+i}, {c}")
    for dpp in ("quad_perm:[1,0,3,2]", "quad_perm:[2,3,0,1]", "row_half_mirror", "row_mirror"):
        a("s_nop 1")
        a(f"v_max_f32_dpp v6, v6, v6 {dpp} row_mask:0xf bank_mask:0xf")
    a("s_nop 1")
    a("v_mov_b32 v7, v6")
    a("v_mov_b32 v5, v4")
    a("s_nop 1")
    a("v_permlane16_swap_b32 v7, v6")
    a("v_permlane32_swap_b32 v5, v4")
    a("s_nop 1")
    a("v_max_f32 v6, v6, v7")
    a("v_add_f32 v4, v4, v5")
    a("v_mul_f32 v4, v6, v4")
    a("v_sqrt_f32 v4, v4")
    a("s_nop 0")
    a("v_sub_f32 v4, 0, v4")
    a("s_mov_b32 s7, 0")
    Lgo = a.newlabel("go"); Lrestart = a.newlabel("restart")
    a(f"s_branch {Lgo}")
    a.label(Lrestart)
    a("s_barrier")
    a.label(Lgo)
    for i in range(16): a(f"v_mov_b32 v{CN+i}, v4")
    for i in range(16): a(f"v_mov_b32 v{O+i}, 0")
    for i in range(4): a(f"v_mov_b32 v{L+i}, 0")
    for i in range(4, 8): a(f"v_mov_b32 v{P+i}, 0")
    for i in range(4, 8): a(f"v_mov_b32 v{VF[1]+i}, 0")
    a("v_mov_b32 v2, v1")
    a("v_add_u32 v3, 16384, v1")
    def kread(buf, areg, tile):
        return [f"ds_read_b128 v[{KF[buf]}:{KF[buf]+3}], v{areg} offset:{tile*2048}",
                f"ds_read_b128 v[{KF[buf]+4}:{KF[buf]+7}], v{areg} offset:{tile*2048+1024}"]
    def vread(buf, areg, tile):
        return [f"ds_read_b128 v[{VF[buf]}:{VF[buf]+3}], v{areg} offset:{8192+tile*2048}",
                f"ds_read_b128 v[{VF[buf]+4}:{VF[buf]+7}], v{areg} offset:{8192+tile*2048+1024}"]
    def qk(sb, kb, half):
        c = f"v[{CN}:{CN+15}]" if half == 0 else f"v[{S[sb]}:{S[sb]+15}]"
        return f"v_mfma_f32_32x32x16_bf16 v[{S[sb]}:{S[sb]+15}], v[{KF[kb]+4*half}:{KF[kb]+4*half+3}], v[{Q+4*half}:{Q+4*half+3}], {c}"
    def pv(vb, half):
        return f"v_mfma_f32_32x32x16_bf16 v[{O}:{O+15}], v[{VF[vb]+4*half}:{VF[vb]+4*half+3}], v[{P+4*half}:{P+4*half+3}], v[{O}:{O+15}]"
    def lsum(half):
        return f"v_mfma_f32_16x16x32_bf16 v[{L}:{L+3}], v[{ONES}:{ONES+3}], v[{P+4*half}:{P+4*half+3}], v[{L}:{L+3}]"
    for x in kread(0, 2, 0): a(x)
    for x in kread(1, 2, 1): a(x)
    for x in vread(0, 2, 0): a(x)
    a("s_waitcnt lgkmcnt(4)")
    a(qk(0, 0, 0)); a(qk(0, 0, 1))
    a("s_mov_b32 s8, 0")
    a("s_waitcnt vmcnt(0)")
    a("s_nop 11")
    Lloop = a.newlabel("loop")
    a.label(Lloop)
    for tl in range(4):
        sb = tl & 1; nb_ = sb ^ 1
        def ex(i): return f"v_exp_f32 v{S[sb]+i}, v{S[sb]+i}"
        def cv(i): return f"v_cvt_pk_bf16_f32 v{P+i}, v{S[sb]+2*i}, v{S[sb]+2*i+1}"
        a("s_waitcnt lgkmcnt(2)")
        a(qk(nb_, nb_, 0))
        for i in range(0, 4): a(ex(i))
        a(qk(nb_, nb_, 1))
        for i in range(4, 6): a(ex(i))
        if tl == 2: a("s_barrier")
        kr = kread(sb, 2, tl + 2) if tl < 2 else kread(sb, 3, tl - 2)
        for x in kr: a(x)
        for i in range(6, 8): a(ex(i))
        a(pv(nb_, 1))
        for i in range(0, 4): a(cv(i))
        a(ex(8))
        a(lsum(1))
        for i in range(9, 12): a(ex(i))
        a("s_waitcnt lgkmcnt(2)")
        a(pv(sb, 0))
        vr_ = vread(nb_, 2, tl + 1) if tl < 3 else vread(nb_, 3, 0)
        for x in vr_: a(x)
        for i in range(12, 16): a(ex(i))
        a(lsum(0))
        if tl == 3:
            a("v_mov_b32 v2, v3")
            a("v_add_u32 v3, 16384, v3")
            a("v_and_b32 v3, 0xffff, v3")
            a("s_add_u32 s8, s8, 1")
            a("s_cmp_lt_u32 s8, 16")
        for i in range(4, 8): a(cv(i))
    a(f"s_cbranch_scc1 {Lloop}")
    a("s_nop 1")
    a(pv(1, 1))
    a(lsum(1))
    a("s_waitcnt lgkmcnt(0)")
    a("s_nop 15")
    common.stamp(a, 5)
    a("v_and_b32 v5, 16, v0")
    a("v_cmp_ne_u32 vcc, 0, v5")
    a("s_nop 1")
    a(f"v_cndmask_b32 v5, v{L}, v{L+1}, vcc")
    Lok = a.newlabel("ok")
    a("s_cmp_lg_u32 s7, 0")
    a(f"s_cbranch_scc1 {Lok}")
    a(f"v_mov_b32 v6, {f32bits(2.0**-60)}")
    a("v_cmp_nge_f32 vcc, v5, v6")
    Lnf = a.newlabel("nf")
    a("s_cmp_eq_u64 vcc, 0")
    a(f"s_cbranch_scc1 {Lnf}")
    a(f"v_mov_b32 v6, {FLAG_OFF}")
    a("v_mov_b32 v7, 1")
    a("ds_write_b32 v6, v7")
    a.label(Lnf)
    a("s_waitcnt lgkmcnt(0)")
    a("s_barrier")
    a(f"v_mov_b32 v6, {FLAG_OFF}")
    a("ds_read_b32 v7, v6")
    a("s_waitcnt lgkmcnt(0)")
    a("v_readfirstlane_b32 s31, v7")
    a("s_nop 3")
    a("s_cmp_eq_u32 s31, 0")
    a(f"s_cbranch_scc1 {Lok}")
    a("s_mov_b32 s7, 1")
    a("v_mov_b32 v4, 0xff800000")
    a("s_lshl_b32 s31, s29, 17")
    a(f"s_add_u32 s31, s31, {WS_K}")
    a("s_mov_b32 s8, 0")
    Lfb = a.newlabel("fb")
    a.label(Lfb)
    a(f"buffer_load_dwordx4 v[{KF[0]}:{KF[0]+3}], v1, {R4(WS_)}, s31 offen sc1")
    a(f"buffer_load_dwordx4 v[{KF[0]+4}:{KF[0]+7}], v1, {R4(WS_)}, s31 offen offset:1024 sc1")
    a("s_waitcnt vmcnt(0)")
    a(f"v_mfma_f32_32x32x16_bf16 v[{S[0]}:{S[0]+15}], v[{KF[0]}:{KF[0]+3}], v[{Q}:{Q+3}], 0")
    a(f"v_mfma_f32_32x32x16_bf16 v[{S[0]}:{S[0]+15}], v[{KF[0]+4}:{KF[0]+7}], v[{Q+4}:{Q+7}], v[{S[0]}:{S[0]+15}]")
    a("s_nop 15")
    for i in range(8): a(f"v_max3_f32 v4, v4, v{S[0]+2*i}, v{S[0]+2*i+1}")
    a("s_add_u32 s31, s31, 2048")
    a("s_add_u32 s8, s8, 1")
    a("s_cmp_lt_u32 s8, 64")
    a(f"s_cbranch_scc1 {Lfb}")
    a("v_mov_b32 v5, v4")
    a("s_nop 1")
    a("v_permlane32_swap_b32 v5, v4")
    a("s_nop 1")
    a("v_max_f32 v4, v4, v5")
    a("v_sub_f32 v4, 0, v4")
    a(f"s_branch {Lrestart}")
    a.label(Lok)
    a("v_rcp_f32 v5, v5")
    a("s_nop 0")
    for i in range(16): a(f"v_mul_f32 v{O+i}, v{O+i}, v5")
    for i in range(8): a(f"v_cvt_pk_bf16_f32 v{P+i}, v{O+2*i}, v{O+2*i+1}")
    a("s_lshl_b32 s31, s30, 3")
    a("s_add_u32 s31, s31, s28")
    a("s_lshl_b32 s31, s31, 5")
    a("s_add_u32 s31, s31, s29")
    a("s_lshl_b32 s31, s31, 11")
    a(f"s_add_u32 s31, s31, {WS_O}")
    a(f"buffer_store_dwordx4 v[{P}:{P+3}], v1, {R4(WS_)}, s31 offen sc1")
    a(f"buffer_store_dwordx4 v[{P+4}:{P+7}], v1, {R4(WS_)}, s31 offen offset:1024 sc1")
    a("s_waitcnt vmcnt(0)")
    a("s_barrier")
    common.stamp(a, 6)
    Lg3 = a.newlabel("g3")
    a("s_cmp_lt_u32 s28, 4")
    a(f"s_cbranch_scc1 {Lg3}")
    common.endpgm(a, 0)
    a.label(Lg3)
    Lnp = a.newlabel("np3")
    a("s_cmp_lg_u32 s28, 0")
    a(f"s_cbranch_scc1 {Lnp}")
    publish(30, 29, FL_O)
    a("s_lshr_b32 s8, s3, 1")
    poll(8, FL_O, 32)
    a.label(Lnp)
    a("s_lshl_b32 s60, s3, 2")
    a("s_add_u32 s60, s60, s28")
    a("s_lshl_b32 s61, s60, 16")
    a(f"s_add_u32 s61, s61, {WS_O}")
    NPF = 24
    def OF(i): return 64 + 4 * (i % NPF)
    def oload(f):
        a(f"s_add_u32 s31, s61, {(f//4)*4096}")
        a(f"buffer_load_dwordx4 v[{OF(f)}:{OF(f)+3}], v1, {R4(WS_)}, s31 offen offset:{(f%4)*1024} sc1")
    a("v_and_b32 v2, 15, v0")
    a("v_lshrrev_b32 v3, 2, v2")
    a("v_and_b32 v2, 3, v2")
    a("v_lshrrev_b32 v4, 4, v0")
    a("v_and_b32 v4, 1, v4")
    a("v_lshlrev_b32 v4, 5, v4")
    a("v_lshl_add_u32 v4, v2, 3, v4")
    a("v_lshrrev_b32 v5, 1, v3")
    a("v_and_b32 v5, 1, v5")
    a("v_lshlrev_b32 v5, 6, v5")
    a("v_xor_b32 v4, v4, v5")
    a("v_lshrrev_b32 v5, 5, v0")
    a("v_lshl_add_u32 v3, v5, 2, v3")
    a("v_lshl_add_u32 v10, v3, 7, v4")
    a("v_xor_b32 v11, 64, v10")
    GA = 32
    for i in range(32): a(f"v_mov_b32 v{GA+i}, 0")
    def WF(b, u): return 16 + 8 * b + 4 * u
    def wread(fl, b):
        r = []
        for u in range(2):
            for z in range(2):
                r.append(f"ds_read_b64_tr_b16 v[{WF(b,u)+2*z}:{WF(b,u)+2*z+1}], v{8+u} offset:{fl*2048+z*1024}")
        return r
    a("s_barrier")
    common.stamp(a, 7)
    for f in range(NPF): oload(f)
    for c in range(8):
        a(f"v_add_u32 v8, {WCH(c)}, v10")
        a(f"v_add_u32 v9, {WCH(c)}, v11")
        for x in wread(0, 0): a(x)
        for fl in range(8):
            f = 8 * c + fl
            b = fl & 1
            if fl < 7:
                for x in wread(fl + 1, b ^ 1): a(x)
                a("s_waitcnt lgkmcnt(4)")
            else:
                a("s_waitcnt lgkmcnt(0)")
            rem = min(NPF - 1, 63 - f)
            a(f"s_waitcnt vmcnt({rem})")
            for u in range(2):
                a(f"v_mfma_f32_32x32x16_bf16 v[{GA+16*u}:{GA+16*u+15}], v[{WF(b,u)}:{WF(b,u)+3}], v[{OF(f)}:{OF(f)+3}], v[{GA+16*u}:{GA+16*u+15}]")
            if f + NPF < 64: oload(f + NPF)
    a("s_nop 15")
    a("v_and_b32 v2, 31, v0")
    a("v_lshlrev_b32 v2, 12, v2")
    a("v_lshl_add_u32 v2, v5, 4, v2")
    a("s_lshl_b32 s62, s60, 17")
    a("s_lshl_b32 s63, s4, 7")
    a("s_add_u32 s62, s62, s63")
    a("s_add_u32 s62, s62, 2048")
    for u in range(2):
        for gp in range(2):
            d = 64 + 8 * u + 4 * gp
            src = GA + 16 * u + 8 * gp
            for i in range(4):
                a(f"v_cvt_pk_bf16_f32 v{d+i}, v{src+2*i}, v{src+2*i+1}")
            a("s_nop 1")
            a(f"v_permlane32_swap_b32 v{d}, v{d+2}")
            a(f"v_permlane32_swap_b32 v{d+1}, v{d+3}")
            a("s_nop 1")
            a(f"buffer_store_dwordx4 v[{d}:{d+3}], v2, {R4(OUT)}, s62 offen offset:{64*u+32*gp}")
    common.endpgm(a, 0)

    a.label(LH)
    a("s_sub_u32 s28, s28, 8")
    def kreg(i): return 64 + 4 * i
    def vreg(j): return 92 + 4 * j
    a("s_lshr_b32 s80, s2, 4")
    a("s_lshl_b32 s80, s80, 2")
    a("s_add_u32 s80, s80, s28")
    a("s_and_b32 s81, s2, 15")
    a("s_lshl_b32 s82, s80, 5")
    a("s_lshl_b32 s83, s81, 6")
    a("v_lshrrev_b32 v11, 3, v0")
    a("v_and_b32 v12, 7, v0")
    a("s_lshl_b32 s84, s83, 3")
    a("v_lshlrev_b32 v13, 6, v12")
    if PPB >= 0: a("s_barrier")
    if PPB >= 1: a("s_barrier")
    for i in range(4):
        a(f"buffer_load_dwordx4 v[{140+4*i}:{143+4*i}], v13, {R4(SH)}, s84 offen offset:{16*i}")
    a("s_lshl_b32 s84, s82, 11")
    a("s_lshl_b32 s85, s83, 1")
    a("s_add_u32 s84, s84, s85")
    a("v_lshlrev_b32 v13, 13, v11")
    a("v_lshl_add_u32 v13, v12, 4, v13")
    a("v_add_u32 v13, s84, v13")
    for i in range(3):
        a(f"v_subrev_u32 v{8+i}, {2048*(3-i)}, v13")
    for i in range(3):
        a(f"buffer_load_dwordx4 v[{kreg(i)}:{kreg(i)+3}], v{8+i}, {R4(AK)}, 0 offen")
    for j in range(4):
        a(f"s_mov_b32 s84, {2048*j}")
        a(f"buffer_load_dwordx4 v[{kreg(3+j)}:{kreg(3+j)+3}], v13, {R4(AK)}, s84 offen")
        a(f"buffer_load_dwordx4 v[{vreg(j)}:{vreg(j)+3}], v13, {R4(AV)}, s84 offen")
    a("s_lshl_b32 s86, s28, 12")
    a(f"s_add_u32 s86, s86, {PPSCR}")
    a("v_lshlrev_b32 v14, 9, v11")
    a("v_lshl_add_u32 v14, v12, 4, v14")
    a("v_add_u32 v14, s86, v14")
    a("v_lshrrev_b32 v11, 4, v0")
    a("v_and_b32 v12, 15, v0")
    a("v_lshrrev_b32 v15, 2, v12")
    a("v_and_b32 v4, 3, v12")
    a("v_lshlrev_b32 v2, 3, v11")
    a("v_add_u32 v2, 3, v2")
    a("v_sub_u32 v2, v2, v15")
    a("v_lshlrev_b32 v2, 7, v2")
    a("v_lshl_add_u32 v2, v4, 3, v2")
    a("v_add_u32 v2, s86, v2")
    a("v_add_u32 v3, s83, v12")
    a(f"v_mul_u32_u24 v3, {UR_STRIDE}, v3")
    a("s_lshl_b32 s85, s82, 1")
    a(f"s_sub_u32 s85, {2*2040}, s85")
    a("v_add_u32 v3, s85, v3")
    a("v_lshlrev_b32 v4, 4, v11")
    a("v_sub_u32 v3, v3, v4")
    for _ in range(3 - PPB): a("s_barrier")
    def unpack(dst, src):
        for e in range(8):
            if e % 2 == 0: a(f"v_lshlrev_b32 v{dst+e}, 16, v{src+(e>>1)}")
            else: a(f"v_and_b32 v{dst+e}, 0xffff0000, v{src+(e>>1)}")
    def KU(i): return [108, 116, 124, 132][i % 4]
    WT = 32
    a("s_waitcnt vmcnt(0)")
    for e in range(8):
        for i in range(4):
            src = 140 + 2 * e + (i >> 1)
            dst = WT + 4 * e + i
            if i % 2 == 0: a(f"v_lshlrev_b32 v{dst}, 16, v{src}")
            else: a(f"v_and_b32 v{dst}, 0xffff0000, v{src}")
    for i in range(3): unpack(KU(i), kreg(i))
    for j in range(4):
        if j == 2: a("s_barrier")
        unpack(KU(j + 3), kreg(j + 3))
        unpack(24, vreg(j))
        for i in (3, 2, 1, 0):
            for e in range(8):
                if i == 3: a(f"v_mul_f32 v{16+e}, v{KU(j)+e}, v{WT+4*e+3}")
                else: a(f"v_fmac_f32 v{16+e}, v{KU(j+3-i)+e}, v{WT+4*e+i}")
        for e in range(8):
            a(f"v_mul_f32 v{16+e}, v{16+e}, v{24+e}")
        for q in range(4):
            a(f"v_cvt_pk_bf16_f32 v{vreg(j)+q}, v{16+2*q}, v{17+2*q}")
    a("s_barrier")
    for j in range(4):
        a(f"ds_write_b128 v14, v[{vreg(j)}:{vreg(j)+3}] offset:{128*j}")
    a("s_waitcnt lgkmcnt(0)")
    R = 64
    for dh in range(4):
        for z in range(2):
            a(f"ds_read_b64_tr_b16 v[{R+4*dh+2*z}:{R+4*dh+2*z+1}], v2 offset:{(1 - z) * 512 + dh * 32}")
    for dh in range(4):
        a(f"s_mov_b32 s85, {WS_UR0 + dh * 16 * UR_STRIDE}")
        a(f"s_waitcnt lgkmcnt({6-2*dh})")
        a(f"buffer_store_dwordx4 v[{R+4*dh}:{R+4*dh+3}], v3, {R4(WS_)}, s85 offen sc1")
    a("v_add_u32 v4, s83, v0")
    a(f"v_mul_u32_u24 v4, {UR_STRIDE}, v4")
    for i in range(4): a(f"v_mov_b32 v{16+i}, 0")
    a("s_cmp_eq_u32 s80, 0")
    a(f"s_mov_b32 s84, {WS_SIZE}")
    a(f"s_cselect_b32 s85, {WS_UR0 + 4096}, s84")
    a(f"buffer_store_dwordx4 v[16:19], v4, {R4(WS_)}, s85 offen sc1")
    a("v_mov_b32 v20, 0")
    a(f"buffer_load_dword v21, v20, {R4(DBG)}, 0 offen sc1")
    a("s_barrier")
    a("s_barrier")
    a("s_waitcnt vmcnt(0)")
    a("v_readfirstlane_b32 s9, v21")
    a("s_barrier")
    Lnu = a.newlabel("nu")
    a("s_cmp_lg_u32 s28, 0")
    a(f"s_cbranch_scc1 {Lnu}")
    a("s_lshr_b32 s84, s2, 4")
    publish(81, 84, FL_UR)
    a.label(Lnu)
    for s in range(9, 16): a("s_barrier")
    a("s_barrier")
    a(f"v_mov_b32 v2, {FLAG_OFF}")
    a("v_mov_b32 v3, 0")
    a("ds_write_b32 v2, v3")
    poll(29, FL_QKV, 32)
    vm = VM(a)
    a("s_lshl_b32 s60, s29, 17")
    a("s_lshl_b32 s61, s28, 11")
    a("s_add_u32 s60, s60, s61")
    def issue_chunk(c):
        for kv, base in ((0, WS_K), (1, WS_V)):
            for i in range(2):
                a(f"s_add_u32 m0, s61, {(c % 4)*16384 + kv*8192 + i*1024}")
                a(f"s_add_u32 s31, s60, {base + c*8192 + i*1024}")
                vm.op(f"buffer_load_dwordx4 v1, {R4(WS_)}, s31 offen sc1 lds", ("c", c))
    a("s_lshl_b32 s62, s29, 6")
    a("s_lshl_b32 s31, s30, 3")
    a("s_add_u32 s62, s62, s31")
    a("s_lshl_b32 s62, s62, 11")
    a("s_lshl_b32 s63, s28, 12")
    a("s_add_u32 s62, s62, s63")
    for i in range(4):
        a(f"s_add_u32 m0, s63, {QOFF + i*1024}")
        a(f"s_add_u32 s31, s62, {WS_Q + i*1024}")
        vm.op(f"buffer_load_dwordx4 v1, {R4(WS_)}, s31 offen sc1 lds")
    a("s_lshl_b32 s31, s29, 7")
    a(f"s_add_u32 s31, s31, {WS_KMAX}")
    a(f"s_mov_b32 m0, {KMOFF}")
    a("s_mov_b64 exec, 0xff")
    vm.op(f"buffer_load_dwordx4 v1, {R4(WS_)}, s31 offen sc1 lds")
    a("s_mov_b64 exec, -1")
    issue_chunk(0); issue_chunk(1)
    vm.wait(("c", 0))
    a("s_waitcnt lgkmcnt(0)")
    a("s_barrier")
    issue_chunk(2)
    a("v_lshrrev_b32 v4, 3, v0")
    a("v_and_b32 v5, 7, v0")
    a("v_lshrrev_b32 v6, 1, v4")
    a("v_and_b32 v6, 1, v6")
    a("v_lshlrev_b32 v6, 2, v6")
    a("v_xor_b32 v7, v5, v6")
    a("v_lshlrev_b32 v7, 4, v7")
    a("v_lshl_add_u32 v3, v4, 11, v7")
    a("s_lshl_b32 s70, s4, 7")
    a("s_lshl_b32 s71, s28, 14")
    a("s_add_u32 s70, s70, s71")
    a("s_lshl_b32 s71, s28, 10")
    def wchunk(c):
        for n in range(4):
            a(f"s_add_u32 m0, s71, {WCH(c) + n*4096}")
            a(f"s_add_u32 s31, s70, {(4*c+n)*65536}")
            vm.op(f"buffer_load_dwordx4 v3, {R4(WO)}, s31 offen lds", ("w", c))
    a("s_lshr_b32 s72, s2, 3")
    a("s_and_b32 s73, s2, 7")
    a("s_lshl_b32 s74, s73, 2")
    a("s_add_u32 s74, s74, s28")
    a("v_lshrrev_b32 v20, 4, v0")
    a("v_and_b32 v10, 15, v0")
    a("v_lshlrev_b32 v11, 11, v10")
    a("v_lshl_add_u32 v11, v20, 4, v11")
    a("v_lshlrev_b32 v12, 12, v10")
    a("v_lshl_add_u32 v12, v20, 4, v12")
    a("s_lshl_b32 s75, s72, 17")
    a("s_lshl_b32 s76, s74, 6")
    a("s_add_u32 s77, s75, s76")
    a("s_lshl_b32 s75, s72, 18")
    a("s_add_u32 s78, s75, s76")
    a("v_lshrrev_b32 v13, 2, v10")
    a("v_lshl_add_u32 v13, v20, 3, v13")
    a("v_lshlrev_b32 v13, 7, v13")
    a("v_and_b32 v14, 3, v10")
    a("v_lshl_add_u32 v13, v14, 3, v13")
    a("s_mul_i32 s79, s28, 3072")
    a(f"s_add_u32 s79, s79, {KMOFF + 192}")
    a("s_lshl_b32 s79, s28, 12")
    a(f"s_add_u32 s79, s79, {CONV0}")
    a("v_add_u32 v13, s79, v13")
    a("v_add_u32 v15, s79, v1")
    a("v_lshlrev_b32 v14, 12, v4")
    a("v_lshl_add_u32 v14, v5, 4, v14")
    a("s_lshl_b32 s75, s74, 17")
    a("s_lshl_b32 s76, s72, 7")
    a("s_add_u32 s75, s75, s76")
    a(f"s_add_u32 s75, s75, {WS_YT}")
    for c in range(15):
        if c == 1:
            Lny = a.newlabel("ny")
            a("s_cmp_lg_u32 s28, 0")
            a(f"s_cbranch_scc1 {Lny}")
            a("s_lshr_b32 s84, s2, 5")
            a("s_and_b32 s85, s2, 31")
            publish(84, 85, FL_Y)
            a.label(Lny)
        if c == 4:
            for ps in range(4):
                a(f"s_add_u32 s31, s77, {ps*32768}")
                vm.op(f"buffer_load_dwordx4 v[{32+4*ps}:{35+4*ps}], v11, {R4(AQ)}, s31 offen")
        if c == 6:
            poll(73, FL_Y, 32)
            for n in range(4):
                a(f"s_add_u32 s31, s75, {n*32768}")
                vm.op(f"buffer_load_dwordx4 v[{64+4*n}:{67+4*n}], v14, {R4(WS_)}, s31 offen sc1", "yl")
        if c == 8:
            vm.wait("yl")
            for n in range(4):
                a(f"ds_write_b128 v15, v[{64+4*n}:{67+4*n}] offset:{n*1024}")
            a("s_waitcnt lgkmcnt(0)")
            for ps in range(4):
                for z in range(2):
                    a(f"ds_read_b64_tr_b16 v[{48+4*ps+2*z}:{49+4*ps+2*z}], v13 offset:{z*512+ps*32}")
            for ps in range(4):
                a(f"s_waitcnt lgkmcnt({6-2*ps})")
                for dw in range(4):
                    qr, yr = 32 + 4 * ps + dw, 48 + 4 * ps + dw
                    a(f"v_lshlrev_b32 v16, 16, v{qr}")
                    a(f"v_and_b32 v17, 0xffff0000, v{qr}")
                    a(f"v_lshlrev_b32 v18, 16, v{yr}")
                    a(f"v_and_b32 v19, 0xffff0000, v{yr}")
                    a("v_mul_f32 v16, v16, v18")
                    a("v_mul_f32 v17, v17, v19")
                    a(f"v_cvt_pk_bf16_f32 v{80+4*ps+dw}, v16, v17")
                a(f"s_add_u32 s31, s78, {ps*65536}")
                vm.op(f"buffer_store_dwordx4 v[{80+4*ps}:{83+4*ps}], v12, {R4(OUT)}, s31 offen")
        if 10 <= c < 15: wchunk(c - 10)
        vm.wait(("c", c + 1))
        a("s_barrier")
        if c + 3 <= 15: issue_chunk(c + 3)
    a("s_barrier")
    a("s_barrier")
    a(f"v_mov_b32 v6, {FLAG_OFF}")
    a("ds_read_b32 v7, v6")
    a("s_waitcnt lgkmcnt(0)")
    a("v_readfirstlane_b32 s31, v7")
    a("s_nop 3")
    a("s_cmp_eq_u32 s31, 0")
    Lhd = a.newlabel("hd")
    a(f"s_cbranch_scc1 {Lhd}")
    a("s_mov_b32 s8, 0")
    def issue_dyn():
        a("s_and_b32 s84, s8, 3")
        a("s_lshl_b32 s84, s84, 14")
        a("s_add_u32 s84, s84, s61")
        a("s_lshl_b32 s85, s8, 13")
        a("s_add_u32 s85, s85, s60")
        for kv, base in ((0, WS_K), (1, WS_V)):
            for i in range(2):
                a(f"s_add_u32 m0, s84, {kv*8192 + i*1024}")
                a(f"s_add_u32 s31, s85, {base + i*1024}")
                a(f"buffer_load_dwordx4 v1, {R4(WS_)}, s31 offen sc1 lds")
        a("s_add_u32 s8, s8, 1")
    issue_dyn()
    a("s_waitcnt vmcnt(0)")
    a("s_barrier")
    L2p = a.newlabel("p2")
    a.label(L2p)
    issue_dyn()
    a("s_waitcnt vmcnt(0)")
    a("s_barrier")
    a("s_cmp_lt_u32 s8, 16")
    a(f"s_cbranch_scc1 {L2p}")
    a("s_barrier")
    a.label(Lhd)
    a("s_barrier")
    for c in range(5, 8): wchunk(c)
    a("s_waitcnt vmcnt(0)")
    common.endpgm(a, 0)
    a.label(Lend)
    a("s_endpgm")
    return kernel_desc(name, 160)
```

```python
import struct, os
from common import *
import common
def f32bits(x): return struct.unpack("<I", struct.pack("<f", x))[0]
VAR = os.environ.get('KFVAR', '')
QSCALE = 1.4426950408889634 / (32 ** 0.5)

KF_LDS = 163840
KF_BLOCK = 768
SLOT = 40960
PPSCR = 147456
CONV0 = 65536
CP_STRIDE = 4160
H_OFF = 4 * CP_STRIDE
CH_BYTES = H_OFF + 4608
CPB = [122880 + 8768 * c for c in range(4)]
HB = [122880 + 8768 * c + 4160 for c in range(4)]
CXB = [65536 + 12608 * c + 64 for c in range(4)]
FLAG_OFF = 160768
QOFF = 49152
KMOFF = FLAG_OFF + 64
def WCH(c): return CONV0 + c * 16384 if c < 5 else (c - 5) * 16384
FL_O, FL_Y, FL_UR, FL_QKV = 0, 8, 16, 32
PPB = int(os.environ.get('KFPPB', '0'))
PUBM = int(os.environ.get('KFPUBM', '2'))

Q = 8; CN = 16; O = 32; L = 48; ONES = 52
S = [64, 80]; P = 96; KF = [112, 120]; VF = [128, 136]
WS_, SSMK, WO, AQ, DBG, OUT, XS, WQ, AK, AV, SH = 12, 16, 20, 24, 32, 36, 40, 44, 48, 52, 56
def R4(b): return f"s[{b}:{b+3}]"

def gen_kf(a, name="kf_kernel"):
    common.PV = 166
    kernel_begin(a, name)
    Lend = a.newlabel("kfend")
    a("s_cmp_ge_u32 s2, 256")
    a(f"s_cbranch_scc1 {Lend}")
    a("s_load_dwordx16 s[60:75], s[0:1], 0")
    a("s_load_dwordx8 s[76:83], s[0:1], 64")
    a("v_lshrrev_b32 v1, 6, v0")
    a("s_nop 0")
    a("v_readfirstlane_b32 s28, v1")
    a("v_and_b32 v0, 63, v0")
    common.prof_begin(a)
    a("s_and_b32 s31, s2, 7")
    a("s_lshr_b32 s8, s2, 3")
    a("s_lshl_b32 s29, s31, 2")
    a("s_lshr_b32 s9, s8, 3")
    a("s_add_u32 s29, s29, s9")
    a("s_and_b32 s30, s8, 7")
    a("s_and_b32 s3, s31, 3")
    a("s_lshl_b32 s3, s3, 2")
    a("s_and_b32 s9, s8, 3")
    a("s_add_u32 s3, s3, s9")
    a("s_lshr_b32 s4, s31, 2")
    a("s_lshl_b32 s4, s4, 3")
    a("s_lshr_b32 s9, s8, 2")
    a("s_add_u32 s4, s4, s9")
    a("s_and_b32 s5, s31, 1")
    a("s_lshl_b32 s5, s5, 3")
    a("s_and_b32 s9, s8, 7")
    a("s_add_u32 s5, s5, s9")
    a("s_lshr_b32 s6, s31, 1")
    a("s_lshl_b32 s6, s6, 2")
    a("s_lshr_b32 s9, s8, 3")
    a("s_add_u32 s6, s6, s9")
    a("v_lshlrev_b32 v1, 4, v0")
    a("s_waitcnt lgkmcnt(0)")
    srd(a, WS_, 82, WS_SIZE)
    srd(a, SSMK, 68, 1024 * 2048 * 2)
    srd(a, WO, 76, 1024 * 1024 * 2)
    srd(a, AQ, 60, 2048 * 1024 * 2)
    srd(a, DBG, 80, 256)
    srd(a, OUT, 78, 2048 * 2048 * 2)
    srd(a, XS, 72, 2048 * 1024 * 2)
    srd(a, WQ, 74, 1024 * 3072 * 2)
    srd(a, AK, 62, 2048 * 1024 * 2)
    srd(a, AV, 64, 2048 * 1024 * 2)
    srd(a, SH, 66, 1024 * 4 * 2)
    a("s_mov_b32 s10, s70")
    a("s_mov_b32 s11, s71")

    def get_nonce(v=2):
        Ln = a.newlabel("tag"); Lnd = a.newlabel("tagd")
        a(f"v_mov_b32 v{v}, 0")
        a("s_mov_b32 s95, 0")
        a.label(Ln)
        a(f"buffer_load_dword v{v+1}, v{v}, {R4(DBG)}, 0 offen sc1")
        a("s_add_u32 s95, s95, 1")
        a("s_waitcnt vmcnt(0)")
        a(f"v_readfirstlane_b32 s9, v{v+1}")
        a("s_nop 3")
        a("s_cmp_lg_u32 s9, 0")
        a(f"s_cbranch_scc1 {Lnd}")
        a("s_sleep 4")
        a("s_cmp_lt_u32 s95, 0x400000")
        a(f"s_cbranch_scc1 {Ln}")
        a.label(Lnd)
    def publish(line_sreg, entry_sreg, base, v=8):
        a(f"s_lshl_b32 s31, s{line_sreg}, 8")
        a(f"s_lshl_b32 s95, s{entry_sreg}, 2")
        a("s_add_u32 s31, s31, s95")
        a(f"s_add_u32 s31, s31, {WS_FLAG + base*256}")
        a(f"v_mov_b32 v{v}, 0")
        a(f"v_mov_b32 v{v+1}, s9")
        a("s_mov_b64 exec, 1")
        a(f"buffer_store_dword v{v+1}, v{v}, {R4(WS_)}, s31 offen sc1")
        a("s_mov_b64 exec, -1")
    def poll(line_sreg, base, n, v=8):
        Lp = a.newlabel("poll"); Lpd = a.newlabel("polld")
        a(f"s_lshl_b32 s94, s{line_sreg}, 8")
        a(f"s_add_u32 s94, s94, {WS_FLAG + base*256}")
        a(f"v_and_b32 v{v}, {n-1}, v0")
        a(f"v_lshlrev_b32 v{v}, 2, v{v}")
        a("s_mov_b32 s95, 0")
        a.label(Lp)
        a(f"buffer_load_dword v{v+1}, v{v}, {R4(WS_)}, s94 offen sc1")
        a("s_add_u32 s95, s95, 1")
        a("s_waitcnt vmcnt(0)")
        a(f"v_cmp_ne_u32 vcc, s9, v{v+1}")
        a("s_cmp_eq_u64 vcc, 0")
        a(f"s_cbranch_scc1 {Lpd}")
        a("s_sleep 4")
        a("s_cmp_lt_u32 s95, 0x400000")
        a(f"s_cbranch_scc1 {Lp}")
        a.label(Lpd)

    LC = a.newlabel("roleC"); LD = a.newlabel("roleD"); LP = a.newlabel("roleP"); LH = a.newlabel("roleH")
    Lcdma = a.newlabel("convdma"); Lconv = a.newlabel("conv")
    a("s_cmp_lt_u32 s28, 4")
    a(f"s_cbranch_scc1 {LC}")
    a("s_cmp_lt_u32 s28, 6")
    a(f"s_cbranch_scc1 {LD}")
    a("s_cmp_lt_u32 s28, 8")
    a(f"s_cbranch_scc1 {LP}")
    a(f"s_branch {LH}")

    a.label(LD)
    a("s_sub_u32 s60, s28, 4")
    a("v_lshrrev_b32 v4, 3, v0")
    a("v_and_b32 v5, 7, v0")
    a("v_lshrrev_b32 v6, 1, v4")
    a("v_xor_b32 v7, v5, v6")
    a("v_lshlrev_b32 v7, 4, v7")
    a("v_lshl_add_u32 v10, v4, 11, v7")
    a("v_xor_b32 v11, 64, v10")
    a("v_and_b32 v6, 1, v6")
    a("v_lshlrev_b32 v6, 2, v6")
    a("v_xor_b32 v7, v5, v6")
    a("v_lshlrev_b32 v7, 4, v7")
    a("v_mul_u32_u24 v12, 6144, v4")
    a("v_add_u32 v12, v12, v7")
    a("s_lshl_b32 s31, s5, 18")
    a("s_lshl_b32 s61, s60, 17")
    a("s_add_u32 s61, s61, s31")
    a("s_lshl_b32 s62, s6, 7")
    a("s_lshl_b32 s70, s60, 13")
    a("s_mul_i32 s71, s60, 12288")
    a("s_add_u32 s71, s71, 16384")
    a("s_mov_b32 s72, 0")
    a("s_mov_b32 s73, 0")
    Ld1 = a.newlabel("d1")
    a("s_cmp_eq_u32 s60, 1")
    a(f"s_cbranch_scc1 {Ld1}")
    for lw in range(2):
        if lw == 1: a.label(Ld1)
        def issue_stage():
            a("s_lshl_b32 s75, s72, 7")
            a("s_add_u32 s75, s75, s61")
            a(f"s_mul_i32 s76, s72, {64*6144}")
            a("s_add_u32 s76, s76, s62")
            a("s_add_u32 s77, s70, s73")
            a("s_add_u32 s78, s71, s73")
            for j in range(8):
                a(f"s_add_u32 m0, s77, {j*1024}")
                a(f"s_add_u32 s31, s75, {j*16384}")
                a(f"buffer_load_dwordx4 v{10 + (j & 1)}, {R4(XS)}, s31 offen lds")
            for j in range(12):
                i = 12 * lw + j
                a(f"s_add_u32 m0, s78, {j*1024}")
                a(f"s_add_u32 s31, s76, {(i & 7)*49152 + (i >> 3)*2048}")
                a(f"buffer_load_dwordx4 v12, {R4(WQ)}, s31 offen lds")
            a("s_add_u32 s72, s72, 1")
            a("s_cmp_eq_u32 s73, 0")
            a(f"s_cselect_b32 s73, {3*SLOT}, s73")
            a(f"s_sub_u32 s73, s73, {SLOT}")
        issue_stage()
        issue_stage()
        a("s_waitcnt vmcnt(20)")
        a("s_barrier")
        a("s_mov_b32 s79, 0")
        Lll = a.newlabel("dl")
        a.label(Lll)
        issue_stage()
        a("s_waitcnt vmcnt(20)")
        a("s_barrier")
        a("s_add_u32 s79, s79, 1")
        a("s_cmp_lt_u32 s79, 14")
        a(f"s_cbranch_scc1 {Lll}")
        a(f"s_branch {Lcdma}")

    a.label(LP)
    Lnt = a.newlabel("notag")
    a("s_lshl_b32 s31, s2, 4")
    a("s_add_u32 s31, s31, s28")
    a("s_cmp_lg_u32 s31, 6")
    a(f"s_cbranch_scc1 {Lnt}")
    a("s_memrealtime s[60:61]")
    a("s_waitcnt lgkmcnt(0)")
    a("s_or_b32 s60, s60, 1")
    a("v_mov_b32 v2, s60")
    a("v_mov_b32 v4, 0")
    a("s_mov_b64 exec, 1")
    a(f"buffer_store_dword v2, v4, {R4(DBG)}, 0 offen sc1")
    a("s_mov_b64 exec, -1")
    a.label(Lnt)
    a("s_lshr_b32 s8, s2, 3")
    a("v_lshrrev_b32 v6, 1, v0")
    a("v_lshlrev_b32 v6, 11, v6")
    a("v_and_b32 v7, 1, v0")
    a("v_lshl_add_u32 v6, v7, 7, v6")
    a("s_and_b32 s31, s2, 1")
    a("s_lshl_b32 s31, s31, 10")
    a("s_lshl_b32 s60, s8, 5")
    a("s_add_u32 s31, s31, s60")
    a("s_lshl_b32 s62, s31, 11")
    a("v_lshrrev_b32 v8, 5, v0")
    a(f"v_mul_u32_u24 v8, {64*6144}, v8")
    a("v_bfe_u32 v7, v0, 4, 1")
    a("v_mul_u32_u24 v7, 6144, v7")
    a("v_add_u32 v8, v8, v7")
    a("v_bfe_u32 v7, v0, 2, 2")
    a("v_min_u32 v7, 2, v7")
    a("v_lshl_add_u32 v8, v7, 11, v8")
    a("v_and_b32 v7, 3, v0")
    a("v_lshl_add_u32 v8, v7, 7, v8")
    a("s_lshl_b32 s8, s8, 1")
    a("s_mul_i32 s63, s8, 6144")
    a("s_bfe_u32 s31, s2, 0x20001")
    a("s_lshl_b32 s31, s31, 9")
    a("s_add_u32 s63, s63, s31")
    a("s_cmp_eq_u32 s28, 6")
    a(f"s_cselect_b32 s88, s{XS}, s{WQ}")
    a(f"s_cselect_b32 s89, s{XS+1}, s{WQ+1}")
    a(f"s_cselect_b32 s90, s{XS+2}, s{WQ+2}")
    a("s_mov_b32 s91, 0x00020000")
    a("s_cselect_b32 s62, s62, s63")
    a(f"s_mov_b32 s31, {2*64*6144}")
    a("s_cselect_b32 s65, 256, s31")
    a("s_cselect_b64 vcc, -1, 0")
    a("v_cndmask_b32 v6, v8, v6, vcc")
    def pf():
        a("s_add_u32 s62, s62, s65")
        a("buffer_load_dword v9, v6, s[88:91], s62 offen sc1")
    pf()
    a(f"s_mul_i32 s66, s2, {4*UR_STRIDE}")
    a(f"s_add_u32 s66, s66, {WS_UR0}")
    a("s_lshl_b32 s67, s2, 14")
    def dma_h(ch):
        for pc in range(4):
            a(f"s_mov_b32 m0, {HB[ch] + 512 + pc*1024}")
            a(f"s_add_u32 s31, s67, {ch*4096 + pc*1024}")
            a(f"buffer_load_dwordx4 v1, {R4(SSMK)}, s31 offen lds")
        a(f"s_mov_b32 s31, {WS_SIZE}")
        a("s_mov_b32 exec_hi, 0")
        a(f"s_mov_b32 m0, {HB[ch]}")
        a("s_nop 0")
        a(f"buffer_load_dwordx4 v1, {R4(WS_)}, s31 offen lds")
        a("s_mov_b64 exec, -1")
    def dma_u(ch):
        for pc in range(4):
            a(f"s_mov_b32 m0, {CPB[ch] + pc*1024}")
            a(f"s_add_u32 s31, s66, {ch*UR_STRIDE + pc*1024}")
            a(f"buffer_load_dwordx4 v1, {R4(WS_)}, s31 offen sc1 lds")
        a(f"s_mov_b32 s31, {WS_SIZE}")
        a("s_mov_b64 exec, 15")
        a(f"s_mov_b32 m0, {CPB[ch] + 4096}")
        a("s_nop 0")
        a(f"buffer_load_dwordx4 v1, {R4(WS_)}, s31 offen lds")
        a("s_mov_b64 exec, -1")
    def by_wave(f6, f7):
        L7 = a.newlabel("w7"); Le = a.newlabel("we")
        a("s_bitcmp1_b32 s28, 0")
        a(f"s_cbranch_scc1 {L7}")
        f6()
        a(f"s_branch {Le}")
        a.label(L7)
        f7()
        a.label(Le)
    UP = int(os.environ.get('KFUP', '11'))
    for s in range(15):
        if s == 4: get_nonce()
        a("s_barrier")
        if s % 2 == 0 and s <= 10: pf()
        if s == 3:
            a("v_lshlrev_b32 v10, 7, v0")
            a("s_and_b32 s31, s28, 1")
            a("s_lshl_b32 s31, s31, 13")
            a("s_add_u32 s31, s31, s67")
            a(f"buffer_load_dword v9, v10, {R4(SSMK)}, s31 offen sc1")
        if s == UP:
            a("s_lshr_b32 s68, s2, 4")
            poll(68, FL_UR, 16)
            by_wave(lambda: (dma_u(0), dma_h(0), dma_u(1), dma_h(1)), lambda: (dma_u(2), dma_h(2), dma_u(3), dma_h(3)))
    a("s_barrier")
    a("s_waitcnt vmcnt(0)")
    a(f"s_branch {Lconv}")
    a.label(Lcdma)
    a("s_waitcnt vmcnt(0)")
    a("s_barrier")
    a(f"s_branch {Lconv}")

    a.label(LC)
    a("s_and_b32 s60, s28, 1")
    a("s_lshr_b32 s61, s28, 1")
    a("v_and_b32 v56, 31, v0")
    a("v_lshrrev_b32 v2, 5, v0")
    a("v_lshrrev_b32 v3, 1, v56")
    a("v_and_b32 v3, 7, v3")
    a("s_lshl_b32 s62, s60, 13")
    a("v_lshlrev_b32 v9, 7, v56")
    a("v_add_u32 v9, s62, v9")
    for ks in range(4):
        a(f"v_or_b32 v15, {2*ks}, v2")
        a("v_xor_b32 v15, v15, v3")
        a(f"v_lshl_add_u32 v{4+ks}, v15, 4, v9")
    a("v_and_b32 v56, 15, v0")
    a("v_lshrrev_b32 v3, 2, v56")
    a("v_and_b32 v56, 3, v56")
    a("v_lshrrev_b32 v15, 4, v0")
    a("v_and_b32 v15, 1, v15")
    a("v_lshlrev_b32 v15, 5, v15")
    a("v_lshl_add_u32 v15, v56, 3, v15")
    a("s_lshl_b32 s62, s61, 6")
    a("v_add_u32 v15, s62, v15")
    a("v_lshrrev_b32 v56, 1, v3")
    a("v_and_b32 v56, 1, v56")
    a("v_lshlrev_b32 v56, 6, v56")
    a("v_xor_b32 v15, v15, v56")
    a("v_lshl_add_u32 v3, v2, 3, v3")
    a("v_lshl_add_u32 v8, v3, 7, v15")
    a("v_add_u32 v8, 16384, v8")
    for i in range(4): a(f"v_mov_b32 v{10+i}, v{4+i}")
    a("v_mov_b32 v14, v8")
    for i in range(96): a(f"v_mov_b32 v{64+i}, 0")
    def Xf(b, mt): return 16 + 8 * b + 4 * mt
    def Wf(b, p): return 32 + 12 * b + 4 * p
    def acc(mt, p): return 64 + 16 * (3 * mt + p)
    def reads(ks, b):
        r = []
        for mt in range(2):
            r.append(f"ds_read_b128 v[{Xf(b,mt)}:{Xf(b,mt)+3}], v{10+ks} offset:{mt*4096}")
        for p in range(3):
            for z in range(2):
                r.append(f"ds_read_b64_tr_b16 v[{Wf(b,p)+2*z}:{Wf(b,p)+2*z+1}], v14 offset:{p*8192+ks*2048+z*512}")
        return r
    def mfmas(b):
        r = []
        for mt in range(2):
            for p in range(3):
                A, B = (Wf(b, p), Xf(b, mt)) if p < 2 else (Xf(b, mt), Wf(b, p))
                r.append(f"v_mfma_f32_32x32x16_bf16 v[{acc(mt,p)}:{acc(mt,p)+15}], v[{A}:{A+3}], v[{B}:{B+3}], v[{acc(mt,p)}:{acc(mt,p)+15}]")
        return r
    a("s_mov_b32 s72, 0")
    a("s_mov_b32 s73, 0")
    a("s_barrier")
    common.stamp(a, 1)
    for x in reads(0, 0): a(x)
    Ls = a.newlabel("stage"); Llast = a.newlabel("last")
    a.label(Ls)
    for ks in range(3):
        b = ks & 1
        a("s_waitcnt lgkmcnt(0)")
        m = mfmas(b); r = reads(ks + 1, b ^ 1)
        a(m[0]); [a(x) for x in r[0:4]]
        a(m[1]); [a(x) for x in r[4:8]]
        for x in m[2:]: a(x)
    a("s_waitcnt lgkmcnt(0)")
    a("s_cmp_eq_u32 s72, 15")
    a(f"s_cbranch_scc1 {Llast}")
    a("s_barrier")
    a("s_cmp_eq_u32 s73, 0")
    a(f"s_cselect_b32 s73, {3*SLOT}, s73")
    a(f"s_sub_u32 s73, s73, {SLOT}")
    for i in range(4): a(f"v_add_u32 v{10+i}, s73, v{4+i}")
    a("v_add_u32 v14, s73, v8")
    for x in reads(0, 0): a(x)
    for x in mfmas(1): a(x)
    a("s_add_u32 s72, s72, 1")
    a(f"s_branch {Ls}")
    a.label(Llast)
    for x in mfmas(1): a(x)
    a("v_mov_b32 v56, 0")
    a(f"buffer_load_dword v57, v56, {R4(DBG)}, 0 offen sc1")
    a("s_nop 15")
    common.stamp(a, 2)
    a("s_lshl_b32 s62, s6, 1")
    a("s_add_u32 s62, s62, s61")
    a("s_lshl_b32 s63, s5, 2")
    a("s_lshl_b32 s64, s60, 1")
    a("s_add_u32 s63, s63, s64")
    a("s_lshl_b32 s64, s62, 6")
    a("s_add_u32 s64, s64, s63")
    a("s_lshl_b32 s64, s64, 11")
    a(f"s_mov_b32 s66, {f32bits(QSCALE)}")
    for p in (1, 2, 0):
        for mt in range(2):
            base = acc(mt, p)
            if p == 0:
                for i in range(16): a(f"v_mul_f32 v{base+i}, s66, v{base+i}")
            for i in range(8):
                a(f"v_cvt_pk_bf16_f32 v{base+i}, v{base+2*i}, v{base+2*i+1}")
            a(f"s_add_u32 s65, s64, {[WS_Q, WS_K, WS_V][p] + mt*2048}")
            a(f"buffer_store_dwordx4 v[{base}:{base+3}], v1, {R4(WS_)}, s65 offen sc1")
            a(f"buffer_store_dwordx4 v[{base+4}:{base+7}], v1, {R4(WS_)}, s65 offen offset:1024 sc1")
    for mt in range(2):
        d = acc(mt, 1)
        for i in range(8):
            c = "0" if i == 0 else f"v{16+mt}"
            a(f"v_dot2_f32_bf16 v{16+mt}, v{d+i}, v{d+i}, {c}")
    a("s_nop 3")
    a("v_mov_b32 v18, v16")
    a("v_mov_b32 v19, v17")
    a("s_nop 1")
    a("v_permlane32_swap_b32 v18, v16")
    a("v_permlane32_swap_b32 v19, v17")
    a("s_nop 1")
    a("v_add_f32 v16, v16, v18")
    a("v_add_f32 v17, v17, v19")
    a("v_max_f32 v16, v16, v17")
    for dpp in ("quad_perm:[1,0,3,2]", "quad_perm:[2,3,0,1]", "row_half_mirror", "row_mirror"):
        a("s_nop 1")
        a(f"v_max_f32_dpp v16, v16, v16 {dpp} row_mask:0xf bank_mask:0xf")
    a("s_nop 1")
    a("v_mov_b32 v17, v16")
    a("s_nop 1")
    a("v_permlane16_swap_b32 v17, v16")
    a("s_nop 1")
    a("v_max_f32 v16, v16, v17")
    a("s_lshl_b32 s64, s62, 5")
    a("s_lshl_b32 s65, s5, 1")
    a("s_add_u32 s64, s64, s65")
    a("s_add_u32 s64, s64, s60")
    a("s_lshl_b32 s64, s64, 2")
    a(f"s_add_u32 s64, s64, {WS_KMAX}")
    a("s_mov_b64 exec, 1")
    a(f"buffer_store_dword v16, v56, {R4(WS_)}, s64 offen sc1")
    a("s_mov_b64 exec, -1")
    a("s_mov_b32 s86, s62")
    a("s_lshl_b32 s87, s5, 1")
    a("s_add_u32 s87, s87, s60")
    a("s_waitcnt vmcnt(13)")
    a("v_readfirstlane_b32 s9, v57")

    a.label(Lconv)
    a("s_and_b32 s60, s28, 3")
    a("s_lshr_b32 s61, s28, 2")
    a("s_lshl_b32 s62, s2, 2")
    a("s_add_u32 s62, s62, s60")
    a(f"s_mov_b32 s63, {CPB[0]}")
    a(f"s_mov_b32 s65, {HB[0]}")
    a(f"s_mov_b32 s68, {CXB[0]}")
    for ch in range(1, 4):
        a(f"s_cmp_eq_u32 s60, {ch}")
        a(f"s_cselect_b32 s63, {CPB[ch]}, s63")
        a(f"s_cselect_b32 s65, {HB[ch]}, s65")
        a(f"s_cselect_b32 s68, {CXB[ch]}, s68")
    a("s_lshr_b32 s31, s62, 1")
    a("s_lshl_b32 s31, s31, 2")
    a("s_add_u32 s66, s10, s31")
    a("s_addc_u32 s67, s11, 0")
    a("s_load_dword s70, s[66:67], 0")
    a("v_and_b32 v2, 15, v0")
    a("v_lshrrev_b32 v3, 4, v0")
    a("v_sub_u32 v4, 3, v2")
    a("v_and_b32 v4, 3, v4")
    a("v_cmp_eq_u32 vcc, 0, v4")
    a(f"v_mul_u32_u24 v4, {CP_STRIDE}, v4")
    a(f"s_sub_u32 s31, s68, {CP_STRIDE}")
    a("v_add_u32 v4, s31, v4")
    a("v_mov_b32 v5, s63")
    a("v_cndmask_b32 v4, v4, v5, vcc")
    a("v_lshrrev_b32 v5, 2, v2")
    a("v_lshlrev_b32 v6, 1, v3")
    a("v_sub_u32 v5, v6, v5")
    a("v_add_u32 v5, 3, v5")
    a("v_lshl_add_u32 v4, v5, 3, v4")
    a("v_lshlrev_b32 v5, 5, v2")
    a("v_lshl_add_u32 v5, v3, 4, v5")
    a("s_add_u32 s31, s65, 32")
    a("v_add_u32 v5, s31, v5")
    a("v_lshlrev_b32 v6, 5, v2")
    a("v_lshl_add_u32 v6, v3, 3, v6")
    a("s_add_u32 s31, s63, 504")
    a("v_sub_u32 v7, s31, v6")
    a("s_lshl_b32 s64, s62, 12")
    a(f"s_add_u32 s64, s64, {WS_YT}")
    a("s_waitcnt lgkmcnt(0)")
    a("s_lshl_b32 s31, s61, 11")
    a("v_lshlrev_b32 v26, 5, v0")
    a("v_add_u32 v26, s31, v26")
    a("v_add_u32 v27, s68, v26")
    a("v_add_u32 v26, s63, v26")
    a("s_barrier")
    common.stamp(a, 3)
    for i in range(3): a(f"ds_read_b128 v[{32+4*i}:{35+4*i}], v26 offset:{16*i}")
    a("v_lshrrev_b32 v28, 1, v0")
    a(f"v_mul_u32_u24 v28, {CP_STRIDE}, v28")
    a("v_and_b32 v29, 1, v0")
    a("v_lshl_add_u32 v28, v29, 4, v28")
    a("s_add_u32 s31, s68, 4096")
    a("v_add_u32 v28, s31, v28")
    for i in range(4): a(f"v_mov_b32 v{72+i}, 0")
    a("s_mov_b64 exec, 63")
    a("ds_write_b128 v28, v[72:75]")
    a("s_mov_b64 exec, -1")
    a("s_waitcnt lgkmcnt(1)")
    for k in range(8):
        a(f"v_alignbyte_b32 v{48+k}, v{33+k}, v{32+k}, 2")
        a(f"v_mov_b32 v{56+k}, v{33+k}")
        a(f"v_alignbyte_b32 v{64+k}, v{34+k}, v{33+k}, 2")
    for cc in range(3):
        for j in range(2):
            a(f"ds_write_b128 v27, v[{48+8*cc+4*j}:{51+8*cc+4*j}] offset:{cc*CP_STRIDE + 16*j}")
    a("s_waitcnt lgkmcnt(0)")
    a("s_barrier")
    a("s_bitcmp1_b32 s62, 0")
    a("s_cselect_b32 s31, 0, 16")
    a("s_lshl_b32 s70, s70, s31")
    a("s_and_b32 s70, s70, 0xffff0000")
    ACC = 8
    def AF(b, x): return 32 + 64 * b + 4 * x
    def BF(b, x): return 64 + 64 * b + 4 * x
    Lh1 = a.newlabel("h1"); Lcd = a.newlabel("cdone")
    a("s_cmp_eq_u32 s61, 1")
    a(f"s_cbranch_scc1 {Lh1}")
    for hw in range(2):
        if hw == 1: a.label(Lh1)
        Ts = [0, 3, 4, 7] if hw == 0 else [1, 2, 5, 6]
        mx = max(Ts)
        def rd(m0, b):
            r = []
            for x in range(mx + 1):
                o = 64*(63-(m0+8*x))
                r.append(f"ds_read_b64 v[{AF(b,x)}:{AF(b,x)+1}], v4 offset:{o}")
                r.append(f"ds_read_b64 v[{AF(b,x)+2}:{AF(b,x)+3}], v4 offset:{o+8}")
                r.append(f"ds_read_b128 v[{BF(b,x)}:{BF(b,x)+3}], v5 offset:{512*x+64*(7-m0)}")
            return r
        for x in rd(0, 0): a(x)
        for m0 in range(8):
            b = m0 & 1
            a("s_waitcnt lgkmcnt(0)")
            if hw == 0 and m0 == PUBM:
                a("s_waitcnt vmcnt(0)")
                publish(86, 87, FL_QKV, v=24)
            nxt = rd(m0 + 1, b ^ 1) if m0 < 7 else []
            mf = []
            for ti, T in enumerate(Ts):
                for x in range(T + 1):
                    c = "0" if (m0 == 0 and x == 0) else f"v[{ACC+4*ti}:{ACC+4*ti+3}]"
                    mf.append(f"v_mfma_f32_16x16x32_bf16 v[{ACC+4*ti}:{ACC+4*ti+3}], v[{AF(b,x)}:{AF(b,x)+3}], v[{BF(b,T-x)}:{BF(b,T-x)+3}], {c}")
            k = 0
            for i, m in enumerate(mf):
                a(m)
                for _ in range(2):
                    if k < len(nxt): a(nxt[k]); k += 1
        for ti, T in enumerate(Ts):
            a(f"ds_read_b64 v[{32+2*ti}:{33+2*ti}], v7 offset:{512*(7-T)}")
        a("s_waitcnt lgkmcnt(0)")
        a("s_nop 7")
        for ti, T in enumerate(Ts):
            r0, r1 = 32 + 2 * ti, 33 + 2 * ti
            a(f"v_and_b32 v48, 0xffff0000, v{r1}")
            a(f"v_lshlrev_b32 v49, 16, v{r1}")
            a(f"v_and_b32 v50, 0xffff0000, v{r0}")
            a(f"v_lshlrev_b32 v51, 16, v{r0}")
            for e in range(4):
                a(f"v_fma_f32 v{ACC+4*ti+e}, v{48+e}, s70, v{ACC+4*ti+e}")
            a(f"v_cvt_pk_bf16_f32 v{56+2*ti}, v{ACC+4*ti}, v{ACC+4*ti+1}")
            a(f"v_cvt_pk_bf16_f32 v{57+2*ti}, v{ACC+4*ti+2}, v{ACC+4*ti+3}")
            a(f"buffer_store_dwordx2 v[{56+2*ti}:{57+2*ti}], v6, {R4(WS_)}, s64 offen offset:{512*T} sc1")
        if hw == 0: a(f"s_branch {Lcd}")
    a.label(Lcd)
    a("v_lshrrev_b32 v2, 4, v0")
    a("v_xor_b32 v2, v2, v0")
    a("v_and_b32 v2, 1, v2")
    a("v_cmp_eq_u32 vcc, 0, v2")
    a("v_mov_b32 v3, 0x3f803f80")
    a("s_nop 1")
    for i in range(4): a(f"v_cndmask_b32 v{ONES+i}, 0, v3, vcc")
    a("s_lshl_b32 s31, s28, 11")
    a(f"s_add_u32 s31, s31, {QOFF}")
    a("v_add_u32 v2, s31, v1")
    a("v_and_b32 v3, 31, v0")
    a("v_lshlrev_b32 v3, 2, v3")
    a(f"v_add_u32 v3, {KMOFF}, v3")
    a("s_barrier")
    common.stamp(a, 4)
    a(f"ds_read_b128 v[{Q}:{Q+3}], v2")
    a(f"ds_read_b128 v[{Q+4}:{Q+7}], v2 offset:1024")
    a("ds_read_b32 v6, v3")
    a("s_waitcnt lgkmcnt(0)")
    for i in range(8):
        c = "0" if i == 0 else "v4"
        a(f"v_dot2_f32_bf16 v4, v{Q+i}, v{Q+i}, {c}")
    for dpp in ("quad_perm:[1,0,3,2]", "quad_perm:[2,3,0,1]", "row_half_mirror", "row_mirror"):
        a("s_nop 1")
        a(f"v_max_f32_dpp v6, v6, v6 {dpp} row_mask:0xf bank_mask:0xf")
    a("s_nop 1")
    a("v_mov_b32 v7, v6")
    a("v_mov_b32 v5, v4")
    a("s_nop 1")
    a("v_permlane16_swap_b32 v7, v6")
    a("v_permlane32_swap_b32 v5, v4")
    a("s_nop 1")
    a("v_max_f32 v6, v6, v7")
    a("v_add_f32 v4, v4, v5")
    a("v_mul_f32 v4, v6, v4")
    a("v_sqrt_f32 v4, v4")
    a("s_nop 0")
    a("v_sub_f32 v4, 0, v4")
    a("s_mov_b32 s7, 0")
    Lgo = a.newlabel("go"); Lrestart = a.newlabel("restart")
    a(f"s_branch {Lgo}")
    a.label(Lrestart)
    a("s_barrier")
    a.label(Lgo)
    for i in range(16): a(f"v_mov_b32 v{CN+i}, v4")
    for i in range(16): a(f"v_mov_b32 v{O+i}, 0")
    for i in range(4): a(f"v_mov_b32 v{L+i}, 0")
    for i in range(4, 8): a(f"v_mov_b32 v{P+i}, 0")
    for i in range(4, 8): a(f"v_mov_b32 v{VF[1]+i}, 0")
    a("v_mov_b32 v2, v1")
    a("v_add_u32 v3, 16384, v1")
    def kread(buf, areg, tile):
        return [f"ds_read_b128 v[{KF[buf]}:{KF[buf]+3}], v{areg} offset:{tile*2048}",
                f"ds_read_b128 v[{KF[buf]+4}:{KF[buf]+7}], v{areg} offset:{tile*2048+1024}"]
    def vread(buf, areg, tile):
        return [f"ds_read_b128 v[{VF[buf]}:{VF[buf]+3}], v{areg} offset:{8192+tile*2048}",
                f"ds_read_b128 v[{VF[buf]+4}:{VF[buf]+7}], v{areg} offset:{8192+tile*2048+1024}"]
    def qk(sb, kb, half):
        c = f"v[{CN}:{CN+15}]" if half == 0 else f"v[{S[sb]}:{S[sb]+15}]"
        return f"v_mfma_f32_32x32x16_bf16 v[{S[sb]}:{S[sb]+15}], v[{KF[kb]+4*half}:{KF[kb]+4*half+3}], v[{Q+4*half}:{Q+4*half+3}], {c}"
    def pv(vb, half):
        return f"v_mfma_f32_32x32x16_bf16 v[{O}:{O+15}], v[{VF[vb]+4*half}:{VF[vb]+4*half+3}], v[{P+4*half}:{P+4*half+3}], v[{O}:{O+15}]"
    def lsum(half):
        return f"v_mfma_f32_16x16x32_bf16 v[{L}:{L+3}], v[{ONES}:{ONES+3}], v[{P+4*half}:{P+4*half+3}], v[{L}:{L+3}]"
    for x in kread(0, 2, 0): a(x)
    for x in kread(1, 2, 1): a(x)
    for x in vread(0, 2, 0): a(x)
    a("s_waitcnt lgkmcnt(4)")
    a(qk(0, 0, 0)); a(qk(0, 0, 1))
    a("s_mov_b32 s8, 0")
    a("s_waitcnt vmcnt(0)")
    a("s_nop 11")
    Lloop = a.newlabel("loop")
    a.label(Lloop)
    for tl in range(4):
        sb = tl & 1; nb_ = sb ^ 1
        def ex(i): return f"v_exp_f32 v{S[sb]+i}, v{S[sb]+i}"
        def cv(i): return f"v_cvt_pk_bf16_f32 v{P+i}, v{S[sb]+2*i}, v{S[sb]+2*i+1}"
        a("s_waitcnt lgkmcnt(2)")
        a(qk(nb_, nb_, 0))
        for i in range(0, 4): a(ex(i))
        a(qk(nb_, nb_, 1))
        for i in range(4, 6): a(ex(i))
        if tl == 2: a("s_barrier")
        kr = kread(sb, 2, tl + 2) if tl < 2 else kread(sb, 3, tl - 2)
        for x in kr: a(x)
        for i in range(6, 8): a(ex(i))
        a(pv(nb_, 1))
        for i in range(0, 4): a(cv(i))
        a(ex(8))
        a(lsum(1))
        for i in range(9, 12): a(ex(i))
        a("s_waitcnt lgkmcnt(2)")
        a(pv(sb, 0))
        vr_ = vread(nb_, 2, tl + 1) if tl < 3 else vread(nb_, 3, 0)
        for x in vr_: a(x)
        for i in range(12, 16): a(ex(i))
        a(lsum(0))
        if tl == 3:
            a("v_mov_b32 v2, v3")
            a("v_add_u32 v3, 16384, v3")
            a("v_and_b32 v3, 0xffff, v3")
            a("s_add_u32 s8, s8, 1")
            a("s_cmp_lt_u32 s8, 16")
        for i in range(4, 8): a(cv(i))
    a(f"s_cbranch_scc1 {Lloop}")
    a("s_nop 1")
    a(pv(1, 1))
    a(lsum(1))
    a("s_waitcnt lgkmcnt(0)")
    a("s_nop 15")
    common.stamp(a, 5)
    a("v_and_b32 v5, 16, v0")
    a("v_cmp_ne_u32 vcc, 0, v5")
    a("s_nop 1")
    a(f"v_cndmask_b32 v5, v{L}, v{L+1}, vcc")
    Lok = a.newlabel("ok")
    a("s_cmp_lg_u32 s7, 0")
    a(f"s_cbranch_scc1 {Lok}")
    a(f"v_mov_b32 v6, {f32bits(2.0**-60)}")
    a("v_cmp_nge_f32 vcc, v5, v6")
    Lnf = a.newlabel("nf")
    a("s_cmp_eq_u64 vcc, 0")
    a(f"s_cbranch_scc1 {Lnf}")
    a(f"v_mov_b32 v6, {FLAG_OFF}")
    a("v_mov_b32 v7, 1")
    a("ds_write_b32 v6, v7")
    a.label(Lnf)
    a("s_waitcnt lgkmcnt(0)")
    a("s_barrier")
    a(f"v_mov_b32 v6, {FLAG_OFF}")
    a("ds_read_b32 v7, v6")
    a("s_waitcnt lgkmcnt(0)")
    a("v_readfirstlane_b32 s31, v7")
    a("s_nop 3")
    a("s_cmp_eq_u32 s31, 0")
    a(f"s_cbranch_scc1 {Lok}")
    a("s_mov_b32 s7, 1")
    a("v_mov_b32 v4, 0xff800000")
    a("s_lshl_b32 s31, s29, 17")
    a(f"s_add_u32 s31, s31, {WS_K}")
    a("s_mov_b32 s8, 0")
    Lfb = a.newlabel("fb")
    a.label(Lfb)
    a(f"buffer_load_dwordx4 v[{KF[0]}:{KF[0]+3}], v1, {R4(WS_)}, s31 offen sc1")
    a(f"buffer_load_dwordx4 v[{KF[0]+4}:{KF[0]+7}], v1, {R4(WS_)}, s31 offen offset:1024 sc1")
    a("s_waitcnt vmcnt(0)")
    a(f"v_mfma_f32_32x32x16_bf16 v[{S[0]}:{S[0]+15}], v[{KF[0]}:{KF[0]+3}], v[{Q}:{Q+3}], 0")
    a(f"v_mfma_f32_32x32x16_bf16 v[{S[0]}:{S[0]+15}], v[{KF[0]+4}:{KF[0]+7}], v[{Q+4}:{Q+7}], v[{S[0]}:{S[0]+15}]")
    a("s_nop 15")
    for i in range(8): a(f"v_max3_f32 v4, v4, v{S[0]+2*i}, v{S[0]+2*i+1}")
    a("s_add_u32 s31, s31, 2048")
    a("s_add_u32 s8, s8, 1")
    a("s_cmp_lt_u32 s8, 64")
    a(f"s_cbranch_scc1 {Lfb}")
    a("v_mov_b32 v5, v4")
    a("s_nop 1")
    a("v_permlane32_swap_b32 v5, v4")
    a("s_nop 1")
    a("v_max_f32 v4, v4, v5")
    a("v_sub_f32 v4, 0, v4")
    a(f"s_branch {Lrestart}")
    a.label(Lok)
    a("v_rcp_f32 v5, v5")
    a("s_nop 0")
    for i in range(16): a(f"v_mul_f32 v{O+i}, v{O+i}, v5")
    for i in range(8): a(f"v_cvt_pk_bf16_f32 v{P+i}, v{O+2*i}, v{O+2*i+1}")
    a("s_lshl_b32 s31, s30, 3")
    a("s_add_u32 s31, s31, s28")
    a("s_lshl_b32 s31, s31, 5")
    a("s_add_u32 s31, s31, s29")
    a("s_lshl_b32 s31, s31, 11")
    a(f"s_add_u32 s31, s31, {WS_O}")
    a(f"buffer_store_dwordx4 v[{P}:{P+3}], v1, {R4(WS_)}, s31 offen sc1")
    a(f"buffer_store_dwordx4 v[{P+4}:{P+7}], v1, {R4(WS_)}, s31 offen offset:1024 sc1")
    a("s_waitcnt vmcnt(0)")
    a("s_barrier")
    common.stamp(a, 6)
    Lg3 = a.newlabel("g3")
    a("s_cmp_lt_u32 s28, 4")
    a(f"s_cbranch_scc1 {Lg3}")
    common.endpgm(a, 0)
    a.label(Lg3)
    Lnp = a.newlabel("np3")
    a("s_cmp_lg_u32 s28, 0")
    a(f"s_cbranch_scc1 {Lnp}")
    publish(30, 29, FL_O)
    a("s_lshr_b32 s8, s3, 1")
    poll(8, FL_O, 32)
    a.label(Lnp)
    a("s_lshl_b32 s60, s3, 2")
    a("s_add_u32 s60, s60, s28")
    a("s_lshl_b32 s61, s60, 16")
    a(f"s_add_u32 s61, s61, {WS_O}")
    NPF = 24
    def OF(i): return 64 + 4 * (i % NPF)
    def oload(f):
        a(f"s_add_u32 s31, s61, {(f//4)*4096}")
        a(f"buffer_load_dwordx4 v[{OF(f)}:{OF(f)+3}], v1, {R4(WS_)}, s31 offen offset:{(f%4)*1024} sc1")
    a("v_and_b32 v2, 15, v0")
    a("v_lshrrev_b32 v3, 2, v2")
    a("v_and_b32 v2, 3, v2")
    a("v_lshrrev_b32 v4, 4, v0")
    a("v_and_b32 v4, 1, v4")
    a("v_lshlrev_b32 v4, 5, v4")
    a("v_lshl_add_u32 v4, v2, 3, v4")
    a("v_lshrrev_b32 v5, 1, v3")
    a("v_and_b32 v5, 1, v5")
    a("v_lshlrev_b32 v5, 6, v5")
    a("v_xor_b32 v4, v4, v5")
    a("v_lshrrev_b32 v5, 5, v0")
    a("v_lshl_add_u32 v3, v5, 2, v3")
    a("v_lshl_add_u32 v10, v3, 7, v4")
    a("v_xor_b32 v11, 64, v10")
    GA = 32
    for i in range(32): a(f"v_mov_b32 v{GA+i}, 0")
    def WF(b, u): return 16 + 8 * b + 4 * u
    def wread(fl, b):
        r = []
        for u in range(2):
            for z in range(2):
                r.append(f"ds_read_b64_tr_b16 v[{WF(b,u)+2*z}:{WF(b,u)+2*z+1}], v{8+u} offset:{fl*2048+z*1024}")
        return r
    a("s_barrier")
    common.stamp(a, 7)
    for f in range(NPF): oload(f)
    for c in range(8):
        a(f"v_add_u32 v8, {WCH(c)}, v10")
        a(f"v_add_u32 v9, {WCH(c)}, v11")
        for x in wread(0, 0): a(x)
        for fl in range(8):
            f = 8 * c + fl
            b = fl & 1
            if fl < 7:
                for x in wread(fl + 1, b ^ 1): a(x)
                a("s_waitcnt lgkmcnt(4)")
            else:
                a("s_waitcnt lgkmcnt(0)")
            rem = min(NPF - 1, 63 - f)
            a(f"s_waitcnt vmcnt({rem})")
            for u in range(2):
                a(f"v_mfma_f32_32x32x16_bf16 v[{GA+16*u}:{GA+16*u+15}], v[{WF(b,u)}:{WF(b,u)+3}], v[{OF(f)}:{OF(f)+3}], v[{GA+16*u}:{GA+16*u+15}]")
            if f + NPF < 64: oload(f + NPF)
    a("s_nop 15")
    a("v_and_b32 v2, 31, v0")
    a("v_lshlrev_b32 v2, 12, v2")
    a("v_lshl_add_u32 v2, v5, 4, v2")
    a("s_lshl_b32 s62, s60, 17")
    a("s_lshl_b32 s63, s4, 7")
    a("s_add_u32 s62, s62, s63")
    a("s_add_u32 s62, s62, 2048")
    for u in range(2):
        for gp in range(2):
            d = 64 + 8 * u + 4 * gp
            src = GA + 16 * u + 8 * gp
            for i in range(4):
                a(f"v_cvt_pk_bf16_f32 v{d+i}, v{src+2*i}, v{src+2*i+1}")
            a("s_nop 1")
            a(f"v_permlane32_swap_b32 v{d}, v{d+2}")
            a(f"v_permlane32_swap_b32 v{d+1}, v{d+3}")
            a("s_nop 1")
            a(f"buffer_store_dwordx4 v[{d}:{d+3}], v2, {R4(OUT)}, s62 offen offset:{64*u+32*gp}")
    common.endpgm(a, 0)

    a.label(LH)
    a("s_sub_u32 s28, s28, 8")
    def kreg(i): return 64 + 4 * i
    def vreg(j): return 92 + 4 * j
    a("s_lshr_b32 s80, s2, 4")
    a("s_lshl_b32 s80, s80, 2")
    a("s_add_u32 s80, s80, s28")
    a("s_and_b32 s81, s2, 15")
    a("s_lshl_b32 s82, s80, 5")
    a("s_lshl_b32 s83, s81, 6")
    a("v_lshrrev_b32 v11, 3, v0")
    a("v_and_b32 v12, 7, v0")
    a("s_lshl_b32 s84, s83, 3")
    a("v_lshlrev_b32 v13, 6, v12")
    if PPB >= 0: a("s_barrier")
    if PPB >= 1: a("s_barrier")
    for i in range(4):
        a(f"buffer_load_dwordx4 v[{140+4*i}:{143+4*i}], v13, {R4(SH)}, s84 offen offset:{16*i}")
    a("s_lshl_b32 s84, s82, 11")
    a("s_lshl_b32 s85, s83, 1")
    a("s_add_u32 s84, s84, s85")
    a("v_lshlrev_b32 v13, 13, v11")
    a("v_lshl_add_u32 v13, v12, 4, v13")
    a("v_add_u32 v13, s84, v13")
    for i in range(3):
        a(f"v_subrev_u32 v{8+i}, {2048*(3-i)}, v13")
    for i in range(3):
        a(f"buffer_load_dwordx4 v[{kreg(i)}:{kreg(i)+3}], v{8+i}, {R4(AK)}, 0 offen")
    for j in range(4):
        a(f"s_mov_b32 s84, {2048*j}")
        a(f"buffer_load_dwordx4 v[{kreg(3+j)}:{kreg(3+j)+3}], v13, {R4(AK)}, s84 offen")
        a(f"buffer_load_dwordx4 v[{vreg(j)}:{vreg(j)+3}], v13, {R4(AV)}, s84 offen")
    a("s_lshl_b32 s86, s28, 12")
    a(f"s_add_u32 s86, s86, {PPSCR}")
    a("v_lshlrev_b32 v14, 9, v11")
    a("v_lshl_add_u32 v14, v12, 4, v14")
    a("v_add_u32 v14, s86, v14")
    a("v_lshrrev_b32 v11, 4, v0")
    a("v_and_b32 v12, 15, v0")
    a("v_lshrrev_b32 v15, 2, v12")
    a("v_and_b32 v4, 3, v12")
    a("v_lshlrev_b32 v2, 3, v11")
    a("v_add_u32 v2, 3, v2")
    a("v_sub_u32 v2, v2, v15")
    a("v_lshlrev_b32 v2, 7, v2")
    a("v_lshl_add_u32 v2, v4, 3, v2")
    a("v_add_u32 v2, s86, v2")
    a("v_add_u32 v3, s83, v12")
    a(f"v_mul_u32_u24 v3, {UR_STRIDE}, v3")
    a("s_lshl_b32 s85, s82, 1")
    a(f"s_sub_u32 s85, {2*2040}, s85")
    a("v_add_u32 v3, s85, v3")
    a("v_lshlrev_b32 v4, 4, v11")
    a("v_sub_u32 v3, v3, v4")
    for _ in range(3 - PPB): a("s_barrier")
    def unpack(dst, src):
        for e in range(8):
            if e % 2 == 0: a(f"v_lshlrev_b32 v{dst+e}, 16, v{src+(e>>1)}")
            else: a(f"v_and_b32 v{dst+e}, 0xffff0000, v{src+(e>>1)}")
    def KU(i): return [108, 116, 124, 132][i % 4]
    WT = 32
    a("s_waitcnt vmcnt(0)")
    for e in range(8):
        for i in range(4):
            src = 140 + 2 * e + (i >> 1)
            dst = WT + 4 * e + i
            if i % 2 == 0: a(f"v_lshlrev_b32 v{dst}, 16, v{src}")
            else: a(f"v_and_b32 v{dst}, 0xffff0000, v{src}")
    for i in range(3): unpack(KU(i), kreg(i))
    for j in range(4):
        if j == 2: a("s_barrier")
        unpack(KU(j + 3), kreg(j + 3))
        unpack(24, vreg(j))
        for i in (3, 2, 1, 0):
            for e in range(8):
                if i == 3: a(f"v_mul_f32 v{16+e}, v{KU(j)+e}, v{WT+4*e+3}")
                else: a(f"v_fmac_f32 v{16+e}, v{KU(j+3-i)+e}, v{WT+4*e+i}")
        for e in range(8):
            a(f"v_mul_f32 v{16+e}, v{16+e}, v{24+e}")
        for q in range(4):
            a(f"v_cvt_pk_bf16_f32 v{vreg(j)+q}, v{16+2*q}, v{17+2*q}")
    a("s_barrier")
    for j in range(4):
        a(f"ds_write_b128 v14, v[{vreg(j)}:{vreg(j)+3}] offset:{128*j}")
    a("s_waitcnt lgkmcnt(0)")
    R = 64
    for dh in range(4):
        for z in range(2):
            a(f"ds_read_b64_tr_b16 v[{R+4*dh+2*z}:{R+4*dh+2*z+1}], v2 offset:{(1 - z) * 512 + dh * 32}")
    for dh in range(4):
        a(f"s_mov_b32 s85, {WS_UR0 + dh * 16 * UR_STRIDE}")
        a(f"s_waitcnt lgkmcnt({6-2*dh})")
        a(f"buffer_store_dwordx4 v[{R+4*dh}:{R+4*dh+3}], v3, {R4(WS_)}, s85 offen sc1")
    a("v_add_u32 v4, s83, v0")
    a(f"v_mul_u32_u24 v4, {UR_STRIDE}, v4")
    for i in range(4): a(f"v_mov_b32 v{16+i}, 0")
    a("s_cmp_eq_u32 s80, 0")
    a(f"s_mov_b32 s84, {WS_SIZE}")
    a(f"s_cselect_b32 s85, {WS_UR0 + 4096}, s84")
    a(f"buffer_store_dwordx4 v[16:19], v4, {R4(WS_)}, s85 offen sc1")
    a("v_mov_b32 v20, 0")
    a(f"buffer_load_dword v21, v20, {R4(DBG)}, 0 offen sc1")
    a("s_barrier")
    a("s_barrier")
    a("s_waitcnt vmcnt(0)")
    a("v_readfirstlane_b32 s9, v21")
    a("s_barrier")
    Lnu = a.newlabel("nu")
    a("s_cmp_lg_u32 s28, 0")
    a(f"s_cbranch_scc1 {Lnu}")
    a("s_lshr_b32 s84, s2, 4")
    publish(81, 84, FL_UR)
    a.label(Lnu)
    for s in range(9, 16): a("s_barrier")
    a("s_barrier")
    a("s_barrier")
    a(f"v_mov_b32 v2, {FLAG_OFF}")
    a("v_mov_b32 v3, 0")
    a("ds_write_b32 v2, v3")
    poll(29, FL_QKV, 32)
    vm = VM(a)
    a("s_lshl_b32 s60, s29, 17")
    a("s_lshl_b32 s61, s28, 11")
    a("s_add_u32 s60, s60, s61")
    def issue_chunk(c):
        for kv, base in ((0, WS_K), (1, WS_V)):
            for i in range(2):
                a(f"s_add_u32 m0, s61, {(c % 4)*16384 + kv*8192 + i*1024}")
                a(f"s_add_u32 s31, s60, {base + c*8192 + i*1024}")
                vm.op(f"buffer_load_dwordx4 v1, {R4(WS_)}, s31 offen sc1 lds", ("c", c))
    a("s_lshl_b32 s62, s29, 6")
    a("s_lshl_b32 s31, s30, 3")
    a("s_add_u32 s62, s62, s31")
    a("s_lshl_b32 s62, s62, 11")
    a("s_lshl_b32 s63, s28, 12")
    a("s_add_u32 s62, s62, s63")
    for i in range(4):
        a(f"s_add_u32 m0, s63, {QOFF + i*1024}")
        a(f"s_add_u32 s31, s62, {WS_Q + i*1024}")
        vm.op(f"buffer_load_dwordx4 v1, {R4(WS_)}, s31 offen sc1 lds")
    a("s_lshl_b32 s31, s29, 7")
    a(f"s_add_u32 s31, s31, {WS_KMAX}")
    a(f"s_mov_b32 m0, {KMOFF}")
    a("s_mov_b64 exec, 0xff")
    vm.op(f"buffer_load_dwordx4 v1, {R4(WS_)}, s31 offen sc1 lds")
    a("s_mov_b64 exec, -1")
    issue_chunk(0); issue_chunk(1)
    vm.wait(("c", 0))
    a("s_waitcnt lgkmcnt(0)")
    a("s_barrier")
    issue_chunk(2)
    a("v_lshrrev_b32 v4, 3, v0")
    a("v_and_b32 v5, 7, v0")
    a("v_lshrrev_b32 v6, 1, v4")
    a("v_and_b32 v6, 1, v6")
    a("v_lshlrev_b32 v6, 2, v6")
    a("v_xor_b32 v7, v5, v6")
    a("v_lshlrev_b32 v7, 4, v7")
    a("v_lshl_add_u32 v3, v4, 11, v7")
    a("s_lshl_b32 s70, s4, 7")
    a("s_lshl_b32 s71, s28, 14")
    a("s_add_u32 s70, s70, s71")
    a("s_lshl_b32 s71, s28, 10")
    def wchunk(c):
        for n in range(4):
            a(f"s_add_u32 m0, s71, {WCH(c) + n*4096}")
            a(f"s_add_u32 s31, s70, {(4*c+n)*65536}")
            vm.op(f"buffer_load_dwordx4 v3, {R4(WO)}, s31 offen lds", ("w", c))
    a("s_lshr_b32 s72, s2, 3")
    a("s_and_b32 s73, s2, 7")
    a("s_lshl_b32 s74, s73, 2")
    a("s_add_u32 s74, s74, s28")
    a("v_lshrrev_b32 v20, 4, v0")
    a("v_and_b32 v10, 15, v0")
    a("v_lshlrev_b32 v11, 11, v10")
    a("v_lshl_add_u32 v11, v20, 4, v11")
    a("v_lshlrev_b32 v12, 12, v10")
    a("v_lshl_add_u32 v12, v20, 4, v12")
    a("s_lshl_b32 s75, s72, 17")
    a("s_lshl_b32 s76, s74, 6")
    a("s_add_u32 s77, s75, s76")
    a("s_lshl_b32 s75, s72, 18")
    a("s_add_u32 s78, s75, s76")
    a("v_lshrrev_b32 v13, 2, v10")
    a("v_lshl_add_u32 v13, v20, 3, v13")
    a("v_lshlrev_b32 v13, 7, v13")
    a("v_and_b32 v14, 3, v10")
    a("v_lshl_add_u32 v13, v14, 3, v13")
    a("s_mul_i32 s79, s28, 3072")
    a(f"s_add_u32 s79, s79, {KMOFF + 192}")
    a("s_lshl_b32 s79, s28, 12")
    a(f"s_add_u32 s79, s79, {CONV0}")
    a("v_add_u32 v13, s79, v13")
    a("v_add_u32 v15, s79, v1")
    a("v_lshlrev_b32 v14, 12, v4")
    a("v_lshl_add_u32 v14, v5, 4, v14")
    a("s_lshl_b32 s75, s74, 17")
    a("s_lshl_b32 s76, s72, 7")
    a("s_add_u32 s75, s75, s76")
    a(f"s_add_u32 s75, s75, {WS_YT}")
    for c in range(15):
        if c == 1:
            Lny = a.newlabel("ny")
            a("s_cmp_lg_u32 s28, 0")
            a(f"s_cbranch_scc1 {Lny}")
            a("s_lshr_b32 s84, s2, 5")
            a("s_and_b32 s85, s2, 31")
            publish(84, 85, FL_Y)
            a.label(Lny)
        if c == 4:
            for ps in range(4):
                a(f"s_add_u32 s31, s77, {ps*32768}")
                vm.op(f"buffer_load_dwordx4 v[{32+4*ps}:{35+4*ps}], v11, {R4(AQ)}, s31 offen")
        if c == 6:
            poll(73, FL_Y, 32)
            for n in range(4):
                a(f"s_add_u32 s31, s75, {n*32768}")
                vm.op(f"buffer_load_dwordx4 v[{64+4*n}:{67+4*n}], v14, {R4(WS_)}, s31 offen sc1", "yl")
        if c == 8:
            vm.wait("yl")
            for n in range(4):
                a(f"ds_write_b128 v15, v[{64+4*n}:{67+4*n}] offset:{n*1024}")
            a("s_waitcnt lgkmcnt(0)")
            for ps in range(4):
                for z in range(2):
                    a(f"ds_read_b64_tr_b16 v[{48+4*ps+2*z}:{49+4*ps+2*z}], v13 offset:{z*512+ps*32}")
            for ps in range(4):
                a(f"s_waitcnt lgkmcnt({6-2*ps})")
                for dw in range(4):
                    qr, yr = 32 + 4 * ps + dw, 48 + 4 * ps + dw
                    a(f"v_lshlrev_b32 v16, 16, v{qr}")
                    a(f"v_and_b32 v17, 0xffff0000, v{qr}")
                    a(f"v_lshlrev_b32 v18, 16, v{yr}")
                    a(f"v_and_b32 v19, 0xffff0000, v{yr}")
                    a("v_mul_f32 v16, v16, v18")
                    a("v_mul_f32 v17, v17, v19")
                    a(f"v_cvt_pk_bf16_f32 v{80+4*ps+dw}, v16, v17")
                a(f"s_add_u32 s31, s78, {ps*65536}")
                vm.op(f"buffer_store_dwordx4 v[{80+4*ps}:{83+4*ps}], v12, {R4(OUT)}, s31 offen")
        if 10 <= c < 15: wchunk(c - 10)
        vm.wait(("c", c + 1))
        a("s_barrier")
        if c + 3 <= 15: issue_chunk(c + 3)
    a("s_barrier")
    a("s_barrier")
    a(f"v_mov_b32 v6, {FLAG_OFF}")
    a("ds_read_b32 v7, v6")
    a("s_waitcnt lgkmcnt(0)")
    a("v_readfirstlane_b32 s31, v7")
    a("s_nop 3")
    a("s_cmp_eq_u32 s31, 0")
    Lhd = a.newlabel("hd")
    a(f"s_cbranch_scc1 {Lhd}")
    a("s_mov_b32 s8, 0")
    def issue_dyn():
        a("s_and_b32 s84, s8, 3")
        a("s_lshl_b32 s84, s84, 14")
        a("s_add_u32 s84, s84, s61")
        a("s_lshl_b32 s85, s8, 13")
        a("s_add_u32 s85, s85, s60")
        for kv, base in ((0, WS_K), (1, WS_V)):
            for i in range(2):
                a(f"s_add_u32 m0, s84, {kv*8192 + i*1024}")
                a(f"s_add_u32 s31, s85, {base + i*1024}")
                a(f"buffer_load_dwordx4 v1, {R4(WS_)}, s31 offen sc1 lds")
        a("s_add_u32 s8, s8, 1")
    issue_dyn()
    a("s_waitcnt vmcnt(0)")
    a("s_barrier")
    L2p = a.newlabel("p2")
    a.label(L2p)
    issue_dyn()
    a("s_waitcnt vmcnt(0)")
    a("s_barrier")
    a("s_cmp_lt_u32 s8, 16")
    a(f"s_cbranch_scc1 {L2p}")
    a("s_barrier")
    a.label(Lhd)
    a("s_barrier")
    for c in range(5, 8): wchunk(c)
    a("s_waitcnt vmcnt(0)")
    common.endpgm(a, 0)
    a.label(Lend)
    a("s_endpgm")
    return kernel_desc(name, 160)
```

```python
import struct, os
from common import *
import common
def f32bits(x): return struct.unpack("<I", struct.pack("<f", x))[0]
VAR = os.environ.get('KFVAR', '')
PFS = [int(x) for x in os.environ.get('KFPFS', '-1,0,2,4,6,8,10').split(',')]
QSCALE = 1.4426950408889634 / (32 ** 0.5)

KF_LDS = 163840
KF_BLOCK = 768
SLOT = 40960
PPSCR = 147456
CONV0 = 65536
CP_STRIDE = 4160
H_OFF = 4 * CP_STRIDE
CH_BYTES = H_OFF + 4608
CPB = [122880 + 8768 * c for c in range(4)]
HB = [122880 + 8768 * c + 4160 for c in range(4)]
CXB = [65536 + 12608 * c + 64 for c in range(4)]
FLAG_OFF = 160768
QOFF = 49152
KMOFF = FLAG_OFF + 64
def WCH(c): return CONV0 + c * 16384 if c < 5 else (c - 5) * 16384
FL_O, FL_Y, FL_UR, FL_QKV = 0, 8, 16, 32
PPB = int(os.environ.get('KFPPB', '0'))
PUBM = int(os.environ.get('KFPUBM', '2'))

Q = 8; CN = 16; O = 32; L = 48; ONES = 52
S = [64, 80]; P = 96; KF = [112, 120]; VF = [128, 136]
WS_, SSMK, WO, AQ, DBG, OUT, XS, WQ, AK, AV, SH = 12, 16, 20, 24, 32, 36, 40, 44, 48, 52, 56
def R4(b): return f"s[{b}:{b+3}]"

def gen_kf(a, name="kf_kernel"):
    common.PV = 166
    kernel_begin(a, name)
    Lend = a.newlabel("kfend")
    a("s_cmp_ge_u32 s2, 256")
    a(f"s_cbranch_scc1 {Lend}")
    a("s_load_dwordx16 s[60:75], s[0:1], 0")
    a("s_load_dwordx8 s[76:83], s[0:1], 64")
    a("v_lshrrev_b32 v1, 6, v0")
    a("s_nop 0")
    a("v_readfirstlane_b32 s28, v1")
    a("v_and_b32 v0, 63, v0")
    common.prof_begin(a)
    a("s_and_b32 s31, s2, 7")
    a("s_lshr_b32 s8, s2, 3")
    a("s_lshl_b32 s29, s31, 2")
    a("s_lshr_b32 s9, s8, 3")
    a("s_add_u32 s29, s29, s9")
    a("s_and_b32 s30, s8, 7")
    a("s_and_b32 s3, s31, 3")
    a("s_lshl_b32 s3, s3, 2")
    a("s_and_b32 s9, s8, 3")
    a("s_add_u32 s3, s3, s9")
    a("s_lshr_b32 s4, s31, 2")
    a("s_lshl_b32 s4, s4, 3")
    a("s_lshr_b32 s9, s8, 2")
    a("s_add_u32 s4, s4, s9")
    a("s_and_b32 s5, s31, 1")
    a("s_lshl_b32 s5, s5, 3")
    a("s_and_b32 s9, s8, 7")
    a("s_add_u32 s5, s5, s9")
    a("s_lshr_b32 s6, s31, 1")
    a("s_lshl_b32 s6, s6, 2")
    a("s_lshr_b32 s9, s8, 3")
    a("s_add_u32 s6, s6, s9")
    a("v_lshlrev_b32 v1, 4, v0")
    a("s_waitcnt lgkmcnt(0)")
    srd(a, WS_, 82, WS_SIZE)
    srd(a, SSMK, 68, 1024 * 2048 * 2)
    srd(a, WO, 76, 1024 * 1024 * 2)
    srd(a, AQ, 60, 2048 * 1024 * 2)
    srd(a, DBG, 80, 256)
    srd(a, OUT, 78, 2048 * 2048 * 2)
    srd(a, XS, 72, 2048 * 1024 * 2)
    srd(a, WQ, 74, 1024 * 3072 * 2)
    srd(a, AK, 62, 2048 * 1024 * 2)
    srd(a, AV, 64, 2048 * 1024 * 2)
    srd(a, SH, 66, 1024 * 4 * 2)
    a("s_mov_b32 s10, s70")
    a("s_mov_b32 s11, s71")

    def get_nonce(v=2):
        Ln = a.newlabel("tag"); Lnd = a.newlabel("tagd")
        a(f"v_mov_b32 v{v}, 0")
        a("s_mov_b32 s95, 0")
        a.label(Ln)
        a(f"buffer_load_dword v{v+1}, v{v}, {R4(DBG)}, 0 offen sc1")
        a("s_add_u32 s95, s95, 1")
        a("s_waitcnt vmcnt(0)")
        a(f"v_readfirstlane_b32 s9, v{v+1}")
        a("s_nop 3")
        a("s_cmp_lg_u32 s9, 0")
        a(f"s_cbranch_scc1 {Lnd}")
        a("s_sleep 4")
        a("s_cmp_lt_u32 s95, 0x400000")
        a(f"s_cbranch_scc1 {Ln}")
        a.label(Lnd)
    def publish(line_sreg, entry_sreg, base, v=8):
        a(f"s_lshl_b32 s31, s{line_sreg}, 8")
        a(f"s_lshl_b32 s95, s{entry_sreg}, 2")
        a("s_add_u32 s31, s31, s95")
        a(f"s_add_u32 s31, s31, {WS_FLAG + base*256}")
        a(f"v_mov_b32 v{v}, 0")
        a(f"v_mov_b32 v{v+1}, s9")
        a("s_mov_b64 exec, 1")
        a(f"buffer_store_dword v{v+1}, v{v}, {R4(WS_)}, s31 offen sc1")
        a("s_mov_b64 exec, -1")
    def poll(line_sreg, base, n, v=8):
        Lp = a.newlabel("poll"); Lpd = a.newlabel("polld")
        a(f"s_lshl_b32 s94, s{line_sreg}, 8")
        a(f"s_add_u32 s94, s94, {WS_FLAG + base*256}")
        a(f"v_and_b32 v{v}, {n-1}, v0")
        a(f"v_lshlrev_b32 v{v}, 2, v{v}")
        a("s_mov_b32 s95, 0")
        a.label(Lp)
        a(f"buffer_load_dword v{v+1}, v{v}, {R4(WS_)}, s94 offen sc1")
        a("s_add_u32 s95, s95, 1")
        a("s_waitcnt vmcnt(0)")
        a(f"v_cmp_ne_u32 vcc, s9, v{v+1}")
        a("s_cmp_eq_u64 vcc, 0")
        a(f"s_cbranch_scc1 {Lpd}")
        a("s_sleep 4")
        a("s_cmp_lt_u32 s95, 0x400000")
        a(f"s_cbranch_scc1 {Lp}")
        a.label(Lpd)

    LC = a.newlabel("roleC"); LD = a.newlabel("roleD"); LP = a.newlabel("roleP"); LH = a.newlabel("roleH")
    Lcdma = a.newlabel("convdma"); Lconv = a.newlabel("conv")
    a("s_cmp_lt_u32 s28, 4")
    a(f"s_cbranch_scc1 {LC}")
    a("s_cmp_lt_u32 s28, 6")
    a(f"s_cbranch_scc1 {LD}")
    a("s_cmp_lt_u32 s28, 8")
    a(f"s_cbranch_scc1 {LP}")
    a(f"s_branch {LH}")

    a.label(LD)
    a("s_sub_u32 s60, s28, 4")
    a("v_lshrrev_b32 v4, 3, v0")
    a("v_and_b32 v5, 7, v0")
    a("v_lshrrev_b32 v6, 1, v4")
    a("v_xor_b32 v7, v5, v6")
    a("v_lshlrev_b32 v7, 4, v7")
    a("v_lshl_add_u32 v10, v4, 11, v7")
    a("v_xor_b32 v11, 64, v10")
    a("v_and_b32 v6, 1, v6")
    a("v_lshlrev_b32 v6, 2, v6")
    a("v_xor_b32 v7, v5, v6")
    a("v_lshlrev_b32 v7, 4, v7")
    a("v_mul_u32_u24 v12, 6144, v4")
    a("v_add_u32 v12, v12, v7")
    a("s_lshl_b32 s31, s5, 18")
    a("s_lshl_b32 s61, s60, 17")
    a("s_add_u32 s61, s61, s31")
    a("s_lshl_b32 s62, s6, 7")
    a("s_lshl_b32 s70, s60, 13")
    a("s_mul_i32 s71, s60, 12288")
    a("s_add_u32 s71, s71, 16384")
    a("s_mov_b32 s72, 0")
    a("s_mov_b32 s73, 0")
    Ld1 = a.newlabel("d1")
    a("s_cmp_eq_u32 s60, 1")
    a(f"s_cbranch_scc1 {Ld1}")
    for lw in range(2):
        if lw == 1: a.label(Ld1)
        def issue_stage():
            a("s_lshl_b32 s75, s72, 7")
            a("s_add_u32 s75, s75, s61")
            a(f"s_mul_i32 s76, s72, {64*6144}")
            a("s_add_u32 s76, s76, s62")
            a("s_add_u32 s77, s70, s73")
            a("s_add_u32 s78, s71, s73")
            for j in range(8):
                a(f"s_add_u32 m0, s77, {j*1024}")
                a(f"s_add_u32 s31, s75, {j*16384}")
                a(f"buffer_load_dwordx4 v{10 + (j & 1)}, {R4(XS)}, s31 offen lds")
            for j in range(12):
                i = 12 * lw + j
                a(f"s_add_u32 m0, s78, {j*1024}")
                a(f"s_add_u32 s31, s76, {(i & 7)*49152 + (i >> 3)*2048}")
                a(f"buffer_load_dwordx4 v12, {R4(WQ)}, s31 offen lds")
            a("s_add_u32 s72, s72, 1")
            a("s_cmp_eq_u32 s73, 0")
            a(f"s_cselect_b32 s73, {3*SLOT}, s73")
            a(f"s_sub_u32 s73, s73, {SLOT}")
        issue_stage()
        issue_stage()
        a("s_waitcnt vmcnt(20)")
        a("s_barrier")
        a("s_mov_b32 s79, 0")
        Lll = a.newlabel("dl")
        a.label(Lll)
        issue_stage()
        a("s_waitcnt vmcnt(20)")
        a("s_barrier")
        a("s_add_u32 s79, s79, 1")
        a("s_cmp_lt_u32 s79, 14")
        a(f"s_cbranch_scc1 {Lll}")
        a(f"s_branch {Lcdma}")

    a.label(LP)
    Lnt = a.newlabel("notag")
    a("s_lshl_b32 s31, s2, 4")
    a("s_add_u32 s31, s31, s28")
    a("s_cmp_lg_u32 s31, 6")
    a(f"s_cbranch_scc1 {Lnt}")
    a("s_memrealtime s[60:61]")
    a("s_waitcnt lgkmcnt(0)")
    a("s_or_b32 s60, s60, 1")
    a("v_mov_b32 v2, s60")
    a("v_mov_b32 v4, 0")
    a("s_mov_b64 exec, 1")
    a(f"buffer_store_dword v2, v4, {R4(DBG)}, 0 offen sc1")
    a("s_mov_b64 exec, -1")
    a.label(Lnt)
    a("s_lshr_b32 s8, s2, 3")
    a("v_lshrrev_b32 v6, 1, v0")
    a("v_lshlrev_b32 v6, 11, v6")
    a("v_and_b32 v7, 1, v0")
    a("v_lshl_add_u32 v6, v7, 7, v6")
    a("s_and_b32 s31, s2, 1")
    a("s_lshl_b32 s31, s31, 10")
    a("s_lshl_b32 s60, s8, 5")
    a("s_add_u32 s31, s31, s60")
    a("s_lshl_b32 s62, s31, 11")
    a("v_lshrrev_b32 v8, 5, v0")
    a(f"v_mul_u32_u24 v8, {64*6144}, v8")
    a("v_bfe_u32 v7, v0, 4, 1")
    a("v_mul_u32_u24 v7, 6144, v7")
    a("v_add_u32 v8, v8, v7")
    a("v_bfe_u32 v7, v0, 2, 2")
    a("v_min_u32 v7, 2, v7")
    a("v_lshl_add_u32 v8, v7, 11, v8")
    a("v_and_b32 v7, 3, v0")
    a("v_lshl_add_u32 v8, v7, 7, v8")
    a("s_lshl_b32 s8, s8, 1")
    a("s_mul_i32 s63, s8, 6144")
    a("s_bfe_u32 s31, s2, 0x20001")
    a("s_lshl_b32 s31, s31, 9")
    a("s_add_u32 s63, s63, s31")
    a("s_cmp_eq_u32 s28, 6")
    a(f"s_cselect_b32 s88, s{XS}, s{WQ}")
    a(f"s_cselect_b32 s89, s{XS+1}, s{WQ+1}")
    a(f"s_cselect_b32 s90, s{XS+2}, s{WQ+2}")
    a("s_mov_b32 s91, 0x00020000")
    a("s_cselect_b32 s62, s62, s63")
    a(f"s_mov_b32 s31, {2*64*6144}")
    a("s_cselect_b32 s65, 256, s31")
    a("s_cselect_b64 vcc, -1, 0")
    a("v_cndmask_b32 v6, v8, v6, vcc")
    def pf():
        a("s_add_u32 s62, s62, s65")
        a("buffer_load_dword v9, v6, s[88:91], s62 offen sc1")
    for _ in range(PFS.count(-1)): pf()
    a(f"s_mul_i32 s66, s2, {4*UR_STRIDE}")
    a(f"s_add_u32 s66, s66, {WS_UR0}")
    a("s_lshl_b32 s67, s2, 14")
    def dma_h(ch):
        for pc in range(4):
            a(f"s_mov_b32 m0, {HB[ch] + 512 + pc*1024}")
            a(f"s_add_u32 s31, s67, {ch*4096 + pc*1024}")
            a(f"buffer_load_dwordx4 v1, {R4(SSMK)}, s31 offen lds")
        a(f"s_mov_b32 s31, {WS_SIZE}")
        a("s_mov_b32 exec_hi, 0")
        a(f"s_mov_b32 m0, {HB[ch]}")
        a("s_nop 0")
        a(f"buffer_load_dwordx4 v1, {R4(WS_)}, s31 offen lds")
        a("s_mov_b64 exec, -1")
    def dma_u(ch):
        for pc in range(4):
            a(f"s_mov_b32 m0, {CPB[ch] + pc*1024}")
            a(f"s_add_u32 s31, s66, {ch*UR_STRIDE + pc*1024}")
            a(f"buffer_load_dwordx4 v1, {R4(WS_)}, s31 offen sc1 lds")
        a(f"s_mov_b32 s31, {WS_SIZE}")
        a("s_mov_b64 exec, 15")
        a(f"s_mov_b32 m0, {CPB[ch] + 4096}")
        a("s_nop 0")
        a(f"buffer_load_dwordx4 v1, {R4(WS_)}, s31 offen lds")
        a("s_mov_b64 exec, -1")
    def by_wave(f6, f7):
        L7 = a.newlabel("w7"); Le = a.newlabel("we")
        a("s_bitcmp1_b32 s28, 0")
        a(f"s_cbranch_scc1 {L7}")
        f6()
        a(f"s_branch {Le}")
        a.label(L7)
        f7()
        a.label(Le)
    UP = int(os.environ.get('KFUP', '11'))
    for s in range(15):
        if s == 4: get_nonce()
        a("s_barrier")
        for _ in range(PFS.count(s)): pf()
        if s == 3:
            a("v_lshlrev_b32 v10, 7, v0")
            a("s_and_b32 s31, s28, 1")
            a("s_lshl_b32 s31, s31, 13")
            a("s_add_u32 s31, s31, s67")
            a(f"buffer_load_dword v9, v10, {R4(SSMK)}, s31 offen sc1")
        if s == UP:
            a("s_lshr_b32 s68, s2, 4")
            poll(68, FL_UR, 16)
            if 'xcd' not in VAR: by_wave(lambda: (dma_u(0), dma_h(0), dma_u(1), dma_h(1)), lambda: (dma_u(2), dma_h(2), dma_u(3), dma_h(3)))
    a("s_barrier")
    a("s_waitcnt vmcnt(0)")
    a(f"s_branch {Lconv}")
    a.label(Lcdma)
    a("s_waitcnt vmcnt(0)")
    a("s_barrier")
    a(f"s_branch {Lconv}")

    a.label(LC)
    a("s_and_b32 s60, s28, 1")
    a("s_lshr_b32 s61, s28, 1")
    a("v_and_b32 v56, 31, v0")
    a("v_lshrrev_b32 v2, 5, v0")
    a("v_lshrrev_b32 v3, 1, v56")
    a("v_and_b32 v3, 7, v3")
    a("s_lshl_b32 s62, s60, 13")
    a("v_lshlrev_b32 v9, 7, v56")
    a("v_add_u32 v9, s62, v9")
    for ks in range(4):
        a(f"v_or_b32 v15, {2*ks}, v2")
        a("v_xor_b32 v15, v15, v3")
        a(f"v_lshl_add_u32 v{4+ks}, v15, 4, v9")
    a("v_and_b32 v56, 15, v0")
    a("v_lshrrev_b32 v3, 2, v56")
    a("v_and_b32 v56, 3, v56")
    a("v_lshrrev_b32 v15, 4, v0")
    a("v_and_b32 v15, 1, v15")
    a("v_lshlrev_b32 v15, 5, v15")
    a("v_lshl_add_u32 v15, v56, 3, v15")
    a("s_lshl_b32 s62, s61, 6")
    a("v_add_u32 v15, s62, v15")
    a("v_lshrrev_b32 v56, 1, v3")
    a("v_and_b32 v56, 1, v56")
    a("v_lshlrev_b32 v56, 6, v56")
    a("v_xor_b32 v15, v15, v56")
    a("v_lshl_add_u32 v3, v2, 3, v3")
    a("v_lshl_add_u32 v8, v3, 7, v15")
    a("v_add_u32 v8, 16384, v8")
    for i in range(4): a(f"v_mov_b32 v{10+i}, v{4+i}")
    a("v_mov_b32 v14, v8")
    for i in range(96): a(f"v_mov_b32 v{64+i}, 0")
    def Xf(b, mt): return 16 + 8 * b + 4 * mt
    def Wf(b, p): return 32 + 12 * b + 4 * p
    def acc(mt, p): return 64 + 16 * (3 * mt + p)
    def reads(ks, b):
        r = []
        for mt in range(2):
            r.append(f"ds_read_b128 v[{Xf(b,mt)}:{Xf(b,mt)+3}], v{10+ks} offset:{mt*4096}")
        for p in range(3):
            for z in range(2):
                r.append(f"ds_read_b64_tr_b16 v[{Wf(b,p)+2*z}:{Wf(b,p)+2*z+1}], v14 offset:{p*8192+ks*2048+z*512}")
        return r
    def mfmas(b):
        r = []
        for mt in range(2):
            for p in range(3):
                A, B = (Wf(b, p), Xf(b, mt)) if p < 2 else (Xf(b, mt), Wf(b, p))
                r.append(f"v_mfma_f32_32x32x16_bf16 v[{acc(mt,p)}:{acc(mt,p)+15}], v[{A}:{A+3}], v[{B}:{B+3}], v[{acc(mt,p)}:{acc(mt,p)+15}]")
        return r
    a("s_mov_b32 s72, 0")
    a("s_mov_b32 s73, 0")
    a("s_barrier")
    common.stamp(a, 1)
    for x in reads(0, 0): a(x)
    Ls = a.newlabel("stage"); Llast = a.newlabel("last")
    a.label(Ls)
    for ks in range(3):
        b = ks & 1
        a("s_waitcnt lgkmcnt(0)")
        m = mfmas(b); r = reads(ks + 1, b ^ 1)
        a(m[0]); [a(x) for x in r[0:4]]
        a(m[1]); [a(x) for x in r[4:8]]
        for x in m[2:]: a(x)
    a("s_waitcnt lgkmcnt(0)")
    a("s_cmp_eq_u32 s72, 15")
    a(f"s_cbranch_scc1 {Llast}")
    a("s_barrier")
    a("s_cmp_eq_u32 s73, 0")
    a(f"s_cselect_b32 s73, {3*SLOT}, s73")
    a(f"s_sub_u32 s73, s73, {SLOT}")
    for i in range(4): a(f"v_add_u32 v{10+i}, s73, v{4+i}")
    a("v_add_u32 v14, s73, v8")
    for x in reads(0, 0): a(x)
    for x in mfmas(1): a(x)
    a("s_add_u32 s72, s72, 1")
    a(f"s_branch {Ls}")
    a.label(Llast)
    for x in mfmas(1): a(x)
    a("v_mov_b32 v56, 0")
    a(f"buffer_load_dword v57, v56, {R4(DBG)}, 0 offen sc1")
    a("s_nop 15")
    common.stamp(a, 2)
    a("s_lshl_b32 s62, s6, 1")
    a("s_add_u32 s62, s62, s61")
    a("s_lshl_b32 s63, s5, 2")
    a("s_lshl_b32 s64, s60, 1")
    a("s_add_u32 s63, s63, s64")
    a("s_lshl_b32 s64, s62, 6")
    a("s_add_u32 s64, s64, s63")
    a("s_lshl_b32 s64, s64, 11")
    a(f"s_mov_b32 s66, {f32bits(QSCALE)}")
    for p in (1, 2, 0):
        for mt in range(2):
            base = acc(mt, p)
            if p == 0:
                for i in range(16): a(f"v_mul_f32 v{base+i}, s66, v{base+i}")
            for i in range(8):
                a(f"v_cvt_pk_bf16_f32 v{base+i}, v{base+2*i}, v{base+2*i+1}")
            a(f"s_add_u32 s65, s64, {[WS_Q, WS_K, WS_V][p] + mt*2048}")
            a(f"buffer_store_dwordx4 v[{base}:{base+3}], v1, {R4(WS_)}, s65 offen sc1")
            a(f"buffer_store_dwordx4 v[{base+4}:{base+7}], v1, {R4(WS_)}, s65 offen offset:1024 sc1")
    for mt in range(2):
        d = acc(mt, 1)
        for i in range(8):
            c = "0" if i == 0 else f"v{16+mt}"
            a(f"v_dot2_f32_bf16 v{16+mt}, v{d+i}, v{d+i}, {c}")
    a("s_nop 3")
    a("v_mov_b32 v18, v16")
    a("v_mov_b32 v19, v17")
    a("s_nop 1")
    a("v_permlane32_swap_b32 v18, v16")
    a("v_permlane32_swap_b32 v19, v17")
    a("s_nop 1")
    a("v_add_f32 v16, v16, v18")
    a("v_add_f32 v17, v17, v19")
    a("v_max_f32 v16, v16, v17")
    for dpp in ("quad_perm:[1,0,3,2]", "quad_perm:[2,3,0,1]", "row_half_mirror", "row_mirror"):
        a("s_nop 1")
        a(f"v_max_f32_dpp v16, v16, v16 {dpp} row_mask:0xf bank_mask:0xf")
    a("s_nop 1")
    a("v_mov_b32 v17, v16")
    a("s_nop 1")
    a("v_permlane16_swap_b32 v17, v16")
    a("s_nop 1")
    a("v_max_f32 v16, v16, v17")
    a("s_lshl_b32 s64, s62, 5")
    a("s_lshl_b32 s65, s5, 1")
    a("s_add_u32 s64, s64, s65")
    a("s_add_u32 s64, s64, s60")
    a("s_lshl_b32 s64, s64, 2")
    a(f"s_add_u32 s64, s64, {WS_KMAX}")
    a("s_mov_b64 exec, 1")
    a(f"buffer_store_dword v16, v56, {R4(WS_)}, s64 offen sc1")
    a("s_mov_b64 exec, -1")
    a("s_mov_b32 s86, s62")
    a("s_lshl_b32 s87, s5, 1")
    a("s_add_u32 s87, s87, s60")
    a("s_waitcnt vmcnt(13)")
    a("v_readfirstlane_b32 s9, v57")

    a.label(Lconv)
    a("s_and_b32 s60, s28, 3")
    a("s_lshr_b32 s61, s28, 2")
    a("s_lshl_b32 s62, s2, 2")
    a("s_add_u32 s62, s62, s60")
    a(f"s_mov_b32 s63, {CPB[0]}")
    a(f"s_mov_b32 s65, {HB[0]}")
    a(f"s_mov_b32 s68, {CXB[0]}")
    for ch in range(1, 4):
        a(f"s_cmp_eq_u32 s60, {ch}")
        a(f"s_cselect_b32 s63, {CPB[ch]}, s63")
        a(f"s_cselect_b32 s65, {HB[ch]}, s65")
        a(f"s_cselect_b32 s68, {CXB[ch]}, s68")
    a("s_lshr_b32 s31, s62, 1")
    a("s_lshl_b32 s31, s31, 2")
    a("s_add_u32 s66, s10, s31")
    a("s_addc_u32 s67, s11, 0")
    a("s_load_dword s70, s[66:67], 0")
    a("v_and_b32 v2, 15, v0")
    a("v_lshrrev_b32 v3, 4, v0")
    a("v_sub_u32 v4, 3, v2")
    a("v_and_b32 v4, 3, v4")
    a("v_cmp_eq_u32 vcc, 0, v4")
    a(f"v_mul_u32_u24 v4, {CP_STRIDE}, v4")
    a(f"s_sub_u32 s31, s68, {CP_STRIDE}")
    a("v_add_u32 v4, s31, v4")
    a("v_mov_b32 v5, s63")
    a("v_cndmask_b32 v4, v4, v5, vcc")
    a("v_lshrrev_b32 v5, 2, v2")
    a("v_lshlrev_b32 v6, 1, v3")
    a("v_sub_u32 v5, v6, v5")
    a("v_add_u32 v5, 3, v5")
    a("v_lshl_add_u32 v4, v5, 3, v4")
    a("v_lshlrev_b32 v5, 5, v2")
    a("v_lshl_add_u32 v5, v3, 4, v5")
    a("s_add_u32 s31, s65, 32")
    a("v_add_u32 v5, s31, v5")
    a("v_lshlrev_b32 v6, 5, v2")
    a("v_lshl_add_u32 v6, v3, 3, v6")
    a("s_add_u32 s31, s63, 504")
    a("v_sub_u32 v7, s31, v6")
    a("s_lshl_b32 s64, s62, 12")
    a(f"s_add_u32 s64, s64, {WS_YT}")
    a("s_waitcnt lgkmcnt(0)")
    a("s_lshl_b32 s31, s61, 11")
    a("v_lshlrev_b32 v26, 5, v0")
    a("v_add_u32 v26, s31, v26")
    a("v_add_u32 v27, s68, v26")
    a("v_add_u32 v26, s63, v26")
    a("s_barrier")
    common.stamp(a, 3)
    for i in range(3): a(f"ds_read_b128 v[{32+4*i}:{35+4*i}], v26 offset:{16*i}")
    a("v_lshrrev_b32 v28, 1, v0")
    a(f"v_mul_u32_u24 v28, {CP_STRIDE}, v28")
    a("v_and_b32 v29, 1, v0")
    a("v_lshl_add_u32 v28, v29, 4, v28")
    a("s_add_u32 s31, s68, 4096")
    a("v_add_u32 v28, s31, v28")
    for i in range(4): a(f"v_mov_b32 v{72+i}, 0")
    a("s_mov_b64 exec, 63")
    a("ds_write_b128 v28, v[72:75]")
    a("s_mov_b64 exec, -1")
    a("s_waitcnt lgkmcnt(1)")
    for k in range(8):
        a(f"v_alignbyte_b32 v{48+k}, v{33+k}, v{32+k}, 2")
        a(f"v_mov_b32 v{56+k}, v{33+k}")
        a(f"v_alignbyte_b32 v{64+k}, v{34+k}, v{33+k}, 2")
    for cc in range(3):
        for j in range(2):
            a(f"ds_write_b128 v27, v[{48+8*cc+4*j}:{51+8*cc+4*j}] offset:{cc*CP_STRIDE + 16*j}")
    a("s_waitcnt lgkmcnt(0)")
    a("s_barrier")
    a("s_bitcmp1_b32 s62, 0")
    a("s_cselect_b32 s31, 0, 16")
    a("s_lshl_b32 s70, s70, s31")
    a("s_and_b32 s70, s70, 0xffff0000")
    ACC = 8
    def AF(b, x): return 32 + 64 * b + 4 * x
    def BF(b, x): return 64 + 64 * b + 4 * x
    Lh1 = a.newlabel("h1"); Lcd = a.newlabel("cdone")
    a("s_cmp_eq_u32 s61, 1")
    a(f"s_cbranch_scc1 {Lh1}")
    for hw in range(2):
        if hw == 1: a.label(Lh1)
        Ts = [0, 3, 4, 7] if hw == 0 else [1, 2, 5, 6]
        mx = max(Ts)
        def rd(m0, b):
            r = []
            for x in range(mx + 1):
                o = 64*(63-(m0+8*x))
                r.append(f"ds_read_b64 v[{AF(b,x)}:{AF(b,x)+1}], v4 offset:{o}")
                r.append(f"ds_read_b64 v[{AF(b,x)+2}:{AF(b,x)+3}], v4 offset:{o+8}")
                r.append(f"ds_read_b128 v[{BF(b,x)}:{BF(b,x)+3}], v5 offset:{512*x+64*(7-m0)}")
            return r
        for x in rd(0, 0): a(x)
        for m0 in range(8):
            b = m0 & 1
            a("s_waitcnt lgkmcnt(0)")
            if hw == 0 and m0 == PUBM:
                a("s_waitcnt vmcnt(0)")
                publish(86, 87, FL_QKV, v=24)
            nxt = rd(m0 + 1, b ^ 1) if m0 < 7 else []
            mf = []
            for ti, T in enumerate(Ts):
                for x in range(T + 1):
                    c = "0" if (m0 == 0 and x == 0) else f"v[{ACC+4*ti}:{ACC+4*ti+3}]"
                    mf.append(f"v_mfma_f32_16x16x32_bf16 v[{ACC+4*ti}:{ACC+4*ti+3}], v[{AF(b,x)}:{AF(b,x)+3}], v[{BF(b,T-x)}:{BF(b,T-x)+3}], {c}")
            k = 0
            for i, m in enumerate(mf):
                a(m)
                for _ in range(2):
                    if k < len(nxt): a(nxt[k]); k += 1
        for ti, T in enumerate(Ts):
            a(f"ds_read_b64 v[{32+2*ti}:{33+2*ti}], v7 offset:{512*(7-T)}")
        a("s_waitcnt lgkmcnt(0)")
        a("s_nop 7")
        for ti, T in enumerate(Ts):
            r0, r1 = 32 + 2 * ti, 33 + 2 * ti
            a(f"v_and_b32 v48, 0xffff0000, v{r1}")
            a(f"v_lshlrev_b32 v49, 16, v{r1}")
            a(f"v_and_b32 v50, 0xffff0000, v{r0}")
            a(f"v_lshlrev_b32 v51, 16, v{r0}")
            for e in range(4):
                a(f"v_fma_f32 v{ACC+4*ti+e}, v{48+e}, s70, v{ACC+4*ti+e}")
            a(f"v_cvt_pk_bf16_f32 v{56+2*ti}, v{ACC+4*ti}, v{ACC+4*ti+1}")
            a(f"v_cvt_pk_bf16_f32 v{57+2*ti}, v{ACC+4*ti+2}, v{ACC+4*ti+3}")
            a(f"buffer_store_dwordx2 v[{56+2*ti}:{57+2*ti}], v6, {R4(WS_)}, s64 offen offset:{512*T} sc1")
        if hw == 0: a(f"s_branch {Lcd}")
    a.label(Lcd)
    a("v_lshrrev_b32 v2, 4, v0")
    a("v_xor_b32 v2, v2, v0")
    a("v_and_b32 v2, 1, v2")
    a("v_cmp_eq_u32 vcc, 0, v2")
    a("v_mov_b32 v3, 0x3f803f80")
    a("s_nop 1")
    for i in range(4): a(f"v_cndmask_b32 v{ONES+i}, 0, v3, vcc")
    a("s_lshl_b32 s31, s28, 11")
    a(f"s_add_u32 s31, s31, {QOFF}")
    a("v_add_u32 v2, s31, v1")
    a("v_and_b32 v3, 31, v0")
    a("v_lshlrev_b32 v3, 2, v3")
    a(f"v_add_u32 v3, {KMOFF}, v3")
    a("s_barrier")
    common.stamp(a, 4)
    a(f"ds_read_b128 v[{Q}:{Q+3}], v2")
    a(f"ds_read_b128 v[{Q+4}:{Q+7}], v2 offset:1024")
    a("ds_read_b32 v6, v3")
    a("s_waitcnt lgkmcnt(0)")
    for i in range(8):
        c = "0" if i == 0 else "v4"
        a(f"v_dot2_f32_bf16 v4, v{Q+i}, v{Q+i}, {c}")
    for dpp in ("quad_perm:[1,0,3,2]", "quad_perm:[2,3,0,1]", "row_half_mirror", "row_mirror"):
        a("s_nop 1")
        a(f"v_max_f32_dpp v6, v6, v6 {dpp} row_mask:0xf bank_mask:0xf")
    a("s_nop 1")
    a("v_mov_b32 v7, v6")
    a("v_mov_b32 v5, v4")
    a("s_nop 1")
    a("v_permlane16_swap_b32 v7, v6")
    a("v_permlane32_swap_b32 v5, v4")
    a("s_nop 1")
    a("v_max_f32 v6, v6, v7")
    a("v_add_f32 v4, v4, v5")
    a("v_mul_f32 v4, v6, v4")
    a("v_sqrt_f32 v4, v4")
    a("s_nop 0")
    a("v_sub_f32 v4, 0, v4")
    a("s_mov_b32 s7, 0")
    Lgo = a.newlabel("go"); Lrestart = a.newlabel("restart")
    a(f"s_branch {Lgo}")
    a.label(Lrestart)
    a("s_barrier")
    a.label(Lgo)
    for i in range(16): a(f"v_mov_b32 v{CN+i}, v4")
    for i in range(16): a(f"v_mov_b32 v{O+i}, 0")
    for i in range(4): a(f"v_mov_b32 v{L+i}, 0")
    for i in range(4, 8): a(f"v_mov_b32 v{P+i}, 0")
    for i in range(4, 8): a(f"v_mov_b32 v{VF[1]+i}, 0")
    a("v_mov_b32 v2, v1")
    a("v_add_u32 v3, 16384, v1")
    def kread(buf, areg, tile):
        return [f"ds_read_b128 v[{KF[buf]}:{KF[buf]+3}], v{areg} offset:{tile*2048}",
                f"ds_read_b128 v[{KF[buf]+4}:{KF[buf]+7}], v{areg} offset:{tile*2048+1024}"]
    def vread(buf, areg, tile):
        return [f"ds_read_b128 v[{VF[buf]}:{VF[buf]+3}], v{areg} offset:{8192+tile*2048}",
                f"ds_read_b128 v[{VF[buf]+4}:{VF[buf]+7}], v{areg} offset:{8192+tile*2048+1024}"]
    def qk(sb, kb, half):
        c = f"v[{CN}:{CN+15}]" if half == 0 else f"v[{S[sb]}:{S[sb]+15}]"
        return f"v_mfma_f32_32x32x16_bf16 v[{S[sb]}:{S[sb]+15}], v[{KF[kb]+4*half}:{KF[kb]+4*half+3}], v[{Q+4*half}:{Q+4*half+3}], {c}"
    def pv(vb, half):
        return f"v_mfma_f32_32x32x16_bf16 v[{O}:{O+15}], v[{VF[vb]+4*half}:{VF[vb]+4*half+3}], v[{P+4*half}:{P+4*half+3}], v[{O}:{O+15}]"
    def lsum(half):
        return f"v_mfma_f32_16x16x32_bf16 v[{L}:{L+3}], v[{ONES}:{ONES+3}], v[{P+4*half}:{P+4*half+3}], v[{L}:{L+3}]"
    for x in kread(0, 2, 0): a(x)
    for x in kread(1, 2, 1): a(x)
    for x in vread(0, 2, 0): a(x)
    a("s_waitcnt lgkmcnt(4)")
    a(qk(0, 0, 0)); a(qk(0, 0, 1))
    a("s_mov_b32 s8, 0")
    a("s_waitcnt vmcnt(0)")
    a("s_nop 11")
    Lloop = a.newlabel("loop")
    a.label(Lloop)
    for tl in range(4):
        sb = tl & 1; nb_ = sb ^ 1
        def ex(i): return f"v_exp_f32 v{S[sb]+i}, v{S[sb]+i}"
        def cv(i): return f"v_cvt_pk_bf16_f32 v{P+i}, v{S[sb]+2*i}, v{S[sb]+2*i+1}"
        a("s_waitcnt lgkmcnt(2)")
        a(qk(nb_, nb_, 0))
        for i in range(0, 4): a(ex(i))
        a(qk(nb_, nb_, 1))
        for i in range(4, 6): a(ex(i))
        if tl == 2: a("s_barrier")
        kr = kread(sb, 2, tl + 2) if tl < 2 else kread(sb, 3, tl - 2)
        for x in kr: a(x)
        for i in range(6, 8): a(ex(i))
        a(pv(nb_, 1))
        for i in range(0, 4): a(cv(i))
        a(ex(8))
        a(lsum(1))
        for i in range(9, 12): a(ex(i))
        a("s_waitcnt lgkmcnt(2)")
        a(pv(sb, 0))
        vr_ = vread(nb_, 2, tl + 1) if tl < 3 else vread(nb_, 3, 0)
        for x in vr_: a(x)
        for i in range(12, 16): a(ex(i))
        a(lsum(0))
        if tl == 3:
            a("v_mov_b32 v2, v3")
            a("v_add_u32 v3, 16384, v3")
            a("v_and_b32 v3, 0xffff, v3")
            a("s_add_u32 s8, s8, 1")
            a("s_cmp_lt_u32 s8, 16")
        for i in range(4, 8): a(cv(i))
    a(f"s_cbranch_scc1 {Lloop}")
    a("s_nop 1")
    a(pv(1, 1))
    a(lsum(1))
    a("s_waitcnt lgkmcnt(0)")
    a("s_nop 15")
    common.stamp(a, 5)
    a("v_and_b32 v5, 16, v0")
    a("v_cmp_ne_u32 vcc, 0, v5")
    a("s_nop 1")
    a(f"v_cndmask_b32 v5, v{L}, v{L+1}, vcc")
    Lok = a.newlabel("ok")
    a("s_cmp_lg_u32 s7, 0")
    a(f"s_cbranch_scc1 {Lok}")
    a(f"v_mov_b32 v6, {f32bits(2.0**-60)}")
    a("v_cmp_nge_f32 vcc, v5, v6")
    Lnf = a.newlabel("nf")
    a("s_cmp_eq_u64 vcc, 0")
    a(f"s_cbranch_scc1 {Lnf}")
    a(f"v_mov_b32 v6, {FLAG_OFF}")
    a("v_mov_b32 v7, 1")
    a("ds_write_b32 v6, v7")
    a.label(Lnf)
    a("s_waitcnt lgkmcnt(0)")
    a("s_barrier")
    a(f"v_mov_b32 v6, {FLAG_OFF}")
    a("ds_read_b32 v7, v6")
    a("s_waitcnt lgkmcnt(0)")
    a("v_readfirstlane_b32 s31, v7")
    a("s_nop 3")
    a("s_cmp_eq_u32 s31, 0")
    a(f"s_cbranch_scc1 {Lok}")
    a("s_mov_b32 s7, 1")
    a("v_mov_b32 v4, 0xff800000")
    a("s_lshl_b32 s31, s29, 17")
    a(f"s_add_u32 s31, s31, {WS_K}")
    a("s_mov_b32 s8, 0")
    Lfb = a.newlabel("fb")
    a.label(Lfb)
    a(f"buffer_load_dwordx4 v[{KF[0]}:{KF[0]+3}], v1, {R4(WS_)}, s31 offen sc1")
    a(f"buffer_load_dwordx4 v[{KF[0]+4}:{KF[0]+7}], v1, {R4(WS_)}, s31 offen offset:1024 sc1")
    a("s_waitcnt vmcnt(0)")
    a(f"v_mfma_f32_32x32x16_bf16 v[{S[0]}:{S[0]+15}], v[{KF[0]}:{KF[0]+3}], v[{Q}:{Q+3}], 0")
    a(f"v_mfma_f32_32x32x16_bf16 v[{S[0]}:{S[0]+15}], v[{KF[0]+4}:{KF[0]+7}], v[{Q+4}:{Q+7}], v[{S[0]}:{S[0]+15}]")
    a("s_nop 15")
    for i in range(8): a(f"v_max3_f32 v4, v4, v{S[0]+2*i}, v{S[0]+2*i+1}")
    a("s_add_u32 s31, s31, 2048")
    a("s_add_u32 s8, s8, 1")
    a("s_cmp_lt_u32 s8, 64")
    a(f"s_cbranch_scc1 {Lfb}")
    a("v_mov_b32 v5, v4")
    a("s_nop 1")
    a("v_permlane32_swap_b32 v5, v4")
    a("s_nop 1")
    a("v_max_f32 v4, v4, v5")
    a("v_sub_f32 v4, 0, v4")
    a(f"s_branch {Lrestart}")
    a.label(Lok)
    a("v_rcp_f32 v5, v5")
    a("s_nop 0")
    for i in range(16): a(f"v_mul_f32 v{O+i}, v{O+i}, v5")
    for i in range(8): a(f"v_cvt_pk_bf16_f32 v{P+i}, v{O+2*i}, v{O+2*i+1}")
    a("s_lshl_b32 s31, s30, 3")
    a("s_add_u32 s31, s31, s28")
    a("s_lshl_b32 s31, s31, 5")
    a("s_add_u32 s31, s31, s29")
    a("s_lshl_b32 s31, s31, 11")
    a(f"s_add_u32 s31, s31, {WS_O}")
    a(f"buffer_store_dwordx4 v[{P}:{P+3}], v1, {R4(WS_)}, s31 offen sc1")
    a(f"buffer_store_dwordx4 v[{P+4}:{P+7}], v1, {R4(WS_)}, s31 offen offset:1024 sc1")
    a("s_waitcnt vmcnt(0)")
    a("s_barrier")
    common.stamp(a, 6)
    Lg3 = a.newlabel("g3")
    a("s_cmp_lt_u32 s28, 4")
    a(f"s_cbranch_scc1 {Lg3}")
    common.endpgm(a, 0)
    a.label(Lg3)
    Lnp = a.newlabel("np3")
    a("s_cmp_lg_u32 s28, 0")
    a(f"s_cbranch_scc1 {Lnp}")
    publish(30, 29, FL_O)
    a("s_lshr_b32 s8, s3, 1")
    poll(8, FL_O, 32)
    a.label(Lnp)
    a("s_lshl_b32 s60, s3, 2")
    a("s_add_u32 s60, s60, s28")
    a("s_lshl_b32 s61, s60, 16")
    a(f"s_add_u32 s61, s61, {WS_O}")
    NPF = 24
    def OF(i): return 64 + 4 * (i % NPF)
    def oload(f):
        a(f"s_add_u32 s31, s61, {(f//4)*4096}")
        a(f"buffer_load_dwordx4 v[{OF(f)}:{OF(f)+3}], v1, {R4(WS_)}, s31 offen offset:{(f%4)*1024} sc1")
    a("v_and_b32 v2, 15, v0")
    a("v_lshrrev_b32 v3, 2, v2")
    a("v_and_b32 v2, 3, v2")
    a("v_lshrrev_b32 v4, 4, v0")
    a("v_and_b32 v4, 1, v4")
    a("v_lshlrev_b32 v4, 5, v4")
    a("v_lshl_add_u32 v4, v2, 3, v4")
    a("v_lshrrev_b32 v5, 1, v3")
    a("v_and_b32 v5, 1, v5")
    a("v_lshlrev_b32 v5, 6, v5")
    a("v_xor_b32 v4, v4, v5")
    a("v_lshrrev_b32 v5, 5, v0")
    a("v_lshl_add_u32 v3, v5, 2, v3")
    a("v_lshl_add_u32 v10, v3, 7, v4")
    a("v_xor_b32 v11, 64, v10")
    GA = 32
    for i in range(32): a(f"v_mov_b32 v{GA+i}, 0")
    def WF(b, u): return 16 + 8 * b + 4 * u
    def wread(fl, b):
        r = []
        for u in range(2):
            for z in range(2):
                r.append(f"ds_read_b64_tr_b16 v[{WF(b,u)+2*z}:{WF(b,u)+2*z+1}], v{8+u} offset:{fl*2048+z*1024}")
        return r
    a("s_barrier")
    common.stamp(a, 7)
    for f in range(NPF): oload(f)
    for c in range(8):
        a(f"v_add_u32 v8, {WCH(c)}, v10")
        a(f"v_add_u32 v9, {WCH(c)}, v11")
        for x in wread(0, 0): a(x)
        for fl in range(8):
            f = 8 * c + fl
            b = fl & 1
            if fl < 7:
                for x in wread(fl + 1, b ^ 1): a(x)
                a("s_waitcnt lgkmcnt(4)")
            else:
                a("s_waitcnt lgkmcnt(0)")
            rem = min(NPF - 1, 63 - f)
            a(f"s_waitcnt vmcnt({rem})")
            for u in range(2):
                a(f"v_mfma_f32_32x32x16_bf16 v[{GA+16*u}:{GA+16*u+15}], v[{WF(b,u)}:{WF(b,u)+3}], v[{OF(f)}:{OF(f)+3}], v[{GA+16*u}:{GA+16*u+15}]")
            if f + NPF < 64: oload(f + NPF)
    a("s_nop 15")
    a("v_and_b32 v2, 31, v0")
    a("v_lshlrev_b32 v2, 12, v2")
    a("v_lshl_add_u32 v2, v5, 4, v2")
    a("s_lshl_b32 s62, s60, 17")
    a("s_lshl_b32 s63, s4, 7")
    a("s_add_u32 s62, s62, s63")
    a("s_add_u32 s62, s62, 2048")
    for u in range(2):
        for gp in range(2):
            d = 64 + 8 * u + 4 * gp
            src = GA + 16 * u + 8 * gp
            for i in range(4):
                a(f"v_cvt_pk_bf16_f32 v{d+i}, v{src+2*i}, v{src+2*i+1}")
            a("s_nop 1")
            a(f"v_permlane32_swap_b32 v{d}, v{d+2}")
            a(f"v_permlane32_swap_b32 v{d+1}, v{d+3}")
            a("s_nop 1")
            a(f"buffer_store_dwordx4 v[{d}:{d+3}], v2, {R4(OUT)}, s62 offen offset:{64*u+32*gp}")
    common.endpgm(a, 0)

    a.label(LH)
    a("s_sub_u32 s28, s28, 8")
    def kreg(i): return 64 + 4 * i
    def vreg(j): return 92 + 4 * j
    a("s_lshr_b32 s80, s2, 4")
    a("s_lshl_b32 s80, s80, 2")
    a("s_add_u32 s80, s80, s28")
    a("s_and_b32 s81, s2, 15")
    a("s_lshl_b32 s82, s80, 5")
    a("s_lshl_b32 s83, s81, 6")
    a("v_lshrrev_b32 v11, 3, v0")
    a("v_and_b32 v12, 7, v0")
    a("s_lshl_b32 s84, s83, 3")
    a("v_lshlrev_b32 v13, 6, v12")
    if PPB >= 0: a("s_barrier")
    if PPB >= 1: a("s_barrier")
    for i in range(4):
        if 'xld' not in VAR: a(f"buffer_load_dwordx4 v[{140+4*i}:{143+4*i}], v13, {R4(SH)}, s84 offen offset:{16*i}")
    a("s_lshl_b32 s84, s82, 11")
    a("s_lshl_b32 s85, s83, 1")
    a("s_add_u32 s84, s84, s85")
    a("v_lshlrev_b32 v13, 13, v11")
    a("v_lshl_add_u32 v13, v12, 4, v13")
    a("v_add_u32 v13, s84, v13")
    for i in range(3):
        a(f"v_subrev_u32 v{8+i}, {2048*(3-i)}, v13")
    for i in range(3):
        if 'xld' not in VAR: a(f"buffer_load_dwordx4 v[{kreg(i)}:{kreg(i)+3}], v{8+i}, {R4(AK)}, 0 offen")
    for j in range(4):
        a(f"s_mov_b32 s84, {2048*j}")
        if 'xld' not in VAR: a(f"buffer_load_dwordx4 v[{kreg(3+j)}:{kreg(3+j)+3}], v13, {R4(AK)}, s84 offen")
        if 'xld' not in VAR: a(f"buffer_load_dwordx4 v[{vreg(j)}:{vreg(j)+3}], v13, {R4(AV)}, s84 offen")
    a("s_lshl_b32 s86, s28, 12")
    a(f"s_add_u32 s86, s86, {PPSCR}")
    a("v_lshlrev_b32 v14, 9, v11")
    a("v_lshl_add_u32 v14, v12, 4, v14")
    a("v_add_u32 v14, s86, v14")
    a("v_lshrrev_b32 v11, 4, v0")
    a("v_and_b32 v12, 15, v0")
    a("v_lshrrev_b32 v15, 2, v12")
    a("v_and_b32 v4, 3, v12")
    a("v_lshlrev_b32 v2, 3, v11")
    a("v_add_u32 v2, 3, v2")
    a("v_sub_u32 v2, v2, v15")
    a("v_lshlrev_b32 v2, 7, v2")
    a("v_lshl_add_u32 v2, v4, 3, v2")
    a("v_add_u32 v2, s86, v2")
    a("v_add_u32 v3, s83, v12")
    a(f"v_mul_u32_u24 v3, {UR_STRIDE}, v3")
    a("s_lshl_b32 s85, s82, 1")
    a(f"s_sub_u32 s85, {2*2040}, s85")
    a("v_add_u32 v3, s85, v3")
    a("v_lshlrev_b32 v4, 4, v11")
    a("v_sub_u32 v3, v3, v4")
    for _ in range(3 - PPB): a("s_barrier")
    def unpack(dst, src):
        for e in range(8):
            if e % 2 == 0: a(f"v_lshlrev_b32 v{dst+e}, 16, v{src+(e>>1)}")
            else: a(f"v_and_b32 v{dst+e}, 0xffff0000, v{src+(e>>1)}")
    def KU(i): return [108, 116, 124, 132][i % 4]
    WT = 32
    a("s_waitcnt vmcnt(0)")
    for e in range(8):
        for i in range(4):
            src = 140 + 2 * e + (i >> 1)
            dst = WT + 4 * e + i
            if i % 2 == 0: a(f"v_lshlrev_b32 v{dst}, 16, v{src}")
            else: a(f"v_and_b32 v{dst}, 0xffff0000, v{src}")
    for i in range(3): unpack(KU(i), kreg(i))
    for j in range(4):
        if j == 2: a("s_barrier")
        unpack(KU(j + 3), kreg(j + 3))
        unpack(24, vreg(j))
        for i in (3, 2, 1, 0):
            for e in range(8):
                if i == 3: a(f"v_mul_f32 v{16+e}, v{KU(j)+e}, v{WT+4*e+3}")
                else: a(f"v_fmac_f32 v{16+e}, v{KU(j+3-i)+e}, v{WT+4*e+i}")
        for e in range(8):
            a(f"v_mul_f32 v{16+e}, v{16+e}, v{24+e}")
        for q in range(4):
            a(f"v_cvt_pk_bf16_f32 v{vreg(j)+q}, v{16+2*q}, v{17+2*q}")
    a("s_barrier")
    for j in range(4):
        if 'xds' not in VAR: a(f"ds_write_b128 v14, v[{vreg(j)}:{vreg(j)+3}] offset:{128*j}")
    a("s_waitcnt lgkmcnt(0)")
    R = 64
    for dh in range(4):
        for z in range(2):
            a(f"ds_read_b64_tr_b16 v[{R+4*dh+2*z}:{R+4*dh+2*z+1}], v2 offset:{(1 - z) * 512 + dh * 32}")
    for dh in range(4):
        a(f"s_mov_b32 s85, {WS_UR0 + dh * 16 * UR_STRIDE}")
        a(f"s_waitcnt lgkmcnt({6-2*dh})")
        if 'xst' not in VAR: a(f"buffer_store_dwordx4 v[{R+4*dh}:{R+4*dh+3}], v3, {R4(WS_)}, s85 offen sc1")
    a("v_add_u32 v4, s83, v0")
    a(f"v_mul_u32_u24 v4, {UR_STRIDE}, v4")
    for i in range(4): a(f"v_mov_b32 v{16+i}, 0")
    a("s_cmp_eq_u32 s80, 0")
    a(f"s_mov_b32 s84, {WS_SIZE}")
    a(f"s_cselect_b32 s85, {WS_UR0 + 4096}, s84")
    if 'xst' not in VAR: a(f"buffer_store_dwordx4 v[16:19], v4, {R4(WS_)}, s85 offen sc1")
    a("v_mov_b32 v20, 0")
    a(f"buffer_load_dword v21, v20, {R4(DBG)}, 0 offen sc1")
    a("s_barrier")
    a("s_barrier")
    a("s_waitcnt vmcnt(0)")
    a("v_readfirstlane_b32 s9, v21")
    a("s_barrier")
    Lnu = a.newlabel("nu")
    a("s_cmp_lg_u32 s28, 0")
    a(f"s_cbranch_scc1 {Lnu}")
    a("s_lshr_b32 s84, s2, 4")
    publish(81, 84, FL_UR)
    a.label(Lnu)
    for s in range(9, 16): a("s_barrier")
    a("s_barrier")
    a("s_barrier")
    a(f"v_mov_b32 v2, {FLAG_OFF}")
    a("v_mov_b32 v3, 0")
    a("ds_write_b32 v2, v3")
    poll(29, FL_QKV, 32)
    vm = VM(a)
    a("s_lshl_b32 s60, s29, 17")
    a("s_lshl_b32 s61, s28, 11")
    a("s_add_u32 s60, s60, s61")
    def issue_chunk(c):
        for kv, base in ((0, WS_K), (1, WS_V)):
            for i in range(2):
                a(f"s_add_u32 m0, s61, {(c % 4)*16384 + kv*8192 + i*1024}")
                a(f"s_add_u32 s31, s60, {base + c*8192 + i*1024}")
                vm.op(f"buffer_load_dwordx4 v1, {R4(WS_)}, s31 offen sc1 lds", ("c", c))
    a("s_lshl_b32 s62, s29, 6")
    a("s_lshl_b32 s31, s30, 3")
    a("s_add_u32 s62, s62, s31")
    a("s_lshl_b32 s62, s62, 11")
    a("s_lshl_b32 s63, s28, 12")
    a("s_add_u32 s62, s62, s63")
    for i in range(4):
        a(f"s_add_u32 m0, s63, {QOFF + i*1024}")
        a(f"s_add_u32 s31, s62, {WS_Q + i*1024}")
        vm.op(f"buffer_load_dwordx4 v1, {R4(WS_)}, s31 offen sc1 lds")
    a("s_lshl_b32 s31, s29, 7")
    a(f"s_add_u32 s31, s31, {WS_KMAX}")
    a(f"s_mov_b32 m0, {KMOFF}")
    a("s_mov_b64 exec, 0xff")
    vm.op(f"buffer_load_dwordx4 v1, {R4(WS_)}, s31 offen sc1 lds")
    a("s_mov_b64 exec, -1")
    issue_chunk(0); issue_chunk(1)
    vm.wait(("c", 0))
    a("s_waitcnt lgkmcnt(0)")
    a("s_barrier")
    issue_chunk(2)
    a("v_lshrrev_b32 v4, 3, v0")
    a("v_and_b32 v5, 7, v0")
    a("v_lshrrev_b32 v6, 1, v4")
    a("v_and_b32 v6, 1, v6")
    a("v_lshlrev_b32 v6, 2, v6")
    a("v_xor_b32 v7, v5, v6")
    a("v_lshlrev_b32 v7, 4, v7")
    a("v_lshl_add_u32 v3, v4, 11, v7")
    a("s_lshl_b32 s70, s4, 7")
    a("s_lshl_b32 s71, s28, 14")
    a("s_add_u32 s70, s70, s71")
    a("s_lshl_b32 s71, s28, 10")
    def wchunk(c):
        for n in range(4):
            a(f"s_add_u32 m0, s71, {WCH(c) + n*4096}")
            a(f"s_add_u32 s31, s70, {(4*c+n)*65536}")
            vm.op(f"buffer_load_dwordx4 v3, {R4(WO)}, s31 offen lds", ("w", c))
    a("s_lshr_b32 s72, s2, 3")
    a("s_and_b32 s73, s2, 7")
    a("s_lshl_b32 s74, s73, 2")
    a("s_add_u32 s74, s74, s28")
    a("v_lshrrev_b32 v20, 4, v0")
    a("v_and_b32 v10, 15, v0")
    a("v_lshlrev_b32 v11, 11, v10")
    a("v_lshl_add_u32 v11, v20, 4, v11")
    a("v_lshlrev_b32 v12, 12, v10")
    a("v_lshl_add_u32 v12, v20, 4, v12")
    a("s_lshl_b32 s75, s72, 17")
    a("s_lshl_b32 s76, s74, 6")
    a("s_add_u32 s77, s75, s76")
    a("s_lshl_b32 s75, s72, 18")
    a("s_add_u32 s78, s75, s76")
    a("v_lshrrev_b32 v13, 2, v10")
    a("v_lshl_add_u32 v13, v20, 3, v13")
    a("v_lshlrev_b32 v13, 7, v13")
    a("v_and_b32 v14, 3, v10")
    a("v_lshl_add_u32 v13, v14, 3, v13")
    a("s_mul_i32 s79, s28, 3072")
    a(f"s_add_u32 s79, s79, {KMOFF + 192}")
    a("s_lshl_b32 s79, s28, 12")
    a(f"s_add_u32 s79, s79, {CONV0}")
    a("v_add_u32 v13, s79, v13")
    a("v_add_u32 v15, s79, v1")
    a("v_lshlrev_b32 v14, 12, v4")
    a("v_lshl_add_u32 v14, v5, 4, v14")
    a("s_lshl_b32 s75, s74, 17")
    a("s_lshl_b32 s76, s72, 7")
    a("s_add_u32 s75, s75, s76")
    a(f"s_add_u32 s75, s75, {WS_YT}")
    for c in range(15):
        if c == 1:
            Lny = a.newlabel("ny")
            a("s_cmp_lg_u32 s28, 0")
            a(f"s_cbranch_scc1 {Lny}")
            a("s_lshr_b32 s84, s2, 5")
            a("s_and_b32 s85, s2, 31")
            publish(84, 85, FL_Y)
            a.label(Lny)
        if c == 4:
            for ps in range(4):
                a(f"s_add_u32 s31, s77, {ps*32768}")
                vm.op(f"buffer_load_dwordx4 v[{32+4*ps}:{35+4*ps}], v11, {R4(AQ)}, s31 offen")
        if c == 6:
            poll(73, FL_Y, 32)
            for n in range(4):
                a(f"s_add_u32 s31, s75, {n*32768}")
                vm.op(f"buffer_load_dwordx4 v[{64+4*n}:{67+4*n}], v14, {R4(WS_)}, s31 offen sc1", "yl")
        if c == 8:
            vm.wait("yl")
            for n in range(4):
                a(f"ds_write_b128 v15, v[{64+4*n}:{67+4*n}] offset:{n*1024}")
            a("s_waitcnt lgkmcnt(0)")
            for ps in range(4):
                for z in range(2):
                    a(f"ds_read_b64_tr_b16 v[{48+4*ps+2*z}:{49+4*ps+2*z}], v13 offset:{z*512+ps*32}")
            for ps in range(4):
                a(f"s_waitcnt lgkmcnt({6-2*ps})")
                for dw in range(4):
                    qr, yr = 32 + 4 * ps + dw, 48 + 4 * ps + dw
                    a(f"v_lshlrev_b32 v16, 16, v{qr}")
                    a(f"v_and_b32 v17, 0xffff0000, v{qr}")
                    a(f"v_lshlrev_b32 v18, 16, v{yr}")
                    a(f"v_and_b32 v19, 0xffff0000, v{yr}")
                    a("v_mul_f32 v16, v16, v18")
                    a("v_mul_f32 v17, v17, v19")
                    a(f"v_cvt_pk_bf16_f32 v{80+4*ps+dw}, v16, v17")
                a(f"s_add_u32 s31, s78, {ps*65536}")
                vm.op(f"buffer_store_dwordx4 v[{80+4*ps}:{83+4*ps}], v12, {R4(OUT)}, s31 offen")
        if 10 <= c < 15: wchunk(c - 10)
        vm.wait(("c", c + 1))
        a("s_barrier")
        if c + 3 <= 15: issue_chunk(c + 3)
    a("s_barrier")
    a("s_barrier")
    a(f"v_mov_b32 v6, {FLAG_OFF}")
    a("ds_read_b32 v7, v6")
    a("s_waitcnt lgkmcnt(0)")
    a("v_readfirstlane_b32 s31, v7")
    a("s_nop 3")
    a("s_cmp_eq_u32 s31, 0")
    Lhd = a.newlabel("hd")
    a(f"s_cbranch_scc1 {Lhd}")
    a("s_mov_b32 s8, 0")
    def issue_dyn():
        a("s_and_b32 s84, s8, 3")
        a("s_lshl_b32 s84, s84, 14")
        a("s_add_u32 s84, s84, s61")
        a("s_lshl_b32 s85, s8, 13")
        a("s_add_u32 s85, s85, s60")
        for kv, base in ((0, WS_K), (1, WS_V)):
            for i in range(2):
                a(f"s_add_u32 m0, s84, {kv*8192 + i*1024}")
                a(f"s_add_u32 s31, s85, {base + i*1024}")
                a(f"buffer_load_dwordx4 v1, {R4(WS_)}, s31 offen sc1 lds")
        a("s_add_u32 s8, s8, 1")
    issue_dyn()
    a("s_waitcnt vmcnt(0)")
    a("s_barrier")
    L2p = a.newlabel("p2")
    a.label(L2p)
    issue_dyn()
    a("s_waitcnt vmcnt(0)")
    a("s_barrier")
    a("s_cmp_lt_u32 s8, 16")
    a(f"s_cbranch_scc1 {L2p}")
    a("s_barrier")
    a.label(Lhd)
    a("s_barrier")
    for c in range(5, 8): wchunk(c)
    a("s_waitcnt vmcnt(0)")
    common.endpgm(a, 0)
    a.label(Lend)
    a("s_endpgm")
    return kernel_desc(name, 160)
```

```python
import struct, os
from common import *
import common
def f32bits(x): return struct.unpack("<I", struct.pack("<f", x))[0]
VAR = os.environ.get('KFVAR', '')
QSCALE = 1.4426950408889634 / (32 ** 0.5)

KF_LDS = 163840
KF_BLOCK = 768
SLOT = 40960
PPSCR = 147456
CONV0 = 65536
CP_STRIDE = 4160
H_OFF = 4 * CP_STRIDE
CH_BYTES = H_OFF + 4608
CPB = [122880 + 8768 * c for c in range(4)]
HB = [122880 + 8768 * c + 4160 for c in range(4)]
CXB = [65536 + 12608 * c + 64 for c in range(4)]
FLAG_OFF = 160768
QOFF = 49152
KMOFF = FLAG_OFF + 64
def WCH(c): return CONV0 + c * 16384 if c < 5 else (c - 5) * 16384
FL_O, FL_Y, FL_UR, FL_QKV = 0, 8, 16, 32
PPB = int(os.environ.get('KFPPB', '0'))
PUBM = int(os.environ.get('KFPUBM', '2'))

Q = 8; CN = 16; O = 32; L = 48; ONES = 52
S = [64, 80]; P = 96; KF = [112, 120]; VF = [128, 136]
WS_, SSMK, WO, AQ, DBG, OUT, XS, WQ, AK, AV, SH = 12, 16, 20, 24, 32, 36, 40, 44, 48, 52, 56
def R4(b): return f"s[{b}:{b+3}]"

def gen_kf(a, name="kf_kernel"):
    common.PV = 166
    kernel_begin(a, name)
    Lend = a.newlabel("kfend")
    a("s_cmp_ge_u32 s2, 256")
    a(f"s_cbranch_scc1 {Lend}")
    a("s_load_dwordx16 s[60:75], s[0:1], 0")
    a("s_load_dwordx8 s[76:83], s[0:1], 64")
    a("v_lshrrev_b32 v1, 6, v0")
    a("s_nop 0")
    a("v_readfirstlane_b32 s28, v1")
    a("v_and_b32 v0, 63, v0")
    common.prof_begin(a)
    a("s_and_b32 s31, s2, 7")
    a("s_lshr_b32 s8, s2, 3")
    a("s_lshl_b32 s29, s31, 2")
    a("s_lshr_b32 s9, s8, 3")
    a("s_add_u32 s29, s29, s9")
    a("s_and_b32 s30, s8, 7")
    a("s_and_b32 s3, s31, 3")
    a("s_lshl_b32 s3, s3, 2")
    a("s_and_b32 s9, s8, 3")
    a("s_add_u32 s3, s3, s9")
    a("s_lshr_b32 s4, s31, 2")
    a("s_lshl_b32 s4, s4, 3")
    a("s_lshr_b32 s9, s8, 2")
    a("s_add_u32 s4, s4, s9")
    a("s_and_b32 s5, s31, 1")
    a("s_lshl_b32 s5, s5, 3")
    a("s_and_b32 s9, s8, 7")
    a("s_add_u32 s5, s5, s9")
    a("s_lshr_b32 s6, s31, 1")
    a("s_lshl_b32 s6, s6, 2")
    a("s_lshr_b32 s9, s8, 3")
    a("s_add_u32 s6, s6, s9")
    a("v_lshlrev_b32 v1, 4, v0")
    a("s_waitcnt lgkmcnt(0)")
    srd(a, WS_, 82, WS_SIZE)
    srd(a, SSMK, 68, 1024 * 2048 * 2)
    srd(a, WO, 76, 1024 * 1024 * 2)
    srd(a, AQ, 60, 2048 * 1024 * 2)
    srd(a, DBG, 80, 256)
    srd(a, OUT, 78, 2048 * 2048 * 2)
    srd(a, XS, 72, 2048 * 1024 * 2)
    srd(a, WQ, 74, 1024 * 3072 * 2)
    srd(a, AK, 62, 2048 * 1024 * 2)
    srd(a, AV, 64, 2048 * 1024 * 2)
    srd(a, SH, 66, 1024 * 4 * 2)
    a("s_mov_b32 s10, s70")
    a("s_mov_b32 s11, s71")

    def get_nonce(v=2):
        Ln = a.newlabel("tag"); Lnd = a.newlabel("tagd")
        a(f"v_mov_b32 v{v}, 0")
        a("s_mov_b32 s95, 0")
        a.label(Ln)
        a(f"buffer_load_dword v{v+1}, v{v}, {R4(DBG)}, 0 offen sc1")
        a("s_add_u32 s95, s95, 1")
        a("s_waitcnt vmcnt(0)")
        a(f"v_readfirstlane_b32 s9, v{v+1}")
        a("s_nop 3")
        a("s_cmp_lg_u32 s9, 0")
        a(f"s_cbranch_scc1 {Lnd}")
        a("s_sleep 4")
        a("s_cmp_lt_u32 s95, 0x400000")
        a(f"s_cbranch_scc1 {Ln}")
        a.label(Lnd)
    def publish(line_sreg, entry_sreg, base, v=8):
        a(f"s_lshl_b32 s31, s{line_sreg}, 8")
        a(f"s_lshl_b32 s95, s{entry_sreg}, 2")
        a("s_add_u32 s31, s31, s95")
        a(f"s_add_u32 s31, s31, {WS_FLAG + base*256}")
        a(f"v_mov_b32 v{v}, 0")
        a(f"v_mov_b32 v{v+1}, s9")
        a("s_mov_b64 exec, 1")
        a(f"buffer_store_dword v{v+1}, v{v}, {R4(WS_)}, s31 offen sc1")
        a("s_mov_b64 exec, -1")
    def poll(line_sreg, base, n, v=8):
        Lp = a.newlabel("poll"); Lpd = a.newlabel("polld")
        a(f"s_lshl_b32 s94, s{line_sreg}, 8")
        a(f"s_add_u32 s94, s94, {WS_FLAG + base*256}")
        a(f"v_and_b32 v{v}, {n-1}, v0")
        a(f"v_lshlrev_b32 v{v}, 2, v{v}")
        a("s_mov_b32 s95, 0")
        a.label(Lp)
        a(f"buffer_load_dword v{v+1}, v{v}, {R4(WS_)}, s94 offen sc1")
        a("s_add_u32 s95, s95, 1")
        a("s_waitcnt vmcnt(0)")
        a(f"v_cmp_ne_u32 vcc, s9, v{v+1}")
        a("s_cmp_eq_u64 vcc, 0")
        a(f"s_cbranch_scc1 {Lpd}")
        a("s_sleep 4")
        a("s_cmp_lt_u32 s95, 0x400000")
        a(f"s_cbranch_scc1 {Lp}")
        a.label(Lpd)

    LC = a.newlabel("roleC"); LD = a.newlabel("roleD"); LP = a.newlabel("roleP"); LH = a.newlabel("roleH")
    Lcdma = a.newlabel("convdma"); Lconv = a.newlabel("conv")
    a("s_cmp_lt_u32 s28, 4")
    a(f"s_cbranch_scc1 {LC}")
    a("s_cmp_lt_u32 s28, 6")
    a(f"s_cbranch_scc1 {LD}")
    a("s_cmp_lt_u32 s28, 8")
    a(f"s_cbranch_scc1 {LP}")
    a(f"s_branch {LH}")

    a.label(LD)
    a("s_sub_u32 s60, s28, 4")
    a("v_lshrrev_b32 v4, 3, v0")
    a("v_and_b32 v5, 7, v0")
    a("v_lshrrev_b32 v6, 1, v4")
    a("v_xor_b32 v7, v5, v6")
    a("v_lshlrev_b32 v7, 4, v7")
    a("v_lshl_add_u32 v10, v4, 11, v7")
    a("v_xor_b32 v11, 64, v10")
    a("v_and_b32 v6, 1, v6")
    a("v_lshlrev_b32 v6, 2, v6")
    a("v_xor_b32 v7, v5, v6")
    a("v_lshlrev_b32 v7, 4, v7")
    a("v_mul_u32_u24 v12, 6144, v4")
    a("v_add_u32 v12, v12, v7")
    a("s_lshl_b32 s31, s5, 18")
    a("s_lshl_b32 s61, s60, 17")
    a("s_add_u32 s61, s61, s31")
    a("s_lshl_b32 s62, s6, 7")
    a("s_lshl_b32 s70, s60, 13")
    a("s_mul_i32 s71, s60, 12288")
    a("s_add_u32 s71, s71, 16384")
    a("s_mov_b32 s72, 0")
    a("s_mov_b32 s73, 0")
    Ld1 = a.newlabel("d1")
    a("s_cmp_eq_u32 s60, 1")
    a(f"s_cbranch_scc1 {Ld1}")
    for lw in range(2):
        if lw == 1: a.label(Ld1)
        def issue_stage():
            a("s_lshl_b32 s75, s72, 7")
            a("s_add_u32 s75, s75, s61")
            a(f"s_mul_i32 s76, s72, {64*6144}")
            a("s_add_u32 s76, s76, s62")
            a("s_add_u32 s77, s70, s73")
            a("s_add_u32 s78, s71, s73")
            for j in range(8):
                a(f"s_add_u32 m0, s77, {j*1024}")
                a(f"s_add_u32 s31, s75, {j*16384}")
                a(f"buffer_load_dwordx4 v{10 + (j & 1)}, {R4(XS)}, s31 offen lds")
            for j in range(12):
                i = 12 * lw + j
                a(f"s_add_u32 m0, s78, {j*1024}")
                a(f"s_add_u32 s31, s76, {(i & 7)*49152 + (i >> 3)*2048}")
                a(f"buffer_load_dwordx4 v12, {R4(WQ)}, s31 offen lds")
            a("s_add_u32 s72, s72, 1")
            a("s_cmp_eq_u32 s73, 0")
            a(f"s_cselect_b32 s73, {3*SLOT}, s73")
            a(f"s_sub_u32 s73, s73, {SLOT}")
        issue_stage()
        issue_stage()
        a("s_waitcnt vmcnt(20)")
        a("s_barrier")
        a("s_mov_b32 s79, 0")
        Lll = a.newlabel("dl")
        a.label(Lll)
        issue_stage()
        a("s_waitcnt vmcnt(20)")
        a("s_barrier")
        a("s_add_u32 s79, s79, 1")
        a("s_cmp_lt_u32 s79, 14")
        a(f"s_cbranch_scc1 {Lll}")
        a(f"s_branch {Lcdma}")

    a.label(LP)
    Lnt = a.newlabel("notag")
    a("s_lshl_b32 s31, s2, 4")
    a("s_add_u32 s31, s31, s28")
    a("s_cmp_lg_u32 s31, 6")
    a(f"s_cbranch_scc1 {Lnt}")
    a("s_memrealtime s[60:61]")
    a("s_waitcnt lgkmcnt(0)")
    a("s_or_b32 s60, s60, 1")
    a("v_mov_b32 v2, s60")
    a("v_mov_b32 v4, 0")
    a("s_mov_b64 exec, 1")
    a(f"buffer_store_dword v2, v4, {R4(DBG)}, 0 offen sc1")
    a("s_mov_b64 exec, -1")
    a.label(Lnt)
    a("s_lshr_b32 s8, s2, 3")
    a("v_lshrrev_b32 v6, 1, v0")
    a("v_lshlrev_b32 v6, 11, v6")
    a("v_and_b32 v7, 1, v0")
    a("v_lshl_add_u32 v6, v7, 7, v6")
    a("s_and_b32 s31, s2, 1")
    a("s_lshl_b32 s31, s31, 10")
    a("s_lshl_b32 s60, s8, 5")
    a("s_add_u32 s31, s31, s60")
    a("s_lshl_b32 s62, s31, 11")
    a("v_lshrrev_b32 v8, 5, v0")
    a(f"v_mul_u32_u24 v8, {64*6144}, v8")
    a("v_bfe_u32 v7, v0, 4, 1")
    a("v_mul_u32_u24 v7, 6144, v7")
    a("v_add_u32 v8, v8, v7")
    a("v_bfe_u32 v7, v0, 2, 2")
    a("v_min_u32 v7, 2, v7")
    a("v_lshl_add_u32 v8, v7, 11, v8")
    a("v_and_b32 v7, 3, v0")
    a("v_lshl_add_u32 v8, v7, 7, v8")
    a("s_lshl_b32 s8, s8, 1")
    a("s_mul_i32 s63, s8, 6144")
    a("s_bfe_u32 s31, s2, 0x20001")
    a("s_lshl_b32 s31, s31, 9")
    a("s_add_u32 s63, s63, s31")
    a("s_cmp_eq_u32 s28, 6")
    a(f"s_cselect_b32 s88, s{XS}, s{WQ}")
    a(f"s_cselect_b32 s89, s{XS+1}, s{WQ+1}")
    a(f"s_cselect_b32 s90, s{XS+2}, s{WQ+2}")
    a("s_mov_b32 s91, 0x00020000")
    a("s_cselect_b32 s62, s62, s63")
    a(f"s_mov_b32 s31, {2*64*6144}")
    a("s_cselect_b32 s65, 256, s31")
    a("s_cselect_b64 vcc, -1, 0")
    a("v_cndmask_b32 v6, v8, v6, vcc")
    def pf():
        a("s_add_u32 s62, s62, s65")
        a("buffer_load_dword v9, v6, s[88:91], s62 offen sc1")
    pf()
    a(f"s_mul_i32 s66, s2, {4*UR_STRIDE}")
    a(f"s_add_u32 s66, s66, {WS_UR0}")
    a("s_lshl_b32 s67, s2, 14")
    def dma_h(ch):
        for pc in range(4):
            a(f"s_mov_b32 m0, {HB[ch] + 512 + pc*1024}")
            a(f"s_add_u32 s31, s67, {ch*4096 + pc*1024}")
            a(f"buffer_load_dwordx4 v1, {R4(SSMK)}, s31 offen lds")
        a(f"s_mov_b32 s31, {WS_SIZE}")
        a("s_mov_b32 exec_hi, 0")
        a(f"s_mov_b32 m0, {HB[ch]}")
        a("s_nop 0")
        a(f"buffer_load_dwordx4 v1, {R4(WS_)}, s31 offen lds")
        a("s_mov_b64 exec, -1")
    def dma_u(ch):
        for pc in range(4):
            a(f"s_mov_b32 m0, {CPB[ch] + pc*1024}")
            a(f"s_add_u32 s31, s66, {ch*UR_STRIDE + pc*1024}")
            a(f"buffer_load_dwordx4 v1, {R4(WS_)}, s31 offen sc1 lds")
        a(f"s_mov_b32 s31, {WS_SIZE}")
        a("s_mov_b64 exec, 15")
        a(f"s_mov_b32 m0, {CPB[ch] + 4096}")
        a("s_nop 0")
        a(f"buffer_load_dwordx4 v1, {R4(WS_)}, s31 offen lds")
        a("s_mov_b64 exec, -1")
    def by_wave(f6, f7):
        L7 = a.newlabel("w7"); Le = a.newlabel("we")
        a("s_bitcmp1_b32 s28, 0")
        a(f"s_cbranch_scc1 {L7}")
        f6()
        a(f"s_branch {Le}")
        a.label(L7)
        f7()
        a.label(Le)
    UP = int(os.environ.get('KFUP', '11'))
    for s in range(15):
        if s == 4: get_nonce()
        a("s_barrier")
        if s % 2 == 0 and s <= 10: pf()
        if s == 3:
            a("v_lshlrev_b32 v10, 7, v0")
            a("s_and_b32 s31, s28, 1")
            a("s_lshl_b32 s31, s31, 13")
            a("s_add_u32 s31, s31, s67")
            a(f"buffer_load_dword v9, v10, {R4(SSMK)}, s31 offen sc1")
        if s == UP:
            a("s_lshr_b32 s68, s2, 4")
            poll(68, FL_UR, 16)
            by_wave(lambda: (dma_u(0), dma_h(0), dma_u(1), dma_h(1)), lambda: (dma_u(2), dma_h(2), dma_u(3), dma_h(3)))
    a("s_barrier")
    a("s_waitcnt vmcnt(0)")
    a(f"s_branch {Lconv}")
    a.label(Lcdma)
    a("s_waitcnt vmcnt(0)")
    a("s_barrier")
    a(f"s_branch {Lconv}")

    a.label(LC)
    a("s_and_b32 s60, s28, 1")
    a("s_lshr_b32 s61, s28, 1")
    a("v_and_b32 v56, 31, v0")
    a("v_lshrrev_b32 v2, 5, v0")
    a("v_lshrrev_b32 v3, 1, v56")
    a("v_and_b32 v3, 7, v3")
    a("s_lshl_b32 s62, s60, 13")
    a("v_lshlrev_b32 v9, 7, v56")
    a("v_add_u32 v9, s62, v9")
    for ks in range(4):
        a(f"v_or_b32 v15, {2*ks}, v2")
        a("v_xor_b32 v15, v15, v3")
        a(f"v_lshl_add_u32 v{4+ks}, v15, 4, v9")
    a("v_and_b32 v56, 15, v0")
    a("v_lshrrev_b32 v3, 2, v56")
    a("v_and_b32 v56, 3, v56")
    a("v_lshrrev_b32 v15, 4, v0")
    a("v_and_b32 v15, 1, v15")
    a("v_lshlrev_b32 v15, 5, v15")
    a("v_lshl_add_u32 v15, v56, 3, v15")
    a("s_lshl_b32 s62, s61, 6")
    a("v_add_u32 v15, s62, v15")
    a("v_lshrrev_b32 v56, 1, v3")
    a("v_and_b32 v56, 1, v56")
    a("v_lshlrev_b32 v56, 6, v56")
    a("v_xor_b32 v15, v15, v56")
    a("v_lshl_add_u32 v3, v2, 3, v3")
    a("v_lshl_add_u32 v8, v3, 7, v15")
    a("v_add_u32 v8, 16384, v8")
    for i in range(4): a(f"v_mov_b32 v{10+i}, v{4+i}")
    a("v_mov_b32 v14, v8")
    for i in range(96): a(f"v_mov_b32 v{64+i}, 0")
    def Xf(b, mt): return 16 + 8 * b + 4 * mt
    def Wf(b, p): return 32 + 12 * b + 4 * p
    def acc(mt, p): return 64 + 16 * (3 * mt + p)
    def reads(ks, b):
        r = []
        for mt in range(2):
            r.append(f"ds_read_b128 v[{Xf(b,mt)}:{Xf(b,mt)+3}], v{10+ks} offset:{mt*4096}")
        for p in range(3):
            for z in range(2):
                r.append(f"ds_read_b64_tr_b16 v[{Wf(b,p)+2*z}:{Wf(b,p)+2*z+1}], v14 offset:{p*8192+ks*2048+z*512}")
        return r
    def mfmas(b):
        r = []
        for mt in range(2):
            for p in range(3):
                A, B = (Wf(b, p), Xf(b, mt)) if p < 2 else (Xf(b, mt), Wf(b, p))
                r.append(f"v_mfma_f32_32x32x16_bf16 v[{acc(mt,p)}:{acc(mt,p)+15}], v[{A}:{A+3}], v[{B}:{B+3}], v[{acc(mt,p)}:{acc(mt,p)+15}]")
        return r
    a("s_mov_b32 s72, 0")
    a("s_mov_b32 s73, 0")
    a("s_barrier")
    common.stamp(a, 1)
    for x in reads(0, 0): a(x)
    Ls = a.newlabel("stage"); Llast = a.newlabel("last")
    a.label(Ls)
    for ks in range(3):
        b = ks & 1
        a("s_waitcnt lgkmcnt(0)")
        m = mfmas(b); r = reads(ks + 1, b ^ 1)
        a(m[0]); [a(x) for x in r[0:4]]
        a(m[1]); [a(x) for x in r[4:8]]
        for x in m[2:]: a(x)
    a("s_waitcnt lgkmcnt(0)")
    a("s_cmp_eq_u32 s72, 15")
    a(f"s_cbranch_scc1 {Llast}")
    a("s_barrier")
    a("s_cmp_eq_u32 s73, 0")
    a(f"s_cselect_b32 s73, {3*SLOT}, s73")
    a(f"s_sub_u32 s73, s73, {SLOT}")
    for i in range(4): a(f"v_add_u32 v{10+i}, s73, v{4+i}")
    a("v_add_u32 v14, s73, v8")
    for x in reads(0, 0): a(x)
    for x in mfmas(1): a(x)
    a("s_add_u32 s72, s72, 1")
    a(f"s_branch {Ls}")
    a.label(Llast)
    for x in mfmas(1): a(x)
    a("v_mov_b32 v56, 0")
    a(f"buffer_load_dword v57, v56, {R4(DBG)}, 0 offen sc1")
    a("s_nop 15")
    common.stamp(a, 2)
    a("s_lshl_b32 s62, s6, 1")
    a("s_add_u32 s62, s62, s61")
    a("s_lshl_b32 s63, s5, 2")
    a("s_lshl_b32 s64, s60, 1")
    a("s_add_u32 s63, s63, s64")
    a("s_lshl_b32 s64, s62, 6")
    a("s_add_u32 s64, s64, s63")
    a("s_lshl_b32 s64, s64, 11")
    a(f"s_mov_b32 s66, {f32bits(QSCALE)}")
    for p in (1, 2, 0):
        for mt in range(2):
            base = acc(mt, p)
            if p == 0:
                for i in range(16): a(f"v_mul_f32 v{base+i}, s66, v{base+i}")
            for i in range(8):
                a(f"v_cvt_pk_bf16_f32 v{base+i}, v{base+2*i}, v{base+2*i+1}")
            a(f"s_add_u32 s65, s64, {[WS_Q, WS_K, WS_V][p] + mt*2048}")
            a(f"buffer_store_dwordx4 v[{base}:{base+3}], v1, {R4(WS_)}, s65 offen sc1")
            a(f"buffer_store_dwordx4 v[{base+4}:{base+7}], v1, {R4(WS_)}, s65 offen offset:1024 sc1")
    for mt in range(2):
        d = acc(mt, 1)
        for i in range(8):
            c = "0" if i == 0 else f"v{16+mt}"
            a(f"v_dot2_f32_bf16 v{16+mt}, v{d+i}, v{d+i}, {c}")
    a("s_nop 3")
    a("v_mov_b32 v18, v16")
    a("v_mov_b32 v19, v17")
    a("s_nop 1")
    a("v_permlane32_swap_b32 v18, v16")
    a("v_permlane32_swap_b32 v19, v17")
    a("s_nop 1")
    a("v_add_f32 v16, v16, v18")
    a("v_add_f32 v17, v17, v19")
    a("v_max_f32 v16, v16, v17")
    for dpp in ("quad_perm:[1,0,3,2]", "quad_perm:[2,3,0,1]", "row_half_mirror", "row_mirror"):
        a("s_nop 1")
        a(f"v_max_f32_dpp v16, v16, v16 {dpp} row_mask:0xf bank_mask:0xf")
    a("s_nop 1")
    a("v_mov_b32 v17, v16")
    a("s_nop 1")
    a("v_permlane16_swap_b32 v17, v16")
    a("s_nop 1")
    a("v_max_f32 v16, v16, v17")
    a("s_lshl_b32 s64, s62, 5")
    a("s_lshl_b32 s65, s5, 1")
    a("s_add_u32 s64, s64, s65")
    a("s_add_u32 s64, s64, s60")
    a("s_lshl_b32 s64, s64, 2")
    a(f"s_add_u32 s64, s64, {WS_KMAX}")
    a("s_mov_b64 exec, 1")
    a(f"buffer_store_dword v16, v56, {R4(WS_)}, s64 offen sc1")
    a("s_mov_b64 exec, -1")
    a("s_mov_b32 s86, s62")
    a("s_lshl_b32 s87, s5, 1")
    a("s_add_u32 s87, s87, s60")
    a("s_waitcnt vmcnt(13)")
    a("v_readfirstlane_b32 s9, v57")

    a.label(Lconv)
    a("s_and_b32 s60, s28, 3")
    a("s_lshr_b32 s61, s28, 2")
    a("s_lshl_b32 s62, s2, 2")
    a("s_add_u32 s62, s62, s60")
    a(f"s_mov_b32 s63, {CPB[0]}")
    a(f"s_mov_b32 s65, {HB[0]}")
    a(f"s_mov_b32 s68, {CXB[0]}")
    for ch in range(1, 4):
        a(f"s_cmp_eq_u32 s60, {ch}")
        a(f"s_cselect_b32 s63, {CPB[ch]}, s63")
        a(f"s_cselect_b32 s65, {HB[ch]}, s65")
        a(f"s_cselect_b32 s68, {CXB[ch]}, s68")
    a("s_lshr_b32 s31, s62, 1")
    a("s_lshl_b32 s31, s31, 2")
    a("s_add_u32 s66, s10, s31")
    a("s_addc_u32 s67, s11, 0")
    a("s_load_dword s70, s[66:67], 0")
    a("v_and_b32 v2, 15, v0")
    a("v_lshrrev_b32 v3, 4, v0")
    a("v_sub_u32 v4, 3, v2")
    a("v_and_b32 v4, 3, v4")
    a("v_cmp_eq_u32 vcc, 0, v4")
    a(f"v_mul_u32_u24 v4, {CP_STRIDE}, v4")
    a(f"s_sub_u32 s31, s68, {CP_STRIDE}")
    a("v_add_u32 v4, s31, v4")
    a("v_mov_b32 v5, s63")
    a("v_cndmask_b32 v4, v4, v5, vcc")
    a("v_lshrrev_b32 v5, 2, v2")
    a("v_lshlrev_b32 v6, 1, v3")
    a("v_sub_u32 v5, v6, v5")
    a("v_add_u32 v5, 3, v5")
    a("v_lshl_add_u32 v4, v5, 3, v4")
    a("v_lshlrev_b32 v5, 5, v2")
    a("v_lshl_add_u32 v5, v3, 4, v5")
    a("s_add_u32 s31, s65, 32")
    a("v_add_u32 v5, s31, v5")
    a("v_lshlrev_b32 v6, 5, v2")
    a("v_lshl_add_u32 v6, v3, 3, v6")
    a("s_add_u32 s31, s63, 504")
    a("v_sub_u32 v7, s31, v6")
    a("s_lshl_b32 s64, s62, 12")
    a(f"s_add_u32 s64, s64, {WS_YT}")
    a("s_waitcnt lgkmcnt(0)")
    a("s_lshl_b32 s31, s61, 11")
    a("v_lshlrev_b32 v26, 5, v0")
    a("v_add_u32 v26, s31, v26")
    a("v_add_u32 v27, s68, v26")
    a("v_add_u32 v26, s63, v26")
    a("s_barrier")
    common.stamp(a, 3)
    for i in range(3): a(f"ds_read_b128 v[{32+4*i}:{35+4*i}], v26 offset:{16*i}")
    a("v_lshrrev_b32 v28, 1, v0")
    a(f"v_mul_u32_u24 v28, {CP_STRIDE}, v28")
    a("v_and_b32 v29, 1, v0")
    a("v_lshl_add_u32 v28, v29, 4, v28")
    a("s_add_u32 s31, s68, 4096")
    a("v_add_u32 v28, s31, v28")
    for i in range(4): a(f"v_mov_b32 v{72+i}, 0")
    a("s_mov_b64 exec, 63")
    a("ds_write_b128 v28, v[72:75]")
    a("s_mov_b64 exec, -1")
    a("s_waitcnt lgkmcnt(1)")
    for k in range(8):
        a(f"v_alignbyte_b32 v{48+k}, v{33+k}, v{32+k}, 2")
        a(f"v_mov_b32 v{56+k}, v{33+k}")
        a(f"v_alignbyte_b32 v{64+k}, v{34+k}, v{33+k}, 2")
    for cc in range(3):
        for j in range(2):
            a(f"ds_write_b128 v27, v[{48+8*cc+4*j}:{51+8*cc+4*j}] offset:{cc*CP_STRIDE + 16*j}")
    a("s_waitcnt lgkmcnt(0)")
    a("s_barrier")
    a("s_bitcmp1_b32 s62, 0")
    a("s_cselect_b32 s31, 0, 16")
    a("s_lshl_b32 s70, s70, s31")
    a("s_and_b32 s70, s70, 0xffff0000")
    ACC = 8
    def AF(b, x): return 32 + 64 * b + 4 * x
    def BF(b, x): return 64 + 64 * b + 4 * x
    Lh1 = a.newlabel("h1"); Lcd = a.newlabel("cdone")
    a("s_cmp_eq_u32 s61, 1")
    a(f"s_cbranch_scc1 {Lh1}")
    for hw in range(2):
        if hw == 1: a.label(Lh1)
        Ts = [0, 3, 4, 7] if hw == 0 else [1, 2, 5, 6]
        mx = max(Ts)
        def rd(m0, b):
            r = []
            for x in range(mx + 1):
                o = 64*(63-(m0+8*x))
                r.append(f"ds_read_b64 v[{AF(b,x)}:{AF(b,x)+1}], v4 offset:{o}")
                r.append(f"ds_read_b64 v[{AF(b,x)+2}:{AF(b,x)+3}], v4 offset:{o+8}")
                r.append(f"ds_read_b128 v[{BF(b,x)}:{BF(b,x)+3}], v5 offset:{512*x+64*(7-m0)}")
            return r
        for x in rd(0, 0): a(x)
        for m0 in range(8):
            b = m0 & 1
            a("s_waitcnt lgkmcnt(0)")
            if hw == 0 and m0 == PUBM:
                a("s_waitcnt vmcnt(0)")
                publish(86, 87, FL_QKV, v=24)
            nxt = rd(m0 + 1, b ^ 1) if m0 < 7 else []
            mf = []
            for ti, T in enumerate(Ts):
                for x in range(T + 1):
                    c = "0" if (m0 == 0 and x == 0) else f"v[{ACC+4*ti}:{ACC+4*ti+3}]"
                    mf.append(f"v_mfma_f32_16x16x32_bf16 v[{ACC+4*ti}:{ACC+4*ti+3}], v[{AF(b,x)}:{AF(b,x)+3}], v[{BF(b,T-x)}:{BF(b,T-x)+3}], {c}")
            k = 0
            for i, m in enumerate(mf):
                a(m)
                for _ in range(2):
                    if k < len(nxt): a(nxt[k]); k += 1
        for ti, T in enumerate(Ts):
            a(f"ds_read_b64 v[{32+2*ti}:{33+2*ti}], v7 offset:{512*(7-T)}")
        a("s_waitcnt lgkmcnt(0)")
        a("s_nop 7")
        for ti, T in enumerate(Ts):
            r0, r1 = 32 + 2 * ti, 33 + 2 * ti
            a(f"v_and_b32 v48, 0xffff0000, v{r1}")
            a(f"v_lshlrev_b32 v49, 16, v{r1}")
            a(f"v_and_b32 v50, 0xffff0000, v{r0}")
            a(f"v_lshlrev_b32 v51, 16, v{r0}")
            for e in range(4):
                a(f"v_fma_f32 v{ACC+4*ti+e}, v{48+e}, s70, v{ACC+4*ti+e}")
            a(f"v_cvt_pk_bf16_f32 v{56+2*ti}, v{ACC+4*ti}, v{ACC+4*ti+1}")
            a(f"v_cvt_pk_bf16_f32 v{57+2*ti}, v{ACC+4*ti+2}, v{ACC+4*ti+3}")
            a(f"buffer_store_dwordx2 v[{56+2*ti}:{57+2*ti}], v6, {R4(WS_)}, s64 offen offset:{512*T} sc1")
        if hw == 0: a(f"s_branch {Lcd}")
    a.label(Lcd)
    a("v_lshrrev_b32 v2, 4, v0")
    a("v_xor_b32 v2, v2, v0")
    a("v_and_b32 v2, 1, v2")
    a("v_cmp_eq_u32 vcc, 0, v2")
    a("v_mov_b32 v3, 0x3f803f80")
    a("s_nop 1")
    for i in range(4): a(f"v_cndmask_b32 v{ONES+i}, 0, v3, vcc")
    a("s_lshl_b32 s31, s28, 11")
    a(f"s_add_u32 s31, s31, {QOFF}")
    a("v_add_u32 v2, s31, v1")
    a("v_and_b32 v3, 31, v0")
    a("v_lshlrev_b32 v3, 2, v3")
    a(f"v_add_u32 v3, {KMOFF}, v3")
    a("s_barrier")
    common.stamp(a, 4)
    a(f"ds_read_b128 v[{Q}:{Q+3}], v2")
    a(f"ds_read_b128 v[{Q+4}:{Q+7}], v2 offset:1024")
    a("ds_read_b32 v6, v3")
    a("s_waitcnt lgkmcnt(0)")
    for i in range(8):
        c = "0" if i == 0 else "v4"
        a(f"v_dot2_f32_bf16 v4, v{Q+i}, v{Q+i}, {c}")
    for dpp in ("quad_perm:[1,0,3,2]", "quad_perm:[2,3,0,1]", "row_half_mirror", "row_mirror"):
        a("s_nop 1")
        a(f"v_max_f32_dpp v6, v6, v6 {dpp} row_mask:0xf bank_mask:0xf")
    a("s_nop 1")
    a("v_mov_b32 v7, v6")
    a("v_mov_b32 v5, v4")
    a("s_nop 1")
    a("v_permlane16_swap_b32 v7, v6")
    a("v_permlane32_swap_b32 v5, v4")
    a("s_nop 1")
    a("v_max_f32 v6, v6, v7")
    a("v_add_f32 v4, v4, v5")
    a("v_mul_f32 v4, v6, v4")
    a("v_sqrt_f32 v4, v4")
    a("s_nop 0")
    a("v_sub_f32 v4, 0, v4")
    a("s_mov_b32 s7, 0")
    if 'prio' in VAR:
        Lpr = a.newlabel("pr")
        a("s_cmp_lt_u32 s28, 4")
        a(f"s_cbranch_scc1 {Lpr}")
        a("s_setprio 1")
        a.label(Lpr)
    if 'prall' in VAR: a("s_setprio 1")
    Lgo = a.newlabel("go"); Lrestart = a.newlabel("restart")
    a(f"s_branch {Lgo}")
    a.label(Lrestart)
    a("s_barrier")
    a.label(Lgo)
    for i in range(16): a(f"v_mov_b32 v{CN+i}, v4")
    for i in range(16): a(f"v_mov_b32 v{O+i}, 0")
    for i in range(4): a(f"v_mov_b32 v{L+i}, 0")
    for i in range(4, 8): a(f"v_mov_b32 v{P+i}, 0")
    for i in range(4, 8): a(f"v_mov_b32 v{VF[1]+i}, 0")
    a("v_mov_b32 v2, v1")
    a("v_add_u32 v3, 16384, v1")
    def kread(buf, areg, tile):
        return [f"ds_read_b128 v[{KF[buf]}:{KF[buf]+3}], v{areg} offset:{tile*2048}",
                f"ds_read_b128 v[{KF[buf]+4}:{KF[buf]+7}], v{areg} offset:{tile*2048+1024}"]
    def vread(buf, areg, tile):
        return [f"ds_read_b128 v[{VF[buf]}:{VF[buf]+3}], v{areg} offset:{8192+tile*2048}",
                f"ds_read_b128 v[{VF[buf]+4}:{VF[buf]+7}], v{areg} offset:{8192+tile*2048+1024}"]
    def qk(sb, kb, half):
        c = f"v[{CN}:{CN+15}]" if half == 0 else f"v[{S[sb]}:{S[sb]+15}]"
        return f"v_mfma_f32_32x32x16_bf16 v[{S[sb]}:{S[sb]+15}], v[{KF[kb]+4*half}:{KF[kb]+4*half+3}], v[{Q+4*half}:{Q+4*half+3}], {c}"
    def pv(vb, half):
        return f"v_mfma_f32_32x32x16_bf16 v[{O}:{O+15}], v[{VF[vb]+4*half}:{VF[vb]+4*half+3}], v[{P+4*half}:{P+4*half+3}], v[{O}:{O+15}]"
    def lsum(half):
        return f"v_mfma_f32_16x16x32_bf16 v[{L}:{L+3}], v[{ONES}:{ONES+3}], v[{P+4*half}:{P+4*half+3}], v[{L}:{L+3}]"
    for x in kread(0, 2, 0): a(x)
    for x in kread(1, 2, 1): a(x)
    for x in vread(0, 2, 0): a(x)
    a("s_waitcnt lgkmcnt(4)")
    a(qk(0, 0, 0)); a(qk(0, 0, 1))
    a("s_mov_b32 s8, 0")
    a("s_waitcnt vmcnt(0)")
    a("s_nop 11")
    Lloop = a.newlabel("loop")
    a.label(Lloop)
    for tl in range(4):
        sb = tl & 1; nb_ = sb ^ 1
        def ex(i): return f"v_exp_f32 v{S[sb]+i}, v{S[sb]+i}"
        def cv(i): return f"v_cvt_pk_bf16_f32 v{P+i}, v{S[sb]+2*i}, v{S[sb]+2*i+1}"
        a("s_waitcnt lgkmcnt(2)")
        a(qk(nb_, nb_, 0))
        for i in range(0, 4): a(ex(i))
        a(qk(nb_, nb_, 1))
        for i in range(4, 6): a(ex(i))
        if tl == 2: a("s_barrier")
        kr = kread(sb, 2, tl + 2) if tl < 2 else kread(sb, 3, tl - 2)
        for x in kr: a(x)
        for i in range(6, 8): a(ex(i))
        a(pv(nb_, 1))
        for i in range(0, 4): a(cv(i))
        a(ex(8))
        a(lsum(1))
        for i in range(9, 12): a(ex(i))
        a("s_waitcnt lgkmcnt(2)")
        a(pv(sb, 0))
        vr_ = vread(nb_, 2, tl + 1) if tl < 3 else vread(nb_, 3, 0)
        for x in vr_: a(x)
        for i in range(12, 16): a(ex(i))
        a(lsum(0))
        if tl == 3:
            a("v_mov_b32 v2, v3")
            a("v_add_u32 v3, 16384, v3")
            a("v_and_b32 v3, 0xffff, v3")
            a("s_add_u32 s8, s8, 1")
            a("s_cmp_lt_u32 s8, 16")
        for i in range(4, 8): a(cv(i))
    a(f"s_cbranch_scc1 {Lloop}")
    a("s_nop 1")
    a(pv(1, 1))
    a(lsum(1))
    a("s_waitcnt lgkmcnt(0)")
    a("s_nop 15")
    common.stamp(a, 5)
    a("v_and_b32 v5, 16, v0")
    a("v_cmp_ne_u32 vcc, 0, v5")
    a("s_nop 1")
    a(f"v_cndmask_b32 v5, v{L}, v{L+1}, vcc")
    Lok = a.newlabel("ok")
    a("s_cmp_lg_u32 s7, 0")
    a(f"s_cbranch_scc1 {Lok}")
    a(f"v_mov_b32 v6, {f32bits(2.0**-60)}")
    a("v_cmp_nge_f32 vcc, v5, v6")
    Lnf = a.newlabel("nf")
    a("s_cmp_eq_u64 vcc, 0")
    a(f"s_cbranch_scc1 {Lnf}")
    a(f"v_mov_b32 v6, {FLAG_OFF}")
    a("v_mov_b32 v7, 1")
    a("ds_write_b32 v6, v7")
    a.label(Lnf)
    a("s_waitcnt lgkmcnt(0)")
    a("s_barrier")
    a(f"v_mov_b32 v6, {FLAG_OFF}")
    a("ds_read_b32 v7, v6")
    a("s_waitcnt lgkmcnt(0)")
    a("v_readfirstlane_b32 s31, v7")
    a("s_nop 3")
    a("s_cmp_eq_u32 s31, 0")
    a(f"s_cbranch_scc1 {Lok}")
    a("s_mov_b32 s7, 1")
    a("v_mov_b32 v4, 0xff800000")
    a("s_lshl_b32 s31, s29, 17")
    a(f"s_add_u32 s31, s31, {WS_K}")
    a("s_mov_b32 s8, 0")
    Lfb = a.newlabel("fb")
    a.label(Lfb)
    a(f"buffer_load_dwordx4 v[{KF[0]}:{KF[0]+3}], v1, {R4(WS_)}, s31 offen sc1")
    a(f"buffer_load_dwordx4 v[{KF[0]+4}:{KF[0]+7}], v1, {R4(WS_)}, s31 offen offset:1024 sc1")
    a("s_waitcnt vmcnt(0)")
    a(f"v_mfma_f32_32x32x16_bf16 v[{S[0]}:{S[0]+15}], v[{KF[0]}:{KF[0]+3}], v[{Q}:{Q+3}], 0")
    a(f"v_mfma_f32_32x32x16_bf16 v[{S[0]}:{S[0]+15}], v[{KF[0]+4}:{KF[0]+7}], v[{Q+4}:{Q+7}], v[{S[0]}:{S[0]+15}]")
    a("s_nop 15")
    for i in range(8): a(f"v_max3_f32 v4, v4, v{S[0]+2*i}, v{S[0]+2*i+1}")
    a("s_add_u32 s31, s31, 2048")
    a("s_add_u32 s8, s8, 1")
    a("s_cmp_lt_u32 s8, 64")
    a(f"s_cbranch_scc1 {Lfb}")
    a("v_mov_b32 v5, v4")
    a("s_nop 1")
    a("v_permlane32_swap_b32 v5, v4")
    a("s_nop 1")
    a("v_max_f32 v4, v4, v5")
    a("v_sub_f32 v4, 0, v4")
    a(f"s_branch {Lrestart}")
    a.label(Lok)
    a("v_rcp_f32 v5, v5")
    a("s_nop 0")
    for i in range(16): a(f"v_mul_f32 v{O+i}, v{O+i}, v5")
    for i in range(8): a(f"v_cvt_pk_bf16_f32 v{P+i}, v{O+2*i}, v{O+2*i+1}")
    a("s_lshl_b32 s31, s30, 3")
    a("s_add_u32 s31, s31, s28")
    a("s_lshl_b32 s31, s31, 5")
    a("s_add_u32 s31, s31, s29")
    a("s_lshl_b32 s31, s31, 11")
    a(f"s_add_u32 s31, s31, {WS_O}")
    a(f"buffer_store_dwordx4 v[{P}:{P+3}], v1, {R4(WS_)}, s31 offen sc1")
    a(f"buffer_store_dwordx4 v[{P+4}:{P+7}], v1, {R4(WS_)}, s31 offen offset:1024 sc1")
    a("s_waitcnt vmcnt(0)")
    a("s_barrier")
    common.stamp(a, 6)
    Lg3 = a.newlabel("g3")
    a("s_cmp_lt_u32 s28, 4")
    a(f"s_cbranch_scc1 {Lg3}")
    common.endpgm(a, 0)
    a.label(Lg3)
    Lnp = a.newlabel("np3")
    a("s_cmp_lg_u32 s28, 0")
    a(f"s_cbranch_scc1 {Lnp}")
    publish(30, 29, FL_O)
    a("s_lshr_b32 s8, s3, 1")
    poll(8, FL_O, 32)
    a.label(Lnp)
    a("s_lshl_b32 s60, s3, 2")
    a("s_add_u32 s60, s60, s28")
    a("s_lshl_b32 s61, s60, 16")
    a(f"s_add_u32 s61, s61, {WS_O}")
    NPF = 24
    def OF(i): return 64 + 4 * (i % NPF)
    def oload(f):
        a(f"s_add_u32 s31, s61, {(f//4)*4096}")
        a(f"buffer_load_dwordx4 v[{OF(f)}:{OF(f)+3}], v1, {R4(WS_)}, s31 offen offset:{(f%4)*1024} sc1")
    a("v_and_b32 v2, 15, v0")
    a("v_lshrrev_b32 v3, 2, v2")
    a("v_and_b32 v2, 3, v2")
    a("v_lshrrev_b32 v4, 4, v0")
    a("v_and_b32 v4, 1, v4")
    a("v_lshlrev_b32 v4, 5, v4")
    a("v_lshl_add_u32 v4, v2, 3, v4")
    a("v_lshrrev_b32 v5, 1, v3")
    a("v_and_b32 v5, 1, v5")
    a("v_lshlrev_b32 v5, 6, v5")
    a("v_xor_b32 v4, v4, v5")
    a("v_lshrrev_b32 v5, 5, v0")
    a("v_lshl_add_u32 v3, v5, 2, v3")
    a("v_lshl_add_u32 v10, v3, 7, v4")
    a("v_xor_b32 v11, 64, v10")
    GA = 32
    for i in range(32): a(f"v_mov_b32 v{GA+i}, 0")
    def WF(b, u): return 16 + 8 * b + 4 * u
    def wread(fl, b):
        r = []
        for u in range(2):
            for z in range(2):
                r.append(f"ds_read_b64_tr_b16 v[{WF(b,u)+2*z}:{WF(b,u)+2*z+1}], v{8+u} offset:{fl*2048+z*1024}")
        return r
    a("s_barrier")
    common.stamp(a, 7)
    for f in range(NPF): oload(f)
    for c in range(8):
        a(f"v_add_u32 v8, {WCH(c)}, v10")
        a(f"v_add_u32 v9, {WCH(c)}, v11")
        for x in wread(0, 0): a(x)
        for fl in range(8):
            f = 8 * c + fl
            b = fl & 1
            if fl < 7:
                for x in wread(fl + 1, b ^ 1): a(x)
                a("s_waitcnt lgkmcnt(4)")
            else:
                a("s_waitcnt lgkmcnt(0)")
            rem = min(NPF - 1, 63 - f)
            a(f"s_waitcnt vmcnt({rem})")
            for u in range(2):
                a(f"v_mfma_f32_32x32x16_bf16 v[{GA+16*u}:{GA+16*u+15}], v[{WF(b,u)}:{WF(b,u)+3}], v[{OF(f)}:{OF(f)+3}], v[{GA+16*u}:{GA+16*u+15}]")
            if f + NPF < 64: oload(f + NPF)
    a("s_nop 15")
    a("v_and_b32 v2, 31, v0")
    a("v_lshlrev_b32 v2, 12, v2")
    a("v_lshl_add_u32 v2, v5, 4, v2")
    a("s_lshl_b32 s62, s60, 17")
    a("s_lshl_b32 s63, s4, 7")
    a("s_add_u32 s62, s62, s63")
    a("s_add_u32 s62, s62, 2048")
    for u in range(2):
        for gp in range(2):
            d = 64 + 8 * u + 4 * gp
            src = GA + 16 * u + 8 * gp
            for i in range(4):
                a(f"v_cvt_pk_bf16_f32 v{d+i}, v{src+2*i}, v{src+2*i+1}")
            a("s_nop 1")
            a(f"v_permlane32_swap_b32 v{d}, v{d+2}")
            a(f"v_permlane32_swap_b32 v{d+1}, v{d+3}")
            a("s_nop 1")
            a(f"buffer_store_dwordx4 v[{d}:{d+3}], v2, {R4(OUT)}, s62 offen offset:{64*u+32*gp}")
    common.endpgm(a, 0)

    a.label(LH)
    a("s_sub_u32 s28, s28, 8")
    def kreg(i): return 64 + 4 * i
    def vreg(j): return 92 + 4 * j
    a("s_lshr_b32 s80, s2, 4")
    a("s_lshl_b32 s80, s80, 2")
    a("s_add_u32 s80, s80, s28")
    a("s_and_b32 s81, s2, 15")
    a("s_lshl_b32 s82, s80, 5")
    a("s_lshl_b32 s83, s81, 6")
    a("v_lshrrev_b32 v11, 3, v0")
    a("v_and_b32 v12, 7, v0")
    a("s_lshl_b32 s84, s83, 3")
    a("v_lshlrev_b32 v13, 6, v12")
    if PPB >= 0: a("s_barrier")
    if PPB >= 1: a("s_barrier")
    for i in range(4):
        a(f"buffer_load_dwordx4 v[{140+4*i}:{143+4*i}], v13, {R4(SH)}, s84 offen offset:{16*i}")
    a("s_lshl_b32 s84, s82, 11")
    a("s_lshl_b32 s85, s83, 1")
    a("s_add_u32 s84, s84, s85")
    a("v_lshlrev_b32 v13, 13, v11")
    a("v_lshl_add_u32 v13, v12, 4, v13")
    a("v_add_u32 v13, s84, v13")
    for i in range(3):
        a(f"v_subrev_u32 v{8+i}, {2048*(3-i)}, v13")
    for i in range(3):
        a(f"buffer_load_dwordx4 v[{kreg(i)}:{kreg(i)+3}], v{8+i}, {R4(AK)}, 0 offen")
    for j in range(4):
        a(f"s_mov_b32 s84, {2048*j}")
        a(f"buffer_load_dwordx4 v[{kreg(3+j)}:{kreg(3+j)+3}], v13, {R4(AK)}, s84 offen")
        a(f"buffer_load_dwordx4 v[{vreg(j)}:{vreg(j)+3}], v13, {R4(AV)}, s84 offen")
    a("s_lshl_b32 s86, s28, 12")
    a(f"s_add_u32 s86, s86, {PPSCR}")
    a("v_lshlrev_b32 v14, 9, v11")
    a("v_lshl_add_u32 v14, v12, 4, v14")
    a("v_add_u32 v14, s86, v14")
    a("v_lshrrev_b32 v11, 4, v0")
    a("v_and_b32 v12, 15, v0")
    a("v_lshrrev_b32 v15, 2, v12")
    a("v_and_b32 v4, 3, v12")
    a("v_lshlrev_b32 v2, 3, v11")
    a("v_add_u32 v2, 3, v2")
    a("v_sub_u32 v2, v2, v15")
    a("v_lshlrev_b32 v2, 7, v2")
    a("v_lshl_add_u32 v2, v4, 3, v2")
    a("v_add_u32 v2, s86, v2")
    a("v_add_u32 v3, s83, v12")
    a(f"v_mul_u32_u24 v3, {UR_STRIDE}, v3")
    a("s_lshl_b32 s85, s82, 1")
    a(f"s_sub_u32 s85, {2*2040}, s85")
    a("v_add_u32 v3, s85, v3")
    a("v_lshlrev_b32 v4, 4, v11")
    a("v_sub_u32 v3, v3, v4")
    for _ in range(3 - PPB): a("s_barrier")
    def unpack(dst, src):
        for e in range(8):
            if e % 2 == 0: a(f"v_lshlrev_b32 v{dst+e}, 16, v{src+(e>>1)}")
            else: a(f"v_and_b32 v{dst+e}, 0xffff0000, v{src+(e>>1)}")
    def KU(i): return [108, 116, 124, 132][i % 4]
    WT = 32
    a("s_waitcnt vmcnt(0)")
    for e in range(8):
        for i in range(4):
            src = 140 + 2 * e + (i >> 1)
            dst = WT + 4 * e + i
            if i % 2 == 0: a(f"v_lshlrev_b32 v{dst}, 16, v{src}")
            else: a(f"v_and_b32 v{dst}, 0xffff0000, v{src}")
    for i in range(3): unpack(KU(i), kreg(i))
    for j in range(4):
        if j == 2: a("s_barrier")
        unpack(KU(j + 3), kreg(j + 3))
        unpack(24, vreg(j))
        for i in (3, 2, 1, 0):
            for e in range(8):
                if i == 3: a(f"v_mul_f32 v{16+e}, v{KU(j)+e}, v{WT+4*e+3}")
                else: a(f"v_fmac_f32 v{16+e}, v{KU(j+3-i)+e}, v{WT+4*e+i}")
        for e in range(8):
            a(f"v_mul_f32 v{16+e}, v{16+e}, v{24+e}")
        for q in range(4):
            a(f"v_cvt_pk_bf16_f32 v{vreg(j)+q}, v{16+2*q}, v{17+2*q}")
    a("s_barrier")
    for j in range(4):
        a(f"ds_write_b128 v14, v[{vreg(j)}:{vreg(j)+3}] offset:{128*j}")
    a("s_waitcnt lgkmcnt(0)")
    R = 64
    for dh in range(4):
        for z in range(2):
            a(f"ds_read_b64_tr_b16 v[{R+4*dh+2*z}:{R+4*dh+2*z+1}], v2 offset:{(1 - z) * 512 + dh * 32}")
    for dh in range(4):
        a(f"s_mov_b32 s85, {WS_UR0 + dh * 16 * UR_STRIDE}")
        a(f"s_waitcnt lgkmcnt({6-2*dh})")
        a(f"buffer_store_dwordx4 v[{R+4*dh}:{R+4*dh+3}], v3, {R4(WS_)}, s85 offen sc1")
    a("v_add_u32 v4, s83, v0")
    a(f"v_mul_u32_u24 v4, {UR_STRIDE}, v4")
    for i in range(4): a(f"v_mov_b32 v{16+i}, 0")
    a("s_cmp_eq_u32 s80, 0")
    a(f"s_mov_b32 s84, {WS_SIZE}")
    a(f"s_cselect_b32 s85, {WS_UR0 + 4096}, s84")
    a(f"buffer_store_dwordx4 v[16:19], v4, {R4(WS_)}, s85 offen sc1")
    a("v_mov_b32 v20, 0")
    a(f"buffer_load_dword v21, v20, {R4(DBG)}, 0 offen sc1")
    a("s_barrier")
    a("s_barrier")
    a("s_waitcnt vmcnt(0)")
    a("v_readfirstlane_b32 s9, v21")
    a("s_barrier")
    Lnu = a.newlabel("nu")
    a("s_cmp_lg_u32 s28, 0")
    a(f"s_cbranch_scc1 {Lnu}")
    a("s_lshr_b32 s84, s2, 4")
    publish(81, 84, FL_UR)
    a.label(Lnu)
    for s in range(9, 16): a("s_barrier")
    a("s_barrier")
    a("s_barrier")
    a(f"v_mov_b32 v2, {FLAG_OFF}")
    a("v_mov_b32 v3, 0")
    a("ds_write_b32 v2, v3")
    poll(29, FL_QKV, 32)
    vm = VM(a)
    a("s_lshl_b32 s60, s29, 17")
    a("s_lshl_b32 s61, s28, 11")
    a("s_add_u32 s60, s60, s61")
    def issue_chunk(c):
        for kv, base in ((0, WS_K), (1, WS_V)):
            for i in range(2):
                a(f"s_add_u32 m0, s61, {(c % 4)*16384 + kv*8192 + i*1024}")
                a(f"s_add_u32 s31, s60, {base + c*8192 + i*1024}")
                vm.op(f"buffer_load_dwordx4 v1, {R4(WS_)}, s31 offen sc1 lds", ("c", c))
    a("s_lshl_b32 s62, s29, 6")
    a("s_lshl_b32 s31, s30, 3")
    a("s_add_u32 s62, s62, s31")
    a("s_lshl_b32 s62, s62, 11")
    a("s_lshl_b32 s63, s28, 12")
    a("s_add_u32 s62, s62, s63")
    for i in range(4):
        a(f"s_add_u32 m0, s63, {QOFF + i*1024}")
        a(f"s_add_u32 s31, s62, {WS_Q + i*1024}")
        vm.op(f"buffer_load_dwordx4 v1, {R4(WS_)}, s31 offen sc1 lds")
    a("s_lshl_b32 s31, s29, 7")
    a(f"s_add_u32 s31, s31, {WS_KMAX}")
    a(f"s_mov_b32 m0, {KMOFF}")
    a("s_mov_b64 exec, 0xff")
    vm.op(f"buffer_load_dwordx4 v1, {R4(WS_)}, s31 offen sc1 lds")
    a("s_mov_b64 exec, -1")
    issue_chunk(0); issue_chunk(1)
    vm.wait(("c", 0))
    a("s_waitcnt lgkmcnt(0)")
    a("s_barrier")
    issue_chunk(2)
    a("v_lshrrev_b32 v4, 3, v0")
    a("v_and_b32 v5, 7, v0")
    a("v_lshrrev_b32 v6, 1, v4")
    a("v_and_b32 v6, 1, v6")
    a("v_lshlrev_b32 v6, 2, v6")
    a("v_xor_b32 v7, v5, v6")
    a("v_lshlrev_b32 v7, 4, v7")
    a("v_lshl_add_u32 v3, v4, 11, v7")
    a("s_lshl_b32 s70, s4, 7")
    a("s_lshl_b32 s71, s28, 14")
    a("s_add_u32 s70, s70, s71")
    a("s_lshl_b32 s71, s28, 10")
    def wchunk(c):
        for n in range(4):
            a(f"s_add_u32 m0, s71, {WCH(c) + n*4096}")
            a(f"s_add_u32 s31, s70, {(4*c+n)*65536}")
            vm.op(f"buffer_load_dwordx4 v3, {R4(WO)}, s31 offen lds", ("w", c))
    a("s_lshr_b32 s72, s2, 3")
    a("s_and_b32 s73, s2, 7")
    a("s_lshl_b32 s74, s73, 2")
    a("s_add_u32 s74, s74, s28")
    a("v_lshrrev_b32 v20, 4, v0")
    a("v_and_b32 v10, 15, v0")
    a("v_lshlrev_b32 v11, 11, v10")
    a("v_lshl_add_u32 v11, v20, 4, v11")
    a("v_lshlrev_b32 v12, 12, v10")
    a("v_lshl_add_u32 v12, v20, 4, v12")
    a("s_lshl_b32 s75, s72, 17")
    a("s_lshl_b32 s76, s74, 6")
    a("s_add_u32 s77, s75, s76")
    a("s_lshl_b32 s75, s72, 18")
    a("s_add_u32 s78, s75, s76")
    a("v_lshrrev_b32 v13, 2, v10")
    a("v_lshl_add_u32 v13, v20, 3, v13")
    a("v_lshlrev_b32 v13, 7, v13")
    a("v_and_b32 v14, 3, v10")
    a("v_lshl_add_u32 v13, v14, 3, v13")
    a("s_mul_i32 s79, s28, 3072")
    a(f"s_add_u32 s79, s79, {KMOFF + 192}")
    a("s_lshl_b32 s79, s28, 12")
    a(f"s_add_u32 s79, s79, {CONV0}")
    a("v_add_u32 v13, s79, v13")
    a("v_add_u32 v15, s79, v1")
    a("v_lshlrev_b32 v14, 12, v4")
    a("v_lshl_add_u32 v14, v5, 4, v14")
    a("s_lshl_b32 s75, s74, 17")
    a("s_lshl_b32 s76, s72, 7")
    a("s_add_u32 s75, s75, s76")
    a(f"s_add_u32 s75, s75, {WS_YT}")
    for c in range(15):
        if c == 1:
            Lny = a.newlabel("ny")
            a("s_cmp_lg_u32 s28, 0")
            a(f"s_cbranch_scc1 {Lny}")
            a("s_lshr_b32 s84, s2, 5")
            a("s_and_b32 s85, s2, 31")
            publish(84, 85, FL_Y)
            a.label(Lny)
        if c == 4:
            for ps in range(4):
                a(f"s_add_u32 s31, s77, {ps*32768}")
                vm.op(f"buffer_load_dwordx4 v[{32+4*ps}:{35+4*ps}], v11, {R4(AQ)}, s31 offen")
        if c == 6:
            poll(73, FL_Y, 32)
            for n in range(4):
                a(f"s_add_u32 s31, s75, {n*32768}")
                vm.op(f"buffer_load_dwordx4 v[{64+4*n}:{67+4*n}], v14, {R4(WS_)}, s31 offen sc1", "yl")
        if c == 8:
            vm.wait("yl")
            for n in range(4):
                a(f"ds_write_b128 v15, v[{64+4*n}:{67+4*n}] offset:{n*1024}")
            a("s_waitcnt lgkmcnt(0)")
            for ps in range(4):
                for z in range(2):
                    a(f"ds_read_b64_tr_b16 v[{48+4*ps+2*z}:{49+4*ps+2*z}], v13 offset:{z*512+ps*32}")
            for ps in range(4):
                a(f"s_waitcnt lgkmcnt({6-2*ps})")
                for dw in range(4):
                    qr, yr = 32 + 4 * ps + dw, 48 + 4 * ps + dw
                    a(f"v_lshlrev_b32 v16, 16, v{qr}")
                    a(f"v_and_b32 v17, 0xffff0000, v{qr}")
                    a(f"v_lshlrev_b32 v18, 16, v{yr}")
                    a(f"v_and_b32 v19, 0xffff0000, v{yr}")
                    a("v_mul_f32 v16, v16, v18")
                    a("v_mul_f32 v17, v17, v19")
                    a(f"v_cvt_pk_bf16_f32 v{80+4*ps+dw}, v16, v17")
                a(f"s_add_u32 s31, s78, {ps*65536}")
                vm.op(f"buffer_store_dwordx4 v[{80+4*ps}:{83+4*ps}], v12, {R4(OUT)}, s31 offen")
        if 10 <= c < 15: wchunk(c - 10)
        vm.wait(("c", c + 1))
        a("s_barrier")
        if c + 3 <= 15: issue_chunk(c + 3)
    a("s_barrier")
    a("s_barrier")
    a(f"v_mov_b32 v6, {FLAG_OFF}")
    a("ds_read_b32 v7, v6")
    a("s_waitcnt lgkmcnt(0)")
    a("v_readfirstlane_b32 s31, v7")
    a("s_nop 3")
    a("s_cmp_eq_u32 s31, 0")
    Lhd = a.newlabel("hd")
    a(f"s_cbranch_scc1 {Lhd}")
    a("s_mov_b32 s8, 0")
    def issue_dyn():
        a("s_and_b32 s84, s8, 3")
        a("s_lshl_b32 s84, s84, 14")
        a("s_add_u32 s84, s84, s61")
        a("s_lshl_b32 s85, s8, 13")
        a("s_add_u32 s85, s85, s60")
        for kv, base in ((0, WS_K), (1, WS_V)):
            for i in range(2):
                a(f"s_add_u32 m0, s84, {kv*8192 + i*1024}")
                a(f"s_add_u32 s31, s85, {base + i*1024}")
                a(f"buffer_load_dwordx4 v1, {R4(WS_)}, s31 offen sc1 lds")
        a("s_add_u32 s8, s8, 1")
    issue_dyn()
    a("s_waitcnt vmcnt(0)")
    a("s_barrier")
    L2p = a.newlabel("p2")
    a.label(L2p)
    issue_dyn()
    a("s_waitcnt vmcnt(0)")
    a("s_barrier")
    a("s_cmp_lt_u32 s8, 16")
    a(f"s_cbranch_scc1 {L2p}")
    a("s_barrier")
    a.label(Lhd)
    a("s_barrier")
    for c in range(5, 8): wchunk(c)
    a("s_waitcnt vmcnt(0)")
    common.endpgm(a, 0)
    a.label(Lend)
    a("s_endpgm")
    return kernel_desc(name, 160)
```

```python
import struct, os
from common import *
import common
def f32bits(x): return struct.unpack("<I", struct.pack("<f", x))[0]
VAR = os.environ.get('KGVAR', '')
PUBD = int(os.environ.get('KGPUBD', '5'))
SLP = int(os.environ.get('KGSLP', '40'))
QSCALE = 1.4426950408889634 / (32 ** 0.5)
KG_LDS = 81920
KG_BLOCK = 512
SLOT = 14336; NSL = 5
CP_STRIDE = 4160
C0B = [8768 * c for c in range(4)]
HB = [8768 * c + 4160 for c in range(4)]
CXB = [36864 + 12544 * j for j in range(2)]
PPSCR = 65536
FLAG_OFF = 65536
QOFF = 49152; KMOFF = 49152 + 8192
FL_O, FL_UR, FL_QKV, FL_Y = 0, 16, 32, 64
WS_KM2 = WS_KMAX
Q = 8; CN = 16; O = 32; L = 48; ONES = 52; P = 56
S = [64, 80]; KF = [96, 104]; VF = [112, 120]
WS_, SSMK, WO, AQ, DBG, OUT, XS, WQ, AK, AV, SH = 12, 16, 20, 24, 32, 36, 40, 44, 48, 52, 56
def R4(b): return f"s[{b}:{b+3}]"
PROF = False
NST = 8
def stamp(a, k):
    if not PROF: return
    a("s_memrealtime s[100:101]")
    a("s_waitcnt lgkmcnt(0)")
    a(f"s_mov_b32 s{84+k}, s100")
def endp(a):
    if PROF:
        stamp(a, NST - 1)
        a("s_mov_b64 exec, -1")
        for k in range(NST): a(f"v_writelane_b32 v2, s{84+k}, {k}")
        a("s_lshl_b32 s100, s99, 3")
        a("s_add_u32 s100, s100, s98")
        a("s_lshl_b32 s100, s100, 8")
        a(f"s_add_u32 s100, s100, {common.WS_PROF}")
        a("v_lshlrev_b32 v3, 2, v0")
        a(f"buffer_store_dword v2, v3, {R4(WS_)}, s100 offen")
    a("s_endpgm")

def gen_kg(a, name="kg_kernel"):
    kernel_begin(a, name)
    Lend = a.newlabel("end")
    a("s_cmp_ge_u32 s2, 512")
    a(f"s_cbranch_scc1 {Lend}")
    a("s_load_dwordx16 s[60:75], s[0:1], 0")
    a("s_load_dwordx8 s[76:83], s[0:1], 64")
    a("v_lshrrev_b32 v1, 6, v0")
    a("s_nop 0")
    a("v_readfirstlane_b32 s28, v1")
    a("v_and_b32 v0, 63, v0")
    a("s_mov_b32 s99, s2")
    a("s_mov_b32 s98, s28")
    a("s_lshr_b32 s7, s2, 8")
    a("s_and_b32 s2, s2, 255")
    a("v_lshlrev_b32 v1, 4, v0")
    a("s_waitcnt lgkmcnt(0)")
    srd(a, WS_, 82, WS_SIZE)
    srd(a, SSMK, 68, 1024 * 2048 * 2)
    srd(a, WO, 76, 1024 * 1024 * 2)
    srd(a, AQ, 60, 2048 * 1024 * 2)
    srd(a, DBG, 80, 256)
    srd(a, OUT, 78, 2048 * 2048 * 2)
    srd(a, XS, 72, 2048 * 1024 * 2)
    srd(a, WQ, 74, 1024 * 3072 * 2)
    srd(a, AK, 62, 2048 * 1024 * 2)
    srd(a, AV, 64, 2048 * 1024 * 2)
    srd(a, SH, 66, 1024 * 4 * 2)
    a("s_mov_b32 s10, s70")
    a("s_mov_b32 s11, s71")
    if PROF:
        for k in range(NST): a(f"s_mov_b32 s{84+k}, 0")
    stamp(a, 0)

    def get_nonce(v=2):
        Ln = a.newlabel("tag"); Lnd = a.newlabel("tagd")
        a(f"v_mov_b32 v{v}, 0")
        a("s_mov_b32 s95, 0")
        a.label(Ln)
        a(f"buffer_load_dword v{v+1}, v{v}, {R4(DBG)}, 0 offen sc1")
        a("s_add_u32 s95, s95, 1")
        a("s_waitcnt vmcnt(0)")
        a(f"v_readfirstlane_b32 s9, v{v+1}")
        a("s_nop 3")
        a("s_cmp_lg_u32 s9, 0")
        a(f"s_cbranch_scc1 {Lnd}")
        a("s_sleep 32")
        a("s_cmp_lt_u32 s95, 0x100000")
        a(f"s_cbranch_scc1 {Ln}")
        a.label(Lnd)
    def publish(line_sreg, entry_sreg, base, v=2):
        a(f"s_lshl_b32 s31, s{line_sreg}, 8")
        a(f"s_lshl_b32 s95, s{entry_sreg}, 2")
        a("s_add_u32 s31, s31, s95")
        a(f"s_add_u32 s31, s31, {WS_FLAG + base*256}")
        a(f"v_mov_b32 v{v}, 0")
        a(f"v_mov_b32 v{v+1}, s9")
        a("s_mov_b64 exec, 1")
        a(f"buffer_store_dword v{v+1}, v{v}, {R4(WS_)}, s31 offen sc1")
        a("s_mov_b64 exec, -1")
    def poll(line_sreg, base, n, v=2, stride=4, off_sreg=None, slp=SLP):
        Lp = a.newlabel("poll"); Lpd = a.newlabel("polld")
        a(f"s_lshl_b32 s94, s{line_sreg}, 8")
        a(f"s_add_u32 s94, s94, {WS_FLAG + base*256}")
        if off_sreg is not None:
            a(f"s_lshl_b32 s95, s{off_sreg}, 2")
            a("s_add_u32 s94, s94, s95")
        a(f"v_and_b32 v{v}, {n-1}, v0")
        a(f"v_mul_u32_u24 v{v}, {stride}, v{v}")
        a("s_mov_b32 s95, 0")
        a.label(Lp)
        a(f"buffer_load_dword v{v+1}, v{v}, {R4(WS_)}, s94 offen sc1")
        a("s_add_u32 s95, s95, 1")
        a("s_waitcnt vmcnt(0)")
        a(f"v_cmp_ne_u32 vcc, s9, v{v+1}")
        a("s_cmp_eq_u64 vcc, 0")
        a(f"s_cbranch_scc1 {Lpd}")
        a(f"s_sleep {slp}")
        a("s_cmp_lt_u32 s95, 0x100000")
        a(f"s_cbranch_scc1 {Lp}")
        a.label(Lpd)

    LA = a.newlabel("typeA")
    a("s_cmp_eq_u32 s7, 1")
    a(f"s_cbranch_scc1 {LA}")
    a("s_and_b32 s31, s2, 7")
    a("s_lshr_b32 s8, s2, 3")
    a("s_and_b32 s5, s31, 1")
    a("s_lshl_b32 s5, s5, 3")
    a("s_and_b32 s9, s8, 7")
    a("s_add_u32 s5, s5, s9")
    a("s_lshr_b32 s6, s31, 1")
    a("s_lshl_b32 s6, s6, 2")
    a("s_lshr_b32 s9, s8, 3")
    a("s_add_u32 s6, s6, s9")
    a("s_and_b32 s3, s31, 3")
    a("s_lshl_b32 s3, s3, 2")
    a("s_and_b32 s9, s8, 3")
    a("s_add_u32 s3, s3, s9")
    a("s_lshr_b32 s4, s31, 2")
    a("s_lshl_b32 s4, s4, 3")
    a("s_lshr_b32 s9, s8, 2")
    a("s_add_u32 s4, s4, s9")
    LGC = a.newlabel("gc"); LGP = a.newlabel("gp"); LGH3 = a.newlabel("gh3")
    a("s_cmp_lt_u32 s28, 4")
    a(f"s_cbranch_scc1 {LGC}")
    a("s_cmp_ge_u32 s28, 6")
    a(f"s_cbranch_scc1 {LGP}")
    a("s_sub_u32 s60, s28, 4")
    a("v_lshrrev_b32 v4, 2, v0")
    a("v_and_b32 v5, 3, v0")
    a("v_lshrrev_b32 v6, 2, v4")
    a("v_xor_b32 v6, v5, v6")
    a("v_lshlrev_b32 v6, 4, v6")
    a("v_lshl_add_u32 v10, v4, 11, v6")
    a("v_mul_u32_u24 v12, 6144, v4")
    a("v_lshl_add_u32 v12, v5, 4, v12")
    a("s_lshl_b32 s61, s5, 18")
    a("s_lshl_b32 s31, s60, 17")
    a("s_add_u32 s61, s61, s31")
    a("s_lshl_b32 s62, s6, 7")
    a("s_lshl_b32 s70, s60, 12")
    a("s_mul_i32 s71, s60, 3072")
    a("s_add_u32 s71, s71, 8192")
    a("s_mov_b32 s72, 0")
    a("s_mov_b32 s73, 0")
    Ld1 = a.newlabel("d1")
    a("s_cmp_eq_u32 s60, 1")
    a(f"s_cbranch_scc1 {Ld1}")
    for lw in range(2):
        if lw == 1: a.label(Ld1)
        def issue_stage():
            a("s_and_b32 s74, s72, 31")
            a("s_lshl_b32 s75, s74, 6")
            a("s_add_u32 s75, s75, s61")
            a(f"s_mul_i32 s76, s74, {32*6144}")
            a("s_add_u32 s76, s76, s62")
            a("s_lshr_b32 s74, s72, 5")
            a("s_lshl_b32 s74, s74, 6")
            a("s_add_u32 s76, s76, s74")
            a("s_add_u32 s77, s70, s73")
            a("s_add_u32 s78, s71, s73")
            for j in range(4):
                a(f"s_add_u32 m0, s77, {j*1024}")
                a(f"s_add_u32 s31, s75, {j*32768}")
                a(f"buffer_load_dwordx4 v10, {R4(XS)}, s31 offen lds")
            for j in range(3):
                i = 3 * lw + j
                a(f"s_add_u32 m0, s78, {j*1024}")
                a(f"s_add_u32 s31, s76, {(i & 1)*16*6144 + (i >> 1)*2048}")
                a(f"buffer_load_dwordx4 v12, {R4(WQ)}, s31 offen lds")
            a("s_add_u32 s72, s72, 1")
            a(f"s_add_u32 s73, s73, {SLOT}")
            a(f"s_cmp_eq_u32 s73, {NSL*SLOT}")
            a("s_cselect_b32 s73, 0, s73")
        for _ in range(4): issue_stage()
        a("s_waitcnt vmcnt(21)")
        a("s_barrier")
        Lll = a.newlabel("dl")
        a.label(Lll)
        issue_stage()
        a("s_waitcnt vmcnt(21)")
        a("s_barrier")
        a("s_cmp_lt_u32 s72, 64")
        a(f"s_cbranch_scc1 {Lll}")
        for k in (14, 7, 0):
            a(f"s_waitcnt vmcnt({k})")
            a("s_barrier")
        a(f"s_branch {LGH3}")
    a.label(LGP)
    Lnt = a.newlabel("notag")
    a("s_lshl_b32 s31, s2, 4")
    a("s_add_u32 s31, s31, s28")
    a("s_cmp_lg_u32 s31, 6")
    a(f"s_cbranch_scc1 {Lnt}")
    a("s_memrealtime s[60:61]")
    a("s_waitcnt lgkmcnt(0)")
    a("s_or_b32 s60, s60, 1")
    a("v_mov_b32 v2, s60")
    a("v_mov_b32 v4, 0")
    a("s_mov_b64 exec, 1")
    a(f"buffer_store_dword v2, v4, {R4(DBG)}, 0 offen sc1")
    a("s_mov_b64 exec, -1")
    a.label(Lnt)
    a("s_lshr_b32 s8, s2, 3")
    a("v_lshrrev_b32 v6, 1, v0")
    a("v_lshlrev_b32 v6, 11, v6")
    a("v_and_b32 v7, 1, v0")
    a("v_lshl_add_u32 v6, v7, 7, v6")
    a("s_and_b32 s31, s2, 1")
    a("s_lshl_b32 s31, s31, 10")
    a("s_lshl_b32 s60, s8, 5")
    a("s_add_u32 s31, s31, s60")
    a("s_lshl_b32 s62, s31, 11")
    a("v_lshrrev_b32 v8, 5, v0")
    a(f"v_mul_u32_u24 v8, {64*6144}, v8")
    a("v_bfe_u32 v7, v0, 4, 1")
    a("v_mul_u32_u24 v7, 6144, v7")
    a("v_add_u32 v8, v8, v7")
    a("v_bfe_u32 v7, v0, 2, 2")
    a("v_min_u32 v7, 2, v7")
    a("v_lshl_add_u32 v8, v7, 11, v8")
    a("v_and_b32 v7, 3, v0")
    a("v_lshl_add_u32 v8, v7, 7, v8")
    a("s_lshl_b32 s8, s8, 1")
    a("s_mul_i32 s63, s8, 6144")
    a("s_bfe_u32 s31, s2, 0x20001")
    a("s_lshl_b32 s31, s31, 9")
    a("s_add_u32 s63, s63, s31")
    a("s_cmp_eq_u32 s28, 6")
    a(f"s_cselect_b32 s64, s{XS}, s{WQ}")
    a(f"s_cselect_b32 s65, s{XS+1}, s{WQ+1}")
    a(f"s_cselect_b32 s66, s{XS+2}, s{WQ+2}")
    a("s_mov_b32 s67, 0x00020000")
    a("s_cselect_b32 s62, s62, s63")
    a(f"s_mov_b32 s31, {2*64*6144}")
    a("s_cselect_b32 s63, 256, s31")
    a("s_cselect_b64 vcc, -1, 0")
    a("v_cndmask_b32 v6, v8, v6, vcc")
    def pf():
        a("s_add_u32 s62, s62, s63")
        a("buffer_load_dword v9, v6, s[64:67], s62 offen sc1")
    pf()
    for g in range(6):
        a("s_barrier")
        pf()
        for _ in range(3): a("s_barrier")
    a("s_mov_b32 s72, 24")
    Lpl = a.newlabel("pl")
    a.label(Lpl)
    a("s_barrier")
    a("s_add_u32 s72, s72, 1")
    a("s_cmp_lt_u32 s72, 64")
    a(f"s_cbranch_scc1 {Lpl}")
    a.label(LGH3)
    if 'noA' in VAR: endp(a)
    a("s_sub_u32 s60, s28, 4")
    a("v_lshrrev_b32 v4, 3, v0")
    a("v_and_b32 v5, 7, v0")
    a("v_lshrrev_b32 v6, 1, v4")
    a("v_and_b32 v6, 1, v6")
    a("v_lshlrev_b32 v6, 2, v6")
    a("v_xor_b32 v7, v5, v6")
    a("v_lshlrev_b32 v7, 4, v7")
    a("v_lshl_add_u32 v3, v4, 11, v7")
    a("s_lshl_b32 s70, s4, 7")
    a("s_lshl_b32 s71, s60, 14")
    a("s_add_u32 s70, s70, s71")
    a("s_lshl_b32 s71, s60, 10")
    for r in range(2):
        a("s_barrier")
        for j in range(16):
            a(f"s_add_u32 m0, s71, {j*4096}")
            a(f"s_add_u32 s31, s70, {(2*j + r)*65536}")
            a(f"buffer_load_dwordx4 v3, {R4(WO)}, s31 offen lds")
        a("s_waitcnt vmcnt(0)")
        a("s_barrier")
    endp(a)
    a.label(LGC)
    a("v_and_b32 v56, 31, v0")
    a("v_lshrrev_b32 v2, 5, v0")
    a("v_lshrrev_b32 v3, 2, v56")
    a("v_and_b32 v3, 3, v3")
    a("s_lshl_b32 s62, s28, 11")
    a("v_lshlrev_b32 v9, 6, v56")
    a("v_add_u32 v9, s62, v9")
    for ks in range(2):
        a(f"v_or_b32 v15, {2*ks}, v2")
        a("v_xor_b32 v15, v15, v3")
        a(f"v_lshl_add_u32 v{4+ks}, v15, 4, v9")
    a("v_and_b32 v56, 15, v0")
    a("v_lshrrev_b32 v3, 2, v56")
    a("v_and_b32 v56, 3, v56")
    a("v_lshrrev_b32 v15, 4, v0")
    a("v_and_b32 v15, 1, v15")
    a("v_lshlrev_b32 v15, 5, v15")
    a("v_lshl_add_u32 v15, v56, 3, v15")
    a("v_lshl_add_u32 v3, v2, 3, v3")
    a("v_lshl_add_u32 v6, v3, 6, v15")
    a("v_add_u32 v6, 8192, v6")
    for i in range(3): a(f"v_mov_b32 v{10+i}, v{4+i}")
    def Xf(b): return 16 + 16 * b
    def Wf(b, p): return 20 + 16 * b + 4 * p
    def acc(p): return 64 + 16 * p
    def reads(ks):
        b = ks
        r = [f"ds_read_b128 v[{Xf(b)}:{Xf(b)+3}], v{10+ks}"]
        for p in range(3):
            for z in range(2):
                r.append(f"ds_read_b64_tr_b16 v[{Wf(b,p)+2*z}:{Wf(b,p)+2*z+1}], v12 offset:{p*2048+ks*1024+z*256}")
        return r
    def mfmas(b):
        r = []
        for p in range(3):
            A, B = (Wf(b, p), Xf(b)) if p < 2 else (Xf(b), Wf(b, p))
            r.append(f"v_mfma_f32_32x32x16_bf16 v[{acc(p)}:{acc(p)+15}], v[{A}:{A+3}], v[{B}:{B+3}], v[{acc(p)}:{acc(p)+15}]")
        return r
    a("s_mov_b32 s72, 0")
    a("s_mov_b32 s73, 0")
    for i in range(48): a(f"v_mov_b32 v{64+i}, 0")
    a("s_barrier")
    stamp(a, 1)
    for x in reads(0): a(x)
    Ls = a.newlabel("stage"); Lnb = a.newlabel("nb"); Lne = a.newlabel("ne"); Lg3 = a.newlabel("g3")
    Lpub = a.newlabel("pub"); Lret = a.newlabel("ret")
    a.label(Ls)
    a(f"s_cmp_eq_u32 s72, {32 + PUBD}")
    a(f"s_cbranch_scc1 {Lpub}")
    a.label(Lret)
    a("s_waitcnt lgkmcnt(0)")
    m = mfmas(0); r = reads(1)
    a(m[0]); [a(x) for x in r[0:4]]
    a(m[1]); [a(x) for x in r[4:7]]
    a(m[2])
    a("s_waitcnt lgkmcnt(0)")
    a("s_cmp_eq_u32 s72, 63")
    a(f"s_cbranch_scc1 {Lnb}")
    a("s_barrier")
    a(f"s_add_u32 s73, s73, {SLOT}")
    a(f"s_cmp_eq_u32 s73, {NSL*SLOT}")
    a("s_cselect_b32 s73, 0, s73")
    for i in range(3): a(f"v_add_u32 v{10+i}, s73, v{4+i}")
    for x in reads(0): a(x)
    a.label(Lnb)
    for x in mfmas(1): a(x)
    a("s_add_u32 s72, s72, 1")
    a("s_and_b32 s31, s72, 31")
    a("s_cmp_lg_u32 s31, 0")
    a(f"s_cbranch_scc1 {Ls}")
    a("v_mov_b32 v56, 0")
    a(f"buffer_load_dword v57, v56, {R4(DBG)}, 0 offen sc1")
    a("s_nop 15")
    a("s_lshr_b32 s31, s72, 5")
    a("s_sub_u32 s31, s31, 1")
    a("s_lshl_b32 s62, s6, 1")
    a("s_add_u32 s62, s62, s31")
    a("s_lshl_b32 s63, s5, 2")
    a("s_add_u32 s63, s63, s28")
    a("s_lshl_b32 s64, s62, 6")
    a("s_add_u32 s64, s64, s63")
    a("s_lshl_b32 s65, s64, 2")
    a(f"s_add_u32 s65, s65, {WS_KM2}")
    a("s_lshl_b32 s64, s64, 11")
    a(f"s_mov_b32 s66, {f32bits(QSCALE)}")
    PK = 112
    for p in (1, 2, 0):
        base = acc(p)
        d = PK if p == 1 else (PK + 8 if p == 2 else 48)
        if p == 0:
            for i in range(16): a(f"v_mul_f32 v{base+i}, s66, v{base+i}")
        for i in range(8):
            a(f"v_cvt_pk_bf16_f32 v{d+i}, v{base+2*i}, v{base+2*i+1}")
        a(f"s_add_u32 s31, s64, {[WS_Q, WS_K, WS_V][p]}")
        a(f"buffer_store_dwordx4 v[{d}:{d+3}], v1, {R4(WS_)}, s31 offen sc1")
        a(f"buffer_store_dwordx4 v[{d+4}:{d+7}], v1, {R4(WS_)}, s31 offen offset:1024 sc1")
    for i in range(48): a(f"v_mov_b32 v{64+i}, 0")
    for i in range(8):
        c = "0" if i == 0 else "v58"
        a(f"v_dot2_f32_bf16 v58, v{PK+i}, v{PK+i}, {c}")
    a("s_nop 3")
    a("v_mov_b32 v59, v58")
    a("s_nop 1")
    a("v_permlane32_swap_b32 v59, v58")
    a("s_nop 1")
    a("v_add_f32 v58, v58, v59")
    for dpp in ("quad_perm:[1,0,3,2]", "quad_perm:[2,3,0,1]", "row_half_mirror", "row_mirror"):
        a("s_nop 1")
        a(f"v_max_f32_dpp v58, v58, v58 {dpp} row_mask:0xf bank_mask:0xf")
    a("s_nop 1")
    a("v_mov_b32 v59, v58")
    a("s_nop 1")
    a("v_permlane16_swap_b32 v59, v58")
    a("s_nop 1")
    a("v_max_f32 v58, v58, v59")
    a("s_mov_b64 exec, 1")
    a(f"buffer_store_dword v58, v56, {R4(WS_)}, s65 offen sc1")
    a("s_mov_b64 exec, -1")
    a("s_cmp_lt_u32 s72, 64")
    if PROF:
        Lx = a.newlabel("x")
        a(f"s_cbranch_scc0 {Lx}")
        stamp(a, 2)
        a(f"s_branch {Ls}")
        a.label(Lx)
    else:
        a(f"s_cbranch_scc1 {Ls}")
    a.label(Lpub)
    a("s_waitcnt vmcnt(0)")
    a("v_readfirstlane_b32 s9, v57")
    a("s_nop 3")
    a("s_cmp_lg_u32 s9, 0")
    a(f"s_cbranch_scc1 {Lne}")
    get_nonce(56)
    a.label(Lne)
    publish(62, 63, FL_QKV, v=56)
    a("s_cmp_lt_u32 s72, 64")
    a(f"s_cbranch_scc1 {Lret}")
    stamp(a, 3)
    if 'noA' in VAR: endp(a)
    a("s_lshl_b32 s60, s3, 2")
    a("s_add_u32 s60, s60, s28")
    a("s_lshl_b32 s61, s60, 16")
    a(f"s_add_u32 s61, s61, {WS_O}")
    NPF = 16
    def OF(i): return 64 + 4 * (i % NPF)
    a("v_and_b32 v2, 15, v0")
    a("v_lshrrev_b32 v3, 2, v2")
    a("v_and_b32 v2, 3, v2")
    a("v_lshrrev_b32 v4, 4, v0")
    a("v_and_b32 v4, 1, v4")
    a("v_lshlrev_b32 v4, 5, v4")
    a("v_lshl_add_u32 v4, v2, 3, v4")
    a("v_lshrrev_b32 v5, 1, v3")
    a("v_and_b32 v5, 1, v5")
    a("v_lshlrev_b32 v5, 6, v5")
    a("v_xor_b32 v4, v4, v5")
    a("v_lshrrev_b32 v5, 5, v0")
    a("v_lshl_add_u32 v3, v5, 2, v3")
    a("v_lshl_add_u32 v8, v3, 7, v4")
    a("v_xor_b32 v9, 64, v8")
    GA = 32
    for i in range(32): a(f"v_mov_b32 v{GA+i}, 0")
    def WF(b, u): return 16 + 8 * b + 4 * u
    def wread(f, b):
        return [f"ds_read_b64_tr_b16 v[{WF(b,u)+2*z}:{WF(b,u)+2*z+1}], v{8+u} offset:{f*2048+z*1024}" for u in range(2) for z in range(2)]
    a("s_mov_b32 s72, 0")
    Lh = a.newlabel("g3h")
    a.label(Lh)
    a("s_barrier")
    Lnp = a.newlabel("np3")
    a("s_cmp_lg_u32 s28, 0")
    a(f"s_cbranch_scc1 {Lnp}")
    poll(3, FL_O, 16, v=2, stride=8, off_sreg=72)
    a.label(Lnp)
    a("s_lshl_b32 s62, s72, 11")
    a("s_add_u32 s62, s62, s61")
    a("s_barrier")
    def oload(f):
        a(f"s_add_u32 s31, s62, {(f >> 1)*4096}")
        a(f"buffer_load_dwordx4 v[{OF(f)}:{OF(f)+3}], v1, {R4(WS_)}, s31 offen offset:{(f & 1)*1024} sc1")
    for f in range(NPF): oload(f)
    for x in wread(0, 0): a(x)
    for f in range(32):
        b = f & 1
        if f < 31:
            for x in wread(f + 1, b ^ 1): a(x)
            a("s_waitcnt lgkmcnt(4)")
        else:
            a("s_waitcnt lgkmcnt(0)")
        a(f"s_waitcnt vmcnt({min(NPF - 1, 31 - f)})")
        for u in range(2):
            a(f"v_mfma_f32_32x32x16_bf16 v[{GA+16*u}:{GA+16*u+15}], v[{WF(b,u)}:{WF(b,u)+3}], v[{OF(f)}:{OF(f)+3}], v[{GA+16*u}:{GA+16*u+15}]")
        if f + NPF < 32: oload(f + NPF)
    a("s_add_u32 s72, s72, 1")
    a("s_cmp_lt_u32 s72, 2")
    if PROF:
        Lx = a.newlabel("x")
        a(f"s_cbranch_scc0 {Lx}")
        stamp(a, 4)
        a(f"s_branch {Lh}")
        a.label(Lx)
    else:
        a(f"s_cbranch_scc1 {Lh}")
    a("s_nop 15")
    a("v_and_b32 v2, 31, v0")
    a("v_lshlrev_b32 v2, 12, v2")
    a("v_lshl_add_u32 v2, v5, 4, v2")
    a("s_lshl_b32 s62, s60, 17")
    a("s_lshl_b32 s63, s4, 7")
    a("s_add_u32 s62, s62, s63")
    a("s_add_u32 s62, s62, 2048")
    for u in range(2):
        for gp in range(2):
            d = 64 + 8 * u + 4 * gp
            src = GA + 16 * u + 8 * gp
            for i in range(4):
                a(f"v_cvt_pk_bf16_f32 v{d+i}, v{src+2*i}, v{src+2*i+1}")
            a("s_nop 1")
            a(f"v_permlane32_swap_b32 v{d}, v{d+2}")
            a(f"v_permlane32_swap_b32 v{d+1}, v{d+3}")
            a("s_nop 1")
            a(f"buffer_store_dwordx4 v[{d}:{d+3}], v2, {R4(OUT)}, s62 offen offset:{64*u+32*gp}")
    endp(a)

    import kg_a
    kg_a.gen_a(a, LA, get_nonce, publish, poll, stamp, endp)
    a.label(Lend)
    a("s_endpgm")
    acc_ = 128
    return f""".p2align 6
.amdhsa_kernel {name}
  .amdhsa_next_free_vgpr 128
  .amdhsa_next_free_sgpr 102
  .amdhsa_accum_offset 128
  .amdhsa_group_segment_fixed_size 0
  .amdhsa_kernarg_size 96
  .amdhsa_user_sgpr_count 2
  .amdhsa_user_sgpr_kernarg_segment_ptr 1
  .amdhsa_system_sgpr_workgroup_id_x 1
.end_amdhsa_kernel
"""
```

```python
from common import *
from kg import *
import kg

def gen_a(a, LA, get_nonce, publish, poll, stamp, endp):
    a.label(LA)
    if 'noA' in VAR:
        endp(a)
    a("s_and_b32 s31, s2, 7")
    a("s_lshr_b32 s8, s2, 3")
    a("s_lshl_b32 s6, s31, 1")
    a("s_lshr_b32 s9, s8, 4")
    a("s_add_u32 s6, s6, s9")
    a("s_and_b32 s30, s8, 15")
    Lnopp = a.newlabel("nopp")
    a("s_cmp_lt_u32 s28, 4")
    a(f"s_cbranch_scc1 {Lnopp}")
    def kreg(i): return 64 + 4 * i
    def vreg(j): return 92 + 4 * j
    a("s_sub_u32 s70, s28, 4")
    a("s_lshr_b32 s80, s2, 4")
    a("s_lshl_b32 s80, s80, 2")
    a("s_add_u32 s80, s80, s70")
    a("s_and_b32 s81, s2, 15")
    a("s_lshl_b32 s82, s80, 5")
    a("s_lshl_b32 s83, s81, 6")
    a("v_lshrrev_b32 v11, 3, v0")
    a("v_and_b32 v12, 7, v0")
    a("s_lshl_b32 s71, s83, 3")
    a("v_lshlrev_b32 v13, 6, v12")
    for i in range(4):
        a(f"buffer_load_dwordx4 v[{108+4*i}:{111+4*i}], v13, {R4(SH)}, s71 offen offset:{16*i}")
    a("s_lshl_b32 s71, s82, 11")
    a("s_lshl_b32 s72, s83, 1")
    a("s_add_u32 s71, s71, s72")
    a("v_lshlrev_b32 v13, 13, v11")
    a("v_lshl_add_u32 v13, v12, 4, v13")
    a("v_add_u32 v13, s71, v13")
    for i in range(3): a(f"v_subrev_u32 v{8+i}, {2048*(3-i)}, v13")
    for i in range(3): a(f"buffer_load_dwordx4 v[{kreg(i)}:{kreg(i)+3}], v{8+i}, {R4(AK)}, 0 offen")
    for j in range(4):
        a(f"s_mov_b32 s71, {2048*j}")
        a(f"buffer_load_dwordx4 v[{kreg(3+j)}:{kreg(3+j)+3}], v13, {R4(AK)}, s71 offen")
        a(f"buffer_load_dwordx4 v[{vreg(j)}:{vreg(j)+3}], v13, {R4(AV)}, s71 offen")
    a("s_lshl_b32 s73, s70, 12")
    a(f"s_add_u32 s73, s73, {PPSCR}")
    a("v_lshlrev_b32 v14, 9, v11")
    a("v_lshl_add_u32 v14, v12, 4, v14")
    a("v_add_u32 v14, s73, v14")
    a("v_lshrrev_b32 v11, 4, v0")
    a("v_and_b32 v12, 15, v0")
    a("v_lshrrev_b32 v15, 2, v12")
    a("v_and_b32 v4, 3, v12")
    a("v_lshlrev_b32 v5, 3, v11")
    a("v_add_u32 v5, 3, v5")
    a("v_sub_u32 v5, v5, v15")
    a("v_lshlrev_b32 v5, 7, v5")
    a("v_lshl_add_u32 v5, v4, 3, v5")
    a("v_add_u32 v5, s73, v5")
    a("v_add_u32 v6, s83, v12")
    a(f"v_mul_u32_u24 v6, {UR_STRIDE}, v6")
    a("s_lshl_b32 s72, s82, 1")
    a(f"s_sub_u32 s72, {2*2040}, s72")
    a("v_add_u32 v6, s72, v6")
    a("v_lshlrev_b32 v4, 4, v11")
    a("v_sub_u32 v6, v6, v4")
    WT = 32
    a("s_waitcnt vmcnt(11)")
    for e in range(8):
        for i in range(4):
            src = 108 + 2 * e + (i >> 1)
            dst = WT + 4 * e + i
            if e % 2 == 0:
                if i % 2 == 0: a(f"v_and_b32 v{dst}, 0xffff, v{src}")
                else: a(f"v_lshrrev_b32 v{dst}, 16, v{src}")
            else:
                if i % 2 == 0: a(f"v_lshlrev_b32 v{dst}, 16, v{src}")
                else: a(f"v_and_b32 v{dst}, 0xffff0000, v{src}")
    for j in range(4):
        a(f"s_waitcnt vmcnt({6-2*j})")
        for i in (3, 2, 1, 0):
            for e in range(8):
                c = "0" if i == 3 else f"v{16+e}"
                a(f"v_dot2_f32_bf16 v{16+e}, v{kreg(3+j-i)+(e>>1)}, v{WT+4*e+i}, {c}")
        for e in range(8):
            if e % 2 == 0: a(f"v_lshlrev_b32 v{24+e}, 16, v{vreg(j)+(e>>1)}")
            else: a(f"v_and_b32 v{24+e}, 0xffff0000, v{vreg(j)+(e>>1)}")
        for e in range(8): a(f"v_mul_f32 v{16+e}, v{16+e}, v{24+e}")
        for q in range(4): a(f"v_cvt_pk_bf16_f32 v{vreg(j)+q}, v{16+2*q}, v{17+2*q}")
        a(f"ds_write_b128 v14, v[{vreg(j)}:{vreg(j)+3}] offset:{128*j}")
    a("s_waitcnt lgkmcnt(0)")
    R = 108
    for dh in range(4):
        for z in range(2):
            a(f"ds_read_b64_tr_b16 v[{R+4*dh+2*z}:{R+4*dh+2*z+1}], v5 offset:{(1 - z) * 512 + dh * 32}")
    for dh in range(4):
        a(f"s_mov_b32 s72, {WS_UR0 + dh * 16 * UR_STRIDE}")
        a(f"s_waitcnt lgkmcnt({6-2*dh})")
        a(f"buffer_store_dwordx4 v[{R+4*dh}:{R+4*dh+3}], v6, {R4(WS_)}, s72 offen sc1")
    get_nonce()
    publish(81, 80, FL_UR)
    a("s_barrier")
    a("s_barrier")
    Lcv = a.newlabel("cv")
    a(f"s_branch {Lcv}")
    a.label(Lnopp)
    a("s_lshl_b32 s62, s2, 2")
    a("s_add_u32 s62, s62, s28")
    a("s_mul_i32 s63, s28, 8768")
    a("s_lshl_b32 s67, s62, 12")
    for pc in range(4):
        a(f"s_add_u32 m0, s63, {4160 + 512 + pc*1024}")
        a(f"s_add_u32 s31, s67, {pc*1024}")
        a(f"buffer_load_dwordx4 v1, {R4(SSMK)}, s31 offen lds")
    a(f"s_mov_b32 s31, {WS_SIZE}")
    a("s_mov_b32 exec_hi, 0")
    a("s_add_u32 m0, s63, 4160")
    a("s_nop 0")
    a(f"buffer_load_dwordx4 v1, {R4(WS_)}, s31 offen lds")
    a("s_mov_b64 exec, 15")
    a("s_add_u32 m0, s63, 4096")
    a("s_nop 0")
    a(f"buffer_load_dwordx4 v1, {R4(WS_)}, s31 offen lds")
    a("s_mov_b64 exec, -1")
    a("s_barrier")
    get_nonce()
    Lnu = a.newlabel("nu")
    a("s_cmp_lg_u32 s28, 0")
    a(f"s_cbranch_scc1 {Lnu}")
    a("s_lshr_b32 s64, s2, 4")
    poll(64, FL_UR, 64)
    a.label(Lnu)
    a("s_barrier")
    a(f"s_mul_i32 s66, s62, {UR_STRIDE}")
    a(f"s_add_u32 s66, s66, {WS_UR0}")
    for pc in range(4):
        a(f"s_add_u32 m0, s63, {pc*1024}")
        a(f"s_add_u32 s31, s66, {pc*1024}")
        a(f"buffer_load_dwordx4 v1, {R4(WS_)}, s31 offen sc1 lds")
    a("s_waitcnt vmcnt(0)")
    a.label(Lcv)
    stamp(a, 1)
    a("s_mov_b32 s72, 0")
    a("s_lshr_b32 s60, s28, 2")
    a("s_and_b32 s61, s28, 3")
    Lcr = a.newlabel("cr")
    a.label(Lcr)
    a("s_lshl_b32 s64, s72, 1")
    a("s_add_u32 s64, s64, s60")
    a("s_lshl_b32 s62, s2, 2")
    a("s_add_u32 s62, s62, s64")
    a("s_mul_i32 s63, s64, 8768")
    a("s_mul_i32 s68, s60, 12800")
    a("s_lshl_b32 s31, s64, 6")
    a("s_add_u32 s31, s31, 64")
    a("s_and_b32 s31, s31, 255")
    a("s_add_u32 s68, s68, s31")
    a(f"s_add_u32 s68, s68, {CXB[0]}")
    a("s_lshr_b32 s31, s62, 1")
    a("s_lshl_b32 s31, s31, 2")
    a("s_add_u32 s66, s10, s31")
    a("s_addc_u32 s67, s11, 0")
    a("s_load_dword s70, s[66:67], 0")
    a("v_and_b32 v2, 15, v0")
    a("v_lshrrev_b32 v3, 4, v0")
    a("v_sub_u32 v4, 3, v2")
    a("v_and_b32 v4, 3, v4")
    a("v_cmp_eq_u32 vcc, 0, v4")
    a(f"v_mul_u32_u24 v4, {CP_STRIDE}, v4")
    a(f"s_sub_u32 s31, s68, {CP_STRIDE}")
    a("v_add_u32 v4, s31, v4")
    a("v_mov_b32 v5, s63")
    a("v_cndmask_b32 v4, v4, v5, vcc")
    a("v_lshrrev_b32 v5, 2, v2")
    a("v_lshlrev_b32 v6, 1, v3")
    a("v_sub_u32 v5, v6, v5")
    a("v_add_u32 v5, 3, v5")
    a("v_lshl_add_u32 v4, v5, 3, v4")
    a("v_lshlrev_b32 v5, 5, v2")
    a("v_lshl_add_u32 v5, v3, 4, v5")
    a("s_add_u32 s31, s63, 4192")
    a("v_add_u32 v5, s31, v5")
    a("v_lshlrev_b32 v6, 5, v2")
    a("v_lshl_add_u32 v6, v3, 3, v6")
    a("s_add_u32 s31, s63, 504")
    a("v_sub_u32 v7, s31, v6")
    a("s_lshl_b32 s65, s62, 12")
    a(f"s_add_u32 s65, s65, {WS_YT}")
    a("s_lshl_b32 s31, s61, 10")
    a("v_add_u32 v26, s31, v1")
    a("v_add_u32 v27, s68, v26")
    a("v_add_u32 v26, s63, v26")
    a("v_lshrrev_b32 v28, 1, v0")
    a(f"v_mul_u32_u24 v28, {CP_STRIDE}, v28")
    a("v_and_b32 v29, 1, v0")
    a("v_lshl_add_u32 v28, v29, 4, v28")
    a("s_add_u32 s31, s68, 4096")
    a("v_add_u32 v28, s31, v28")
    for i in range(4): a(f"v_mov_b32 v{60+i}, 0")
    a("s_waitcnt lgkmcnt(0)")
    a("s_barrier")
    a("ds_read_b128 v[32:35], v26")
    a("ds_read_b128 v[36:39], v26 offset:16")
    a("s_mov_b64 exec, 63")
    a("ds_write_b128 v28, v[60:63]")
    a("s_mov_b64 exec, -1")
    a("s_waitcnt lgkmcnt(1)")
    for k in range(4):
        a(f"v_alignbyte_b32 v{48+k}, v{33+k}, v{32+k}, 2")
        a(f"v_mov_b32 v{52+k}, v{33+k}")
        a(f"v_alignbyte_b32 v{56+k}, v{34+k}, v{33+k}, 2")
    for cc in range(3):
        a(f"ds_write_b128 v27, v[{48+4*cc}:{51+4*cc}] offset:{cc*CP_STRIDE}")
    a("s_bitcmp1_b32 s62, 0")
    a("s_cselect_b32 s31, 0, 16")
    a("s_lshl_b32 s70, s70, s31")
    a("s_and_b32 s70, s70, 0xffff0000")
    a("s_waitcnt lgkmcnt(0)")
    a("s_barrier")
    ACC = 8
    def AF(x): return 32 + 4 * x
    def BF(x): return 64 + 4 * x
    Lce = a.newlabel("ce")
    labs = [a.newlabel(f"cp{p}") for p in range(4)]
    for p in range(1, 4):
        a(f"s_cmp_eq_u32 s61, {p}")
        a(f"s_cbranch_scc1 {labs[p]}")
    for p in range(4):
        a.label(labs[p])
        Ts = [p, 7 - p]
        mx = 7 - p
        for m0 in range(8):
            for x in range(mx + 1):
                o = 64 * (63 - (m0 + 8 * x))
                a(f"ds_read_b64 v[{AF(x)}:{AF(x)+1}], v4 offset:{o}")
                a(f"ds_read_b64 v[{AF(x)+2}:{AF(x)+3}], v4 offset:{o+8}")
                a(f"ds_read_b128 v[{BF(x)}:{BF(x)+3}], v5 offset:{512*x+64*(7-m0)}")
            a("s_waitcnt lgkmcnt(0)")
            seq = [(1, x) for x in range(Ts[1] + 1)]
            for x in range(Ts[0] + 1): seq.insert(2 * x + 1, (0, x))
            for ti, x in seq:
                T = Ts[ti]
                c = "0" if (m0 == 0 and x == 0) else f"v[{ACC+4*ti}:{ACC+4*ti+3}]"
                a(f"v_mfma_f32_16x16x32_bf16 v[{ACC+4*ti}:{ACC+4*ti+3}], v[{AF(x)}:{AF(x)+3}], v[{BF(T-x)}:{BF(T-x)+3}], {c}")
        for ti, T in enumerate(Ts):
            a(f"ds_read_b64 v[{96+2*ti}:{97+2*ti}], v7 offset:{512*(7-T)}")
        a("s_waitcnt lgkmcnt(0)")
        a("s_nop 7")
        for ti, T in enumerate(Ts):
            r0, r1 = 96 + 2 * ti, 97 + 2 * ti
            a(f"v_and_b32 v100, 0xffff0000, v{r1}")
            a(f"v_lshlrev_b32 v101, 16, v{r1}")
            a(f"v_and_b32 v102, 0xffff0000, v{r0}")
            a(f"v_lshlrev_b32 v103, 16, v{r0}")
            for e in range(4):
                a(f"v_fma_f32 v{ACC+4*ti+e}, v{100+e}, s70, v{ACC+4*ti+e}")
            a(f"v_cvt_pk_bf16_f32 v{104+2*ti}, v{ACC+4*ti}, v{ACC+4*ti+1}")
            a(f"v_cvt_pk_bf16_f32 v{105+2*ti}, v{ACC+4*ti+2}, v{ACC+4*ti+3}")
            a(f"buffer_store_dwordx2 v[{104+2*ti}:{105+2*ti}], v6, {R4(WS_)}, s65 offen offset:{512*T} sc1")
        if p < 3: a(f"s_branch {Lce}")
    a.label(Lce)
    a("s_add_u32 s72, s72, 1")
    a("s_cmp_lt_u32 s72, 2")
    a(f"s_cbranch_scc1 {Lcr}")
    a("s_waitcnt vmcnt(0)")
    a("s_barrier")
    stamp(a, 2)
    LAH = a.newlabel("ah")
    a("s_cmp_ge_u32 s28, 4")
    a(f"s_cbranch_scc1 {LAH}")

    Lny = a.newlabel("ny")
    a("s_cmp_lg_u32 s28, 0")
    a(f"s_cbranch_scc1 {Lny}")
    a("s_lshr_b32 s60, s2, 5")
    a("s_and_b32 s61, s2, 31")
    publish(60, 61, FL_Y)
    a.label(Lny)
    a("s_lshr_b32 s72, s2, 3")
    a("s_and_b32 s73, s2, 7")
    a("s_lshl_b32 s74, s73, 2")
    a("s_add_u32 s74, s74, s28")
    a("v_lshrrev_b32 v20, 4, v0")
    a("v_and_b32 v10, 15, v0")
    a("v_lshlrev_b32 v11, 11, v10")
    a("v_lshl_add_u32 v11, v20, 4, v11")
    a("v_lshlrev_b32 v12, 12, v10")
    a("v_lshl_add_u32 v12, v20, 4, v12")
    a("s_lshl_b32 s75, s72, 17")
    a("s_lshl_b32 s76, s74, 6")
    a("s_add_u32 s77, s75, s76")
    a("s_lshl_b32 s75, s72, 18")
    a("s_add_u32 s78, s75, s76")
    for ps in range(4):
        a(f"s_add_u32 s31, s77, {ps*32768}")
        a(f"buffer_load_dwordx4 v[{32+4*ps}:{35+4*ps}], v11, {R4(AQ)}, s31 offen")
    a("v_lshrrev_b32 v13, 2, v10")
    a("v_lshl_add_u32 v13, v20, 3, v13")
    a("v_lshlrev_b32 v13, 7, v13")
    a("v_and_b32 v14, 3, v10")
    a("v_lshl_add_u32 v13, v14, 3, v13")
    a("s_lshl_b32 s79, s28, 12")
    a(f"s_add_u32 s79, s79, {PPSCR}")
    a("v_add_u32 v13, s79, v13")
    a("v_add_u32 v15, s79, v1")
    a("v_lshrrev_b32 v4, 3, v0")
    a("v_and_b32 v5, 7, v0")
    a("v_lshlrev_b32 v14, 12, v4")
    a("v_lshl_add_u32 v14, v5, 4, v14")
    a("s_lshl_b32 s75, s74, 17")
    a("s_lshl_b32 s76, s72, 7")
    a("s_add_u32 s75, s75, s76")
    a(f"s_add_u32 s75, s75, {WS_YT}")
    Lnq = a.newlabel("nq")
    a("s_cmp_lg_u32 s28, 0")
    a(f"s_cbranch_scc1 {Lnq}")
    poll(73, FL_Y, 32)
    a.label(Lnq)
    a("s_barrier")
    for n in range(4):
        a(f"s_add_u32 s31, s75, {n*32768}")
        a(f"buffer_load_dwordx4 v[{64+4*n}:{67+4*n}], v14, {R4(WS_)}, s31 offen sc1")
    a("s_waitcnt vmcnt(0)")
    for n in range(4): a(f"ds_write_b128 v15, v[{64+4*n}:{67+4*n}] offset:{n*1024}")
    a("s_waitcnt lgkmcnt(0)")
    for ps in range(4):
        for z in range(2):
            a(f"ds_read_b64_tr_b16 v[{48+4*ps+2*z}:{49+4*ps+2*z}], v13 offset:{z*512+ps*32}")
    for ps in range(4):
        a(f"s_waitcnt lgkmcnt({6-2*ps})")
        for dw in range(4):
            qr, yr = 32 + 4 * ps + dw, 48 + 4 * ps + dw
            a(f"v_lshlrev_b32 v16, 16, v{qr}")
            a(f"v_and_b32 v17, 0xffff0000, v{qr}")
            a(f"v_lshlrev_b32 v18, 16, v{yr}")
            a(f"v_and_b32 v19, 0xffff0000, v{yr}")
            a("v_mul_f32 v16, v16, v18")
            a("v_mul_f32 v17, v17, v19")
            a(f"v_cvt_pk_bf16_f32 v{80+4*ps+dw}, v16, v17")
        a(f"s_add_u32 s31, s78, {ps*65536}")
        a(f"buffer_store_dwordx4 v[{80+4*ps}:{83+4*ps}], v12, {R4(OUT)}, s31 offen")
    stamp(a, 3)
    a("v_lshrrev_b32 v2, 4, v0")
    a("v_xor_b32 v2, v2, v0")
    a("v_and_b32 v2, 1, v2")
    a("v_cmp_eq_u32 vcc, 0, v2")
    a("v_mov_b32 v3, 0x3f803f80")
    a("s_nop 1")
    for i in range(4): a(f"v_cndmask_b32 v{ONES+i}, 0, v3, vcc")
    a("s_mov_b32 s60, 0")
    Lhalf = a.newlabel("half")
    a.label(Lhalf)
    a("s_lshl_b32 s29, s6, 1")
    a("s_add_u32 s29, s29, s60")
    a("s_lshl_b32 s31, s28, 11")
    a(f"s_add_u32 s31, s31, {QOFF}")
    a("v_add_u32 v2, s31, v1")
    a("v_lshlrev_b32 v3, 2, v0")
    a(f"v_add_u32 v3, {KMOFF}, v3")
    a("s_barrier")
    a("s_barrier")
    a(f"ds_read_b128 v[{Q}:{Q+3}], v2")
    a(f"ds_read_b128 v[{Q+4}:{Q+7}], v2 offset:1024")
    a("ds_read_b32 v6, v3")
    a("s_waitcnt lgkmcnt(0)")
    for i in range(8):
        c = "0" if i == 0 else "v4"
        a(f"v_dot2_f32_bf16 v4, v{Q+i}, v{Q+i}, {c}")
    for dpp in ("quad_perm:[1,0,3,2]", "quad_perm:[2,3,0,1]", "row_half_mirror", "row_mirror"):
        a("s_nop 1")
        a(f"v_max_f32_dpp v6, v6, v6 {dpp} row_mask:0xf bank_mask:0xf")
    a("s_nop 1")
    a("v_mov_b32 v7, v6")
    a("v_mov_b32 v5, v4")
    a("s_nop 1")
    a("v_permlane16_swap_b32 v7, v6")
    a("v_permlane32_swap_b32 v5, v4")
    a("s_nop 1")
    a("v_max_f32 v6, v6, v7")
    a("v_add_f32 v4, v4, v5")
    a("v_mov_b32 v7, v6")
    a("s_nop 1")
    a("v_permlane32_swap_b32 v7, v6")
    a("s_nop 1")
    a("v_max_f32 v6, v6, v7")
    a("v_mul_f32 v4, v6, v4")
    a("v_sqrt_f32 v4, v4")
    a("s_nop 0")
    a("v_sub_f32 v4, 0, v4")
    a("s_mov_b32 s7, 0")
    Lgo = a.newlabel("go"); Lrestart = a.newlabel("restart")
    a(f"s_branch {Lgo}")
    a.label(Lrestart)
    a("s_barrier")
    a.label(Lgo)
    for i in range(16): a(f"v_mov_b32 v{CN+i}, v4")
    for i in range(16): a(f"v_mov_b32 v{O+i}, 0")
    for i in range(4): a(f"v_mov_b32 v{L+i}, 0")
    for i in range(4, 8): a(f"v_mov_b32 v{P+i}, 0")
    for i in range(4, 8): a(f"v_mov_b32 v{VF[1]+i}, 0")
    a("v_mov_b32 v2, v1")
    a("v_add_u32 v3, 16384, v1")
    def kread(buf, areg, tile):
        return [f"ds_read_b128 v[{KF[buf]}:{KF[buf]+3}], v{areg} offset:{tile*2048}",
                f"ds_read_b128 v[{KF[buf]+4}:{KF[buf]+7}], v{areg} offset:{tile*2048+1024}"]
    def vread(buf, areg, tile):
        return [f"ds_read_b128 v[{VF[buf]}:{VF[buf]+3}], v{areg} offset:{8192+tile*2048}",
                f"ds_read_b128 v[{VF[buf]+4}:{VF[buf]+7}], v{areg} offset:{8192+tile*2048+1024}"]
    def qk(sb, kb, half):
        c = f"v[{CN}:{CN+15}]" if half == 0 else f"v[{S[sb]}:{S[sb]+15}]"
        return f"v_mfma_f32_32x32x16_bf16 v[{S[sb]}:{S[sb]+15}], v[{KF[kb]+4*half}:{KF[kb]+4*half+3}], v[{Q+4*half}:{Q+4*half+3}], {c}"
    def pv(vb, half):
        return f"v_mfma_f32_32x32x16_bf16 v[{O}:{O+15}], v[{VF[vb]+4*half}:{VF[vb]+4*half+3}], v[{P+4*half}:{P+4*half+3}], v[{O}:{O+15}]"
    def lsum(half):
        return f"v_mfma_f32_16x16x32_bf16 v[{L}:{L+3}], v[{ONES}:{ONES+3}], v[{P+4*half}:{P+4*half+3}], v[{L}:{L+3}]"
    for x in kread(0, 2, 0): a(x)
    for x in kread(1, 2, 1): a(x)
    for x in vread(0, 2, 0): a(x)
    a("s_waitcnt lgkmcnt(4)")
    a(qk(0, 0, 0)); a(qk(0, 0, 1))
    a("s_mov_b32 s8, 0")
    a("s_nop 11")
    Lloop = a.newlabel("loop")
    a.label(Lloop)
    for tl in range(4):
        sb = tl & 1; nb_ = sb ^ 1
        def ex(i): return f"v_exp_f32 v{S[sb]+i}, v{S[sb]+i}"
        def cv(i): return f"v_cvt_pk_bf16_f32 v{P+i}, v{S[sb]+2*i}, v{S[sb]+2*i+1}"
        a("s_waitcnt lgkmcnt(2)")
        a(qk(nb_, nb_, 0))
        for i in range(0, 4): a(ex(i))
        a(qk(nb_, nb_, 1))
        for i in range(4, 6): a(ex(i))
        if tl == 2: a("s_barrier")
        kr = kread(sb, 2, tl + 2) if tl < 2 else kread(sb, 3, tl - 2)
        for x in kr: a(x)
        for i in range(6, 8): a(ex(i))
        a(pv(nb_, 1))
        for i in range(0, 4): a(cv(i))
        a(ex(8))
        a(lsum(1))
        for i in range(9, 12): a(ex(i))
        a("s_waitcnt lgkmcnt(2)")
        a(pv(sb, 0))
        vr_ = vread(nb_, 2, tl + 1) if tl < 3 else vread(nb_, 3, 0)
        for x in vr_: a(x)
        for i in range(12, 16): a(ex(i))
        a(lsum(0))
        if tl == 3:
            a("v_mov_b32 v2, v3")
            a("v_add_u32 v3, 16384, v3")
            a("v_and_b32 v3, 0xffff, v3")
            a("s_add_u32 s8, s8, 1")
            a("s_cmp_lt_u32 s8, 16")
        for i in range(4, 8): a(cv(i))
    a(f"s_cbranch_scc1 {Lloop}")
    a("s_nop 1")
    a(pv(1, 1))
    a(lsum(1))
    a("s_waitcnt lgkmcnt(0)")
    a("s_nop 15")
    a("v_and_b32 v5, 16, v0")
    a("v_cmp_ne_u32 vcc, 0, v5")
    a("s_nop 1")
    a(f"v_cndmask_b32 v5, v{L}, v{L+1}, vcc")
    Lok = a.newlabel("ok")
    a("s_cmp_lg_u32 s7, 0")
    a(f"s_cbranch_scc1 {Lok}")
    a(f"v_mov_b32 v6, {f32bits(2.0**-60)}")
    a("v_cmp_nge_f32 vcc, v5, v6")
    Lnf = a.newlabel("nf")
    a("s_cmp_eq_u64 vcc, 0")
    a(f"s_cbranch_scc1 {Lnf}")
    a(f"v_mov_b32 v6, {FLAG_OFF}")
    a("v_mov_b32 v7, 1")
    a("ds_write_b32 v6, v7")
    a.label(Lnf)
    a("s_waitcnt lgkmcnt(0)")
    a("s_barrier")
    a(f"v_mov_b32 v6, {FLAG_OFF}")
    a("ds_read_b32 v7, v6")
    a("s_waitcnt lgkmcnt(0)")
    a("v_readfirstlane_b32 s31, v7")
    a("s_nop 3")
    a("s_cmp_eq_u32 s31, 0")
    a(f"s_cbranch_scc1 {Lok}")
    a("s_mov_b32 s7, 1")
    a("v_mov_b32 v4, 0xff800000")
    a("s_lshl_b32 s31, s29, 17")
    a(f"s_add_u32 s31, s31, {WS_K}")
    a("s_mov_b32 s8, 0")
    Lfb = a.newlabel("fb")
    a.label(Lfb)
    a(f"buffer_load_dwordx4 v[{KF[0]}:{KF[0]+3}], v1, {R4(WS_)}, s31 offen sc1")
    a(f"buffer_load_dwordx4 v[{KF[0]+4}:{KF[0]+7}], v1, {R4(WS_)}, s31 offen offset:1024 sc1")
    a("s_waitcnt vmcnt(0)")
    a(f"v_mfma_f32_32x32x16_bf16 v[{S[0]}:{S[0]+15}], v[{KF[0]}:{KF[0]+3}], v[{Q}:{Q+3}], 0")
    a(f"v_mfma_f32_32x32x16_bf16 v[{S[0]}:{S[0]+15}], v[{KF[0]+4}:{KF[0]+7}], v[{Q+4}:{Q+7}], v[{S[0]}:{S[0]+15}]")
    a("s_nop 15")
    for i in range(8): a(f"v_max3_f32 v4, v4, v{S[0]+2*i}, v{S[0]+2*i+1}")
    a("s_add_u32 s31, s31, 2048")
    a("s_add_u32 s8, s8, 1")
    a("s_cmp_lt_u32 s8, 64")
    a(f"s_cbranch_scc1 {Lfb}")
    a("v_mov_b32 v5, v4")
    a("s_nop 1")
    a("v_permlane32_swap_b32 v5, v4")
    a("s_nop 1")
    a("v_max_f32 v4, v4, v5")
    a("v_sub_f32 v4, 0, v4")
    a(f"s_branch {Lrestart}")
    a.label(Lok)
    a("v_rcp_f32 v5, v5")
    a("s_nop 0")
    for i in range(16): a(f"v_mul_f32 v{O+i}, v{O+i}, v5")
    for i in range(8): a(f"v_cvt_pk_bf16_f32 v{S[0]+i}, v{O+2*i}, v{O+2*i+1}")
    a("s_lshl_b32 s31, s30, 2")
    a("s_add_u32 s31, s31, s28")
    a("s_lshl_b32 s31, s31, 5")
    a("s_add_u32 s31, s31, s29")
    a("s_lshl_b32 s31, s31, 11")
    a(f"s_add_u32 s31, s31, {WS_O}")
    a(f"buffer_store_dwordx4 v[{S[0]}:{S[0]+3}], v1, {R4(WS_)}, s31 offen sc1")
    a(f"buffer_store_dwordx4 v[{S[0]+4}:{S[0]+7}], v1, {R4(WS_)}, s31 offen offset:1024 sc1")
    a("s_waitcnt vmcnt(0)")
    a("s_barrier")
    Lno = a.newlabel("no")
    a("s_cmp_lg_u32 s28, 0")
    a(f"s_cbranch_scc1 {Lno}")
    publish(30, 29, FL_O)
    a.label(Lno)
    a("s_add_u32 s60, s60, 1")
    a("s_cmp_lt_u32 s60, 2")
    if kg.PROF:
        Lx = a.newlabel("x")
        a(f"s_cbranch_scc0 {Lx}")
        stamp(a, 5)
        a(f"s_branch {Lhalf}")
        a.label(Lx)
    else:
        a(f"s_cbranch_scc1 {Lhalf}")
    endp(a)

    a.label(LAH)
    a("s_sub_u32 s28, s28, 4")
    a("s_mov_b32 s60, 0")
    a("s_barrier")
    Lhh = a.newlabel("hh")
    a.label(Lhh)
    a("s_lshl_b32 s29, s6, 1")
    a("s_add_u32 s29, s29, s60")
    Lnk = a.newlabel("nk")
    a("s_cmp_lg_u32 s28, 0")
    a(f"s_cbranch_scc1 {Lnk}")
    poll(29, FL_QKV, 64)
    a.label(Lnk)
    a("s_barrier")
    a("s_lshl_b32 s62, s29, 17")
    a("s_lshl_b32 s61, s28, 11")
    a("s_add_u32 s62, s62, s61")
    a("s_lshl_b32 s63, s29, 6")
    a("s_lshl_b32 s31, s30, 2")
    a("s_add_u32 s63, s63, s31")
    a("s_add_u32 s63, s63, s28")
    a("s_lshl_b32 s63, s63, 11")
    for i in range(2):
        a(f"s_add_u32 m0, s61, {QOFF + i*1024}")
        a(f"s_add_u32 s31, s63, {WS_Q + i*1024}")
        a(f"buffer_load_dwordx4 v1, {R4(WS_)}, s31 offen sc1 lds")
    a("s_lshl_b32 s31, s29, 8")
    a(f"s_add_u32 s31, s31, {WS_KM2}")
    a(f"s_mov_b32 m0, {KMOFF}")
    a("s_mov_b64 exec, 0xffff")
    a(f"buffer_load_dwordx4 v1, {R4(WS_)}, s31 offen sc1 lds")
    a("s_mov_b64 exec, -1")
    a("s_mov_b32 s7, 0")
    Lp2 = a.newlabel("pass")
    a.label(Lp2)
    a("s_mov_b32 s8, 0")
    def issue():
        a("s_and_b32 s64, s8, 3")
        a("s_lshl_b32 s64, s64, 14")
        a("s_add_u32 s64, s64, s61")
        a("s_lshl_b32 s65, s8, 13")
        a("s_add_u32 s65, s65, s62")
        for kv, base in ((0, WS_K), (1, WS_V)):
            for i in range(2):
                a(f"s_add_u32 m0, s64, {kv*8192 + i*1024}")
                a(f"s_add_u32 s31, s65, {base + i*1024}")
                a(f"buffer_load_dwordx4 v1, {R4(WS_)}, s31 offen sc1 lds")
        a("s_add_u32 s8, s8, 1")
    issue(); issue(); issue()
    a("s_waitcnt vmcnt(8)")
    a("s_barrier")
    stamp(a, 4)
    a("s_waitcnt vmcnt(4)")
    Lhl = a.newlabel("hl")
    a.label(Lhl)
    a("s_barrier")
    issue()
    a("s_waitcnt vmcnt(4)")
    a("s_cmp_lt_u32 s8, 16")
    a(f"s_cbranch_scc1 {Lhl}")
    a("s_barrier")
    a("s_waitcnt vmcnt(0)")
    a(f"v_mov_b32 v6, {FLAG_OFF}")
    a("v_mov_b32 v7, 0")
    a("ds_write_b32 v6, v7")
    a("s_waitcnt lgkmcnt(0)")
    a("s_barrier")
    a("s_barrier")
    Lhd = a.newlabel("hd")
    a("s_cmp_lg_u32 s7, 0")
    a(f"s_cbranch_scc1 {Lhd}")
    a("s_barrier")
    a(f"v_mov_b32 v6, {FLAG_OFF}")
    a("ds_read_b32 v7, v6")
    a("s_waitcnt lgkmcnt(0)")
    a("v_readfirstlane_b32 s31, v7")
    a("s_nop 3")
    a("s_cmp_eq_u32 s31, 0")
    a(f"s_cbranch_scc1 {Lhd}")
    a("s_mov_b32 s7, 1")
    a(f"s_branch {Lp2}")
    a.label(Lhd)
    a("s_barrier")
    a("s_add_u32 s60, s60, 1")
    a("s_cmp_lt_u32 s60, 2")
    a(f"s_cbranch_scc1 {Lhh}")
    endp(a)
```

```python
import sys
from common import *
import k1
import common
HEADER = open("concat_heads__ssm_conv_h3__softmax_full_mha__prompt.s.ref").read().split("; Override launch")[0]
def build(which, path):
    a = Asm()
    launches = []
    descs = []
    if "k1" in which:
        descs.append(k1.gen_k1(a)); launches.append(f"; @launch kernel=k1_kernel grid=(256,1,1) block=(512,1,1) lds={k1.K1_LDS}")
    if "k2" in which:
        import k2
        descs.append(k2.gen_k2(a)); launches.append(f"; @launch kernel=k2_kernel grid=(256,1,1) block=({k2.K2_BLOCK},1,1) lds={k2.K2_LDS}")
    if "k3" in which:
        import k3
        descs.append(k3.gen_k3(a)); launches.append(f"; @launch kernel=k3_kernel grid=(256,1,1) block=(512,1,1) lds={k3.K3_LDS}")
    if "kf" in which:
        import kf
        if "single" in which:
            descs.append(kf.gen_kf(a, "concat_heads__ssm_conv_h3__softmax_full_mha__prompt_kernel")); launches.append(f"; @launch grid=(256,1,1) block=({kf.KF_BLOCK},1,1) lds={kf.KF_LDS}")
        else:
            descs.append(kf.gen_kf(a)); launches.append(f"; @launch kernel=kf_kernel grid=(256,1,1) block=({kf.KF_BLOCK},1,1) lds={kf.KF_LDS}")
    if "kg" in which:
        import kg
        kg.PROF = common.PROF
        descs.append(kg.gen_kg(a)); launches.append(f"; @launch kernel=kg_kernel grid=(512,1,1) block=({kg.KG_BLOCK},1,1) lds={kg.KG_LDS}")
    txt = HEADER + "\n".join(launches) + "\n" + '.amdgcn_target "amdgcn-amd-amdhsa--gfx950"\n.text\n' + a.text() + '.section .rodata,"a"\n' + "".join(descs)
    open(path, "w").write(txt)
if __name__ == "__main__":
    import common
    if len(sys.argv) > 3 and sys.argv[3] in ("prof", "dbg"): common.PROF = True
    if len(sys.argv) > 3 and sys.argv[3] == "dbg": common.DBGOUT = True
    build(sys.argv[1].split(","), sys.argv[2])
```

```python
import struct, os
from common import *
import common
def f32bits(x): return struct.unpack("<I", struct.pack("<f", x))[0]
VAR = os.environ.get('KFVAR', '')
QSCALE = 1.4426950408889634 / (32 ** 0.5)

KF_LDS = 163840
KF_BLOCK = 768
SLOT = 40960
PPSCR = 147456
CONV0 = 65536
CP_STRIDE = 4160
H_OFF = 4 * CP_STRIDE
CH_BYTES = H_OFF + 4608
CPB = [122880 + 8768 * c for c in range(4)]
HB = [122880 + 8768 * c + 4160 for c in range(4)]
CXB = [65536 + 12608 * c + 64 for c in range(4)]
FLAG_OFF = 160768
QOFF = 49152
KMOFF = FLAG_OFF + 64
def WCH(c): return CONV0 + c * 16384 if c < 5 else (c - 5) * 16384
FL_O, FL_Y, FL_UR, FL_QKV = 0, 8, 16, 32
PPB = int(os.environ.get('KFPPB', '0'))
PUBM = int(os.environ.get('KFPUBM', '2'))

Q = 8; CN = 16; O = 32; L = 48; ONES = 52
S = [64, 80]; P = 96; KF = [112, 120]; VF = [128, 136]
WS_, SSMK, WO, AQ, DBG, OUT, XS, WQ, AK, AV, SH = 12, 16, 20, 24, 32, 36, 40, 44, 48, 52, 56
def R4(b): return f"s[{b}:{b+3}]"

def gen_kf(a, name="kf_kernel"):
    common.PV = 166
    kernel_begin(a, name)
    Lend = a.newlabel("kfend")
    a("s_cmp_ge_u32 s2, 256")
    a(f"s_cbranch_scc1 {Lend}")
    a("s_load_dwordx16 s[60:75], s[0:1], 0")
    a("s_load_dwordx8 s[76:83], s[0:1], 64")
    a("v_lshrrev_b32 v1, 6, v0")
    a("s_nop 0")
    a("v_readfirstlane_b32 s28, v1")
    a("v_and_b32 v0, 63, v0")
    common.prof_begin(a)
    a("s_and_b32 s31, s2, 7")
    a("s_lshr_b32 s8, s2, 3")
    a("s_lshl_b32 s29, s31, 2")
    a("s_lshr_b32 s9, s8, 3")
    a("s_add_u32 s29, s29, s9")
    a("s_and_b32 s30, s8, 7")
    a("s_and_b32 s3, s31, 3")
    a("s_lshl_b32 s3, s3, 2")
    a("s_and_b32 s9, s8, 3")
    a("s_add_u32 s3, s3, s9")
    a("s_lshr_b32 s4, s31, 2")
    a("s_lshl_b32 s4, s4, 3")
    a("s_lshr_b32 s9, s8, 2")
    a("s_add_u32 s4, s4, s9")
    a("s_and_b32 s5, s31, 1")
    a("s_lshl_b32 s5, s5, 3")
    a("s_and_b32 s9, s8, 7")
    a("s_add_u32 s5, s5, s9")
    a("s_lshr_b32 s6, s31, 1")
    a("s_lshl_b32 s6, s6, 2")
    a("s_lshr_b32 s9, s8, 3")
    a("s_add_u32 s6, s6, s9")
    a("v_lshlrev_b32 v1, 4, v0")
    a("s_waitcnt lgkmcnt(0)")
    srd(a, WS_, 82, WS_SIZE)
    srd(a, SSMK, 68, 1024 * 2048 * 2)
    srd(a, WO, 76, 1024 * 1024 * 2)
    srd(a, AQ, 60, 2048 * 1024 * 2)
    srd(a, DBG, 80, 256)
    srd(a, OUT, 78, 2048 * 2048 * 2)
    srd(a, XS, 72, 2048 * 1024 * 2)
    srd(a, WQ, 74, 1024 * 3072 * 2)
    srd(a, AK, 62, 2048 * 1024 * 2)
    srd(a, AV, 64, 2048 * 1024 * 2)
    srd(a, SH, 66, 1024 * 4 * 2)
    a("s_mov_b32 s10, s70")
    a("s_mov_b32 s11, s71")

    def get_nonce(v=2):
        Ln = a.newlabel("tag"); Lnd = a.newlabel("tagd")
        a(f"v_mov_b32 v{v}, 0")
        a("s_mov_b32 s95, 0")
        a.label(Ln)
        a(f"buffer_load_dword v{v+1}, v{v}, {R4(DBG)}, 0 offen sc1")
        a("s_add_u32 s95, s95, 1")
        a("s_waitcnt vmcnt(0)")
        a(f"v_readfirstlane_b32 s9, v{v+1}")
        a("s_nop 3")
        a("s_cmp_lg_u32 s9, 0")
        a(f"s_cbranch_scc1 {Lnd}")
        a("s_sleep 4")
        a("s_cmp_lt_u32 s95, 0x400000")
        a(f"s_cbranch_scc1 {Ln}")
        a.label(Lnd)
    def publish(line_sreg, entry_sreg, base, v=8):
        a(f"s_lshl_b32 s31, s{line_sreg}, 8")
        a(f"s_lshl_b32 s95, s{entry_sreg}, 2")
        a("s_add_u32 s31, s31, s95")
        a(f"s_add_u32 s31, s31, {WS_FLAG + base*256}")
        a(f"v_mov_b32 v{v}, 0")
        a(f"v_mov_b32 v{v+1}, s9")
        a("s_mov_b64 exec, 1")
        a(f"buffer_store_dword v{v+1}, v{v}, {R4(WS_)}, s31 offen sc1")
        a("s_mov_b64 exec, -1")
    def poll(line_sreg, base, n, v=8):
        Lp = a.newlabel("poll"); Lpd = a.newlabel("polld")
        a(f"s_lshl_b32 s94, s{line_sreg}, 8")
        a(f"s_add_u32 s94, s94, {WS_FLAG + base*256}")
        a(f"v_and_b32 v{v}, {n-1}, v0")
        a(f"v_lshlrev_b32 v{v}, 2, v{v}")
        a("s_mov_b32 s95, 0")
        a.label(Lp)
        a(f"buffer_load_dword v{v+1}, v{v}, {R4(WS_)}, s94 offen sc1")
        a("s_add_u32 s95, s95, 1")
        a("s_waitcnt vmcnt(0)")
        a(f"v_cmp_ne_u32 vcc, s9, v{v+1}")
        a("s_cmp_eq_u64 vcc, 0")
        a(f"s_cbranch_scc1 {Lpd}")
        a("s_sleep 4")
        a("s_cmp_lt_u32 s95, 0x400000")
        a(f"s_cbranch_scc1 {Lp}")
        a.label(Lpd)

    LC = a.newlabel("roleC"); LD = a.newlabel("roleD"); LP = a.newlabel("roleP"); LH = a.newlabel("roleH")
    Lcdma = a.newlabel("convdma"); Lconv = a.newlabel("conv")
    a("s_cmp_lt_u32 s28, 4")
    a(f"s_cbranch_scc1 {LC}")
    a("s_cmp_lt_u32 s28, 6")
    a(f"s_cbranch_scc1 {LD}")
    a("s_cmp_lt_u32 s28, 8")
    a(f"s_cbranch_scc1 {LP}")
    a(f"s_branch {LH}")

    a.label(LD)
    a("s_sub_u32 s60, s28, 4")
    a("v_lshrrev_b32 v4, 3, v0")
    a("v_and_b32 v5, 7, v0")
    a("v_lshrrev_b32 v6, 1, v4")
    a("v_xor_b32 v7, v5, v6")
    a("v_lshlrev_b32 v7, 4, v7")
    a("v_lshl_add_u32 v10, v4, 11, v7")
    a("v_xor_b32 v11, 64, v10")
    a("v_and_b32 v6, 1, v6")
    a("v_lshlrev_b32 v6, 2, v6")
    a("v_xor_b32 v7, v5, v6")
    a("v_lshlrev_b32 v7, 4, v7")
    a("v_mul_u32_u24 v12, 6144, v4")
    a("v_add_u32 v12, v12, v7")
    a("s_lshl_b32 s31, s5, 18")
    a("s_lshl_b32 s61, s60, 17")
    a("s_add_u32 s61, s61, s31")
    a("s_lshl_b32 s62, s6, 7")
    a("s_lshl_b32 s70, s60, 13")
    a("s_mul_i32 s71, s60, 12288")
    a("s_add_u32 s71, s71, 16384")
    a("s_mov_b32 s72, 0")
    a("s_mov_b32 s73, 0")
    Ld1 = a.newlabel("d1")
    a("s_cmp_eq_u32 s60, 1")
    a(f"s_cbranch_scc1 {Ld1}")
    for lw in range(2):
        if lw == 1: a.label(Ld1)
        def issue_stage():
            a("s_lshl_b32 s75, s72, 7")
            a("s_add_u32 s75, s75, s61")
            a(f"s_mul_i32 s76, s72, {64*6144}")
            a("s_add_u32 s76, s76, s62")
            a("s_add_u32 s77, s70, s73")
            a("s_add_u32 s78, s71, s73")
            for j in range(8):
                a(f"s_add_u32 m0, s77, {j*1024}")
                a(f"s_add_u32 s31, s75, {j*16384}")
                a(f"buffer_load_dwordx4 v{10 + (j & 1)}, {R4(XS)}, s31 offen lds")
            for j in range(12):
                i = 12 * lw + j
                a(f"s_add_u32 m0, s78, {j*1024}")
                a(f"s_add_u32 s31, s76, {(i & 7)*49152 + (i >> 3)*2048}")
                a(f"buffer_load_dwordx4 v12, {R4(WQ)}, s31 offen lds")
            a("s_add_u32 s72, s72, 1")
            a("s_cmp_eq_u32 s73, 0")
            a(f"s_cselect_b32 s73, {3*SLOT}, s73")
            a(f"s_sub_u32 s73, s73, {SLOT}")
        issue_stage()
        issue_stage()
        a("s_waitcnt vmcnt(20)")
        a("s_barrier")
        a("s_mov_b32 s79, 0")
        Lll = a.newlabel("dl")
        a.label(Lll)
        issue_stage()
        a("s_waitcnt vmcnt(20)")
        a("s_barrier")
        a("s_add_u32 s79, s79, 1")
        a("s_cmp_lt_u32 s79, 14")
        a(f"s_cbranch_scc1 {Lll}")
        a(f"s_branch {Lcdma}")

    a.label(LP)
    Lnt = a.newlabel("notag")
    a("s_lshl_b32 s31, s2, 4")
    a("s_add_u32 s31, s31, s28")
    a("s_cmp_lg_u32 s31, 6")
    a(f"s_cbranch_scc1 {Lnt}")
    a("s_memrealtime s[60:61]")
    a("s_waitcnt lgkmcnt(0)")
    a("s_or_b32 s60, s60, 1")
    a("v_mov_b32 v2, s60")
    a("v_mov_b32 v4, 0")
    a("s_mov_b64 exec, 1")
    a(f"buffer_store_dword v2, v4, {R4(DBG)}, 0 offen sc1")
    a("s_mov_b64 exec, -1")
    a.label(Lnt)
    a("s_lshr_b32 s8, s2, 3")
    a("v_lshrrev_b32 v6, 1, v0")
    a("v_lshlrev_b32 v6, 11, v6")
    a("v_and_b32 v7, 1, v0")
    a("v_lshl_add_u32 v6, v7, 7, v6")
    a("s_and_b32 s31, s2, 1")
    a("s_lshl_b32 s31, s31, 10")
    a("s_lshl_b32 s60, s8, 5")
    a("s_add_u32 s31, s31, s60")
    a("s_lshl_b32 s62, s31, 11")
    a("v_lshrrev_b32 v8, 5, v0")
    a(f"v_mul_u32_u24 v8, {64*6144}, v8")
    a("v_bfe_u32 v7, v0, 4, 1")
    a("v_mul_u32_u24 v7, 6144, v7")
    a("v_add_u32 v8, v8, v7")
    a("v_bfe_u32 v7, v0, 2, 2")
    a("v_min_u32 v7, 2, v7")
    a("v_lshl_add_u32 v8, v7, 11, v8")
    a("v_and_b32 v7, 3, v0")
    a("v_lshl_add_u32 v8, v7, 7, v8")
    a("s_lshl_b32 s8, s8, 1")
    a("s_mul_i32 s63, s8, 6144")
    a("s_bfe_u32 s31, s2, 0x20001")
    a("s_lshl_b32 s31, s31, 9")
    a("s_add_u32 s63, s63, s31")
    a("s_cmp_eq_u32 s28, 6")
    a(f"s_cselect_b32 s88, s{XS}, s{WQ}")
    a(f"s_cselect_b32 s89, s{XS+1}, s{WQ+1}")
    a(f"s_cselect_b32 s90, s{XS+2}, s{WQ+2}")
    a("s_mov_b32 s91, 0x00020000")
    a("s_cselect_b32 s62, s62, s63")
    a(f"s_mov_b32 s31, {2*64*6144}")
    a("s_cselect_b32 s65, 256, s31")
    a("s_cselect_b64 vcc, -1, 0")
    a("v_cndmask_b32 v6, v8, v6, vcc")
    def pf():
        a("s_add_u32 s62, s62, s65")
        a("buffer_load_dword v9, v6, s[88:91], s62 offen sc1")
    pf()
    if 'tlb' in VAR:
        a("v_lshlrev_b32 v10, 20, v0")
        for sr_ in (WS_, OUT, WO, AQ, SSMK):
            a(f"buffer_load_dword v9, v10, {R4(sr_)}, 0 offen sc1")
    a(f"s_mul_i32 s66, s2, {4*UR_STRIDE}")
    a(f"s_add_u32 s66, s66, {WS_UR0}")
    a("s_lshl_b32 s67, s2, 14")
    def dma_h(ch):
        for pc in range(4):
            a(f"s_mov_b32 m0, {HB[ch] + 512 + pc*1024}")
            a(f"s_add_u32 s31, s67, {ch*4096 + pc*1024}")
            a(f"buffer_load_dwordx4 v1, {R4(SSMK)}, s31 offen lds")
        a(f"s_mov_b32 s31, {WS_SIZE}")
        a("s_mov_b32 exec_hi, 0")
        a(f"s_mov_b32 m0, {HB[ch]}")
        a("s_nop 0")
        a(f"buffer_load_dwordx4 v1, {R4(WS_)}, s31 offen lds")
        a("s_mov_b64 exec, -1")
    def dma_u(ch):
        for pc in range(4):
            a(f"s_mov_b32 m0, {CPB[ch] + pc*1024}")
            a(f"s_add_u32 s31, s66, {ch*UR_STRIDE + pc*1024}")
            a(f"buffer_load_dwordx4 v1, {R4(WS_)}, s31 offen sc1 lds")
        a(f"s_mov_b32 s31, {WS_SIZE}")
        a("s_mov_b64 exec, 15")
        a(f"s_mov_b32 m0, {CPB[ch] + 4096}")
        a("s_nop 0")
        a(f"buffer_load_dwordx4 v1, {R4(WS_)}, s31 offen lds")
        a("s_mov_b64 exec, -1")
    def by_wave(f6, f7):
        L7 = a.newlabel("w7"); Le = a.newlabel("we")
        a("s_bitcmp1_b32 s28, 0")
        a(f"s_cbranch_scc1 {L7}")
        f6()
        a(f"s_branch {Le}")
        a.label(L7)
        f7()
        a.label(Le)
    UP = int(os.environ.get('KFUP', '11'))
    for s in range(15):
        if s == 4: get_nonce()
        a("s_barrier")
        if s % 2 == 0 and s <= 10: pf()
        if s == 3:
            a("v_lshlrev_b32 v10, 7, v0")
            a("s_and_b32 s31, s28, 1")
            a("s_lshl_b32 s31, s31, 13")
            a("s_add_u32 s31, s31, s67")
            a(f"buffer_load_dword v9, v10, {R4(SSMK)}, s31 offen sc1")
        if s == UP:
            a("s_lshr_b32 s68, s2, 4")
            poll(68, FL_UR, 16)
            by_wave(lambda: (dma_u(0), dma_h(0), dma_u(1), dma_h(1)), lambda: (dma_u(2), dma_h(2), dma_u(3), dma_h(3)))
    a("s_barrier")
    a("s_waitcnt vmcnt(0)")
    a(f"s_branch {Lconv}")
    a.label(Lcdma)
    a("s_waitcnt vmcnt(0)")
    a("s_barrier")
    a(f"s_branch {Lconv}")

    a.label(LC)
    a("s_and_b32 s60, s28, 1")
    a("s_lshr_b32 s61, s28, 1")
    a("v_and_b32 v56, 31, v0")
    a("v_lshrrev_b32 v2, 5, v0")
    a("v_lshrrev_b32 v3, 1, v56")
    a("v_and_b32 v3, 7, v3")
    a("s_lshl_b32 s62, s60, 13")
    a("v_lshlrev_b32 v9, 7, v56")
    a("v_add_u32 v9, s62, v9")
    for ks in range(4):
        a(f"v_or_b32 v15, {2*ks}, v2")
        a("v_xor_b32 v15, v15, v3")
        a(f"v_lshl_add_u32 v{4+ks}, v15, 4, v9")
    a("v_and_b32 v56, 15, v0")
    a("v_lshrrev_b32 v3, 2, v56")
    a("v_and_b32 v56, 3, v56")
    a("v_lshrrev_b32 v15, 4, v0")
    a("v_and_b32 v15, 1, v15")
    a("v_lshlrev_b32 v15, 5, v15")
    a("v_lshl_add_u32 v15, v56, 3, v15")
    a("s_lshl_b32 s62, s61, 6")
    a("v_add_u32 v15, s62, v15")
    a("v_lshrrev_b32 v56, 1, v3")
    a("v_and_b32 v56, 1, v56")
    a("v_lshlrev_b32 v56, 6, v56")
    a("v_xor_b32 v15, v15, v56")
    a("v_lshl_add_u32 v3, v2, 3, v3")
    a("v_lshl_add_u32 v8, v3, 7, v15")
    a("v_add_u32 v8, 16384, v8")
    for i in range(4): a(f"v_mov_b32 v{10+i}, v{4+i}")
    a("v_mov_b32 v14, v8")
    for i in range(96): a(f"v_mov_b32 v{64+i}, 0")
    def Xf(b, mt): return 16 + 8 * b + 4 * mt
    def Wf(b, p): return 32 + 12 * b + 4 * p
    def acc(mt, p): return 64 + 16 * (3 * mt + p)
    def reads(ks, b):
        r = []
        for mt in range(2):
            r.append(f"ds_read_b128 v[{Xf(b,mt)}:{Xf(b,mt)+3}], v{10+ks} offset:{mt*4096}")
        for p in range(3):
            for z in range(2):
                r.append(f"ds_read_b64_tr_b16 v[{Wf(b,p)+2*z}:{Wf(b,p)+2*z+1}], v14 offset:{p*8192+ks*2048+z*512}")
        return r
    def mfmas(b):
        r = []
        for mt in range(2):
            for p in range(3):
                A, B = (Wf(b, p), Xf(b, mt)) if p < 2 else (Xf(b, mt), Wf(b, p))
                r.append(f"v_mfma_f32_32x32x16_bf16 v[{acc(mt,p)}:{acc(mt,p)+15}], v[{A}:{A+3}], v[{B}:{B+3}], v[{acc(mt,p)}:{acc(mt,p)+15}]")
        return r
    a("s_mov_b32 s72, 0")
    a("s_mov_b32 s73, 0")
    a("s_barrier")
    common.stamp(a, 1)
    for x in reads(0, 0): a(x)
    Ls = a.newlabel("stage"); Llast = a.newlabel("last")
    a.label(Ls)
    for ks in range(3):
        b = ks & 1
        a("s_waitcnt lgkmcnt(0)")
        m = mfmas(b); r = reads(ks + 1, b ^ 1)
        a(m[0]); [a(x) for x in r[0:4]]
        a(m[1]); [a(x) for x in r[4:8]]
        for x in m[2:]: a(x)
    a("s_waitcnt lgkmcnt(0)")
    a("s_cmp_eq_u32 s72, 15")
    a(f"s_cbranch_scc1 {Llast}")
    a("s_barrier")
    a("s_cmp_eq_u32 s73, 0")
    a(f"s_cselect_b32 s73, {3*SLOT}, s73")
    a(f"s_sub_u32 s73, s73, {SLOT}")
    for i in range(4): a(f"v_add_u32 v{10+i}, s73, v{4+i}")
    a("v_add_u32 v14, s73, v8")
    for x in reads(0, 0): a(x)
    for x in mfmas(1): a(x)
    a("s_add_u32 s72, s72, 1")
    a(f"s_branch {Ls}")
    a.label(Llast)
    for x in mfmas(1): a(x)
    a("v_mov_b32 v56, 0")
    a(f"buffer_load_dword v57, v56, {R4(DBG)}, 0 offen sc1")
    a("s_nop 15")
    common.stamp(a, 2)
    a("s_lshl_b32 s62, s6, 1")
    a("s_add_u32 s62, s62, s61")
    a("s_lshl_b32 s63, s5, 2")
    a("s_lshl_b32 s64, s60, 1")
    a("s_add_u32 s63, s63, s64")
    a("s_lshl_b32 s64, s62, 6")
    a("s_add_u32 s64, s64, s63")
    a("s_lshl_b32 s64, s64, 11")
    a(f"s_mov_b32 s66, {f32bits(QSCALE)}")
    for p in (1, 2, 0):
        for mt in range(2):
            base = acc(mt, p)
            if p == 0:
                for i in range(16): a(f"v_mul_f32 v{base+i}, s66, v{base+i}")
            for i in range(8):
                a(f"v_cvt_pk_bf16_f32 v{base+i}, v{base+2*i}, v{base+2*i+1}")
            a(f"s_add_u32 s65, s64, {[WS_Q, WS_K, WS_V][p] + mt*2048}")
            a(f"buffer_store_dwordx4 v[{base}:{base+3}], v1, {R4(WS_)}, s65 offen sc1")
            a(f"buffer_store_dwordx4 v[{base+4}:{base+7}], v1, {R4(WS_)}, s65 offen offset:1024 sc1")
    for mt in range(2):
        d = acc(mt, 1)
        for i in range(8):
            c = "0" if i == 0 else f"v{16+mt}"
            a(f"v_dot2_f32_bf16 v{16+mt}, v{d+i}, v{d+i}, {c}")
    a("s_nop 3")
    a("v_mov_b32 v18, v16")
    a("v_mov_b32 v19, v17")
    a("s_nop 1")
    a("v_permlane32_swap_b32 v18, v16")
    a("v_permlane32_swap_b32 v19, v17")
    a("s_nop 1")
    a("v_add_f32 v16, v16, v18")
    a("v_add_f32 v17, v17, v19")
    a("v_max_f32 v16, v16, v17")
    for dpp in ("quad_perm:[1,0,3,2]", "quad_perm:[2,3,0,1]", "row_half_mirror", "row_mirror"):
        a("s_nop 1")
        a(f"v_max_f32_dpp v16, v16, v16 {dpp} row_mask:0xf bank_mask:0xf")
    a("s_nop 1")
    a("v_mov_b32 v17, v16")
    a("s_nop 1")
    a("v_permlane16_swap_b32 v17, v16")
    a("s_nop 1")
    a("v_max_f32 v16, v16, v17")
    a("s_lshl_b32 s64, s62, 5")
    a("s_lshl_b32 s65, s5, 1")
    a("s_add_u32 s64, s64, s65")
    a("s_add_u32 s64, s64, s60")
    a("s_lshl_b32 s64, s64, 2")
    a(f"s_add_u32 s64, s64, {WS_KMAX}")
    a("s_mov_b64 exec, 1")
    a(f"buffer_store_dword v16, v56, {R4(WS_)}, s64 offen sc1")
    a("s_mov_b64 exec, -1")
    a("s_mov_b32 s86, s62")
    a("s_lshl_b32 s87, s5, 1")
    a("s_add_u32 s87, s87, s60")
    a("s_waitcnt vmcnt(13)")
    a("v_readfirstlane_b32 s9, v57")

    a.label(Lconv)
    a("s_and_b32 s60, s28, 3")
    a("s_lshr_b32 s61, s28, 2")
    a("s_lshl_b32 s62, s2, 2")
    a("s_add_u32 s62, s62, s60")
    a(f"s_mov_b32 s63, {CPB[0]}")
    a(f"s_mov_b32 s65, {HB[0]}")
    a(f"s_mov_b32 s68, {CXB[0]}")
    for ch in range(1, 4):
        a(f"s_cmp_eq_u32 s60, {ch}")
        a(f"s_cselect_b32 s63, {CPB[ch]}, s63")
        a(f"s_cselect_b32 s65, {HB[ch]}, s65")
        a(f"s_cselect_b32 s68, {CXB[ch]}, s68")
    a("s_lshr_b32 s31, s62, 1")
    a("s_lshl_b32 s31, s31, 2")
    a("s_add_u32 s66, s10, s31")
    a("s_addc_u32 s67, s11, 0")
    a("s_load_dword s70, s[66:67], 0")
    a("v_and_b32 v2, 15, v0")
    a("v_lshrrev_b32 v3, 4, v0")
    a("v_sub_u32 v4, 3, v2")
    a("v_and_b32 v4, 3, v4")
    a("v_cmp_eq_u32 vcc, 0, v4")
    a(f"v_mul_u32_u24 v4, {CP_STRIDE}, v4")
    a(f"s_sub_u32 s31, s68, {CP_STRIDE}")
    a("v_add_u32 v4, s31, v4")
    a("v_mov_b32 v5, s63")
    a("v_cndmask_b32 v4, v4, v5, vcc")
    a("v_lshrrev_b32 v5, 2, v2")
    a("v_lshlrev_b32 v6, 1, v3")
    a("v_sub_u32 v5, v6, v5")
    a("v_add_u32 v5, 3, v5")
    a("v_lshl_add_u32 v4, v5, 3, v4")
    a("v_lshlrev_b32 v5, 5, v2")
    a("v_lshl_add_u32 v5, v3, 4, v5")
    a("s_add_u32 s31, s65, 32")
    a("v_add_u32 v5, s31, v5")
    a("v_lshlrev_b32 v6, 5, v2")
    a("v_lshl_add_u32 v6, v3, 3, v6")
    a("s_add_u32 s31, s63, 504")
    a("v_sub_u32 v7, s31, v6")
    a("s_lshl_b32 s64, s62, 12")
    a(f"s_add_u32 s64, s64, {WS_YT}")
    a("s_waitcnt lgkmcnt(0)")
    a("s_lshl_b32 s31, s61, 11")
    a("v_lshlrev_b32 v26, 5, v0")
    a("v_add_u32 v26, s31, v26")
    a("v_add_u32 v27, s68, v26")
    a("v_add_u32 v26, s63, v26")
    a("s_barrier")
    common.stamp(a, 3)
    for i in range(3): a(f"ds_read_b128 v[{32+4*i}:{35+4*i}], v26 offset:{16*i}")
    a("v_lshrrev_b32 v28, 1, v0")
    a(f"v_mul_u32_u24 v28, {CP_STRIDE}, v28")
    a("v_and_b32 v29, 1, v0")
    a("v_lshl_add_u32 v28, v29, 4, v28")
    a("s_add_u32 s31, s68, 4096")
    a("v_add_u32 v28, s31, v28")
    for i in range(4): a(f"v_mov_b32 v{72+i}, 0")
    a("s_mov_b64 exec, 63")
    a("ds_write_b128 v28, v[72:75]")
    a("s_mov_b64 exec, -1")
    a("s_waitcnt lgkmcnt(1)")
    for k in range(8):
        a(f"v_alignbyte_b32 v{48+k}, v{33+k}, v{32+k}, 2")
        a(f"v_mov_b32 v{56+k}, v{33+k}")
        a(f"v_alignbyte_b32 v{64+k}, v{34+k}, v{33+k}, 2")
    for cc in range(3):
        for j in range(2):
            a(f"ds_write_b128 v27, v[{48+8*cc+4*j}:{51+8*cc+4*j}] offset:{cc*CP_STRIDE + 16*j}")
    a("s_waitcnt lgkmcnt(0)")
    a("s_barrier")
    a("s_bitcmp1_b32 s62, 0")
    a("s_cselect_b32 s31, 0, 16")
    a("s_lshl_b32 s70, s70, s31")
    a("s_and_b32 s70, s70, 0xffff0000")
    ACC = 8
    def AF(b, x): return 32 + 64 * b + 4 * x
    def BF(b, x): return 64 + 64 * b + 4 * x
    Lh1 = a.newlabel("h1"); Lcd = a.newlabel("cdone")
    a("s_cmp_eq_u32 s61, 1")
    a(f"s_cbranch_scc1 {Lh1}")
    for hw in range(2):
        if hw == 1: a.label(Lh1)
        Ts = [0, 3, 4, 7] if hw == 0 else [1, 2, 5, 6]
        mx = max(Ts)
        def rd(m0, b):
            r = []
            for x in range(mx + 1):
                o = 64*(63-(m0+8*x))
                r.append(f"ds_read_b64 v[{AF(b,x)}:{AF(b,x)+1}], v4 offset:{o}")
                r.append(f"ds_read_b64 v[{AF(b,x)+2}:{AF(b,x)+3}], v4 offset:{o+8}")
                r.append(f"ds_read_b128 v[{BF(b,x)}:{BF(b,x)+3}], v5 offset:{512*x+64*(7-m0)}")
            return r
        for x in rd(0, 0): a(x)
        for m0 in range(8):
            b = m0 & 1
            a("s_waitcnt lgkmcnt(0)")
            if hw == 0 and m0 == PUBM:
                a("s_waitcnt vmcnt(0)")
                publish(86, 87, FL_QKV, v=24)
            nxt = rd(m0 + 1, b ^ 1) if m0 < 7 else []
            mf = []
            for ti, T in enumerate(Ts):
                for x in range(T + 1):
                    c = "0" if (m0 == 0 and x == 0) else f"v[{ACC+4*ti}:{ACC+4*ti+3}]"
                    mf.append(f"v_mfma_f32_16x16x32_bf16 v[{ACC+4*ti}:{ACC+4*ti+3}], v[{AF(b,x)}:{AF(b,x)+3}], v[{BF(b,T-x)}:{BF(b,T-x)+3}], {c}")
            k = 0
            for i, m in enumerate(mf):
                a(m)
                for _ in range(2):
                    if k < len(nxt): a(nxt[k]); k += 1
        for ti, T in enumerate(Ts):
            a(f"ds_read_b64 v[{32+2*ti}:{33+2*ti}], v7 offset:{512*(7-T)}")
        a("s_waitcnt lgkmcnt(0)")
        a("s_nop 7")
        for ti, T in enumerate(Ts):
            r0, r1 = 32 + 2 * ti, 33 + 2 * ti
            a(f"v_and_b32 v48, 0xffff0000, v{r1}")
            a(f"v_lshlrev_b32 v49, 16, v{r1}")
            a(f"v_and_b32 v50, 0xffff0000, v{r0}")
            a(f"v_lshlrev_b32 v51, 16, v{r0}")
            for e in range(4):
                a(f"v_fma_f32 v{ACC+4*ti+e}, v{48+e}, s70, v{ACC+4*ti+e}")
            a(f"v_cvt_pk_bf16_f32 v{56+2*ti}, v{ACC+4*ti}, v{ACC+4*ti+1}")
            a(f"v_cvt_pk_bf16_f32 v{57+2*ti}, v{ACC+4*ti+2}, v{ACC+4*ti+3}")
            a(f"buffer_store_dwordx2 v[{56+2*ti}:{57+2*ti}], v6, {R4(WS_)}, s64 offen offset:{512*T} sc1")
        if hw == 0: a(f"s_branch {Lcd}")
    a.label(Lcd)
    a("v_lshrrev_b32 v2, 4, v0")
    a("v_xor_b32 v2, v2, v0")
    a("v_and_b32 v2, 1, v2")
    a("v_cmp_eq_u32 vcc, 0, v2")
    a("v_mov_b32 v3, 0x3f803f80")
    a("s_nop 1")
    for i in range(4): a(f"v_cndmask_b32 v{ONES+i}, 0, v3, vcc")
    a("s_lshl_b32 s31, s28, 11")
    a(f"s_add_u32 s31, s31, {QOFF}")
    a("v_add_u32 v2, s31, v1")
    a("v_and_b32 v3, 31, v0")
    a("v_lshlrev_b32 v3, 2, v3")
    a(f"v_add_u32 v3, {KMOFF}, v3")
    a("s_barrier")
    common.stamp(a, 4)
    a(f"ds_read_b128 v[{Q}:{Q+3}], v2")
    a(f"ds_read_b128 v[{Q+4}:{Q+7}], v2 offset:1024")
    a("ds_read_b32 v6, v3")
    a("s_waitcnt lgkmcnt(0)")
    for i in range(8):
        c = "0" if i == 0 else "v4"
        a(f"v_dot2_f32_bf16 v4, v{Q+i}, v{Q+i}, {c}")
    for dpp in ("quad_perm:[1,0,3,2]", "quad_perm:[2,3,0,1]", "row_half_mirror", "row_mirror"):
        a("s_nop 1")
        a(f"v_max_f32_dpp v6, v6, v6 {dpp} row_mask:0xf bank_mask:0xf")
    a("s_nop 1")
    a("v_mov_b32 v7, v6")
    a("v_mov_b32 v5, v4")
    a("s_nop 1")
    a("v_permlane16_swap_b32 v7, v6")
    a("v_permlane32_swap_b32 v5, v4")
    a("s_nop 1")
    a("v_max_f32 v6, v6, v7")
    a("v_add_f32 v4, v4, v5")
    a("v_mul_f32 v4, v6, v4")
    a("v_sqrt_f32 v4, v4")
    a("s_nop 0")
    a("v_sub_f32 v4, 0, v4")
    a("s_mov_b32 s7, 0")
    if 'prio' in VAR:
        Lpr = a.newlabel("pr")
        a("s_cmp_lt_u32 s28, 4")
        a(f"s_cbranch_scc1 {Lpr}")
        a("s_setprio 1")
        a.label(Lpr)
    if 'prall' in VAR: a("s_setprio 1")
    Lgo = a.newlabel("go"); Lrestart = a.newlabel("restart")
    a(f"s_branch {Lgo}")
    a.label(Lrestart)
    a("s_barrier")
    a.label(Lgo)
    for i in range(16): a(f"v_mov_b32 v{CN+i}, v4")
    for i in range(16): a(f"v_mov_b32 v{O+i}, 0")
    for i in range(4): a(f"v_mov_b32 v{L+i}, 0")
    for i in range(4, 8): a(f"v_mov_b32 v{P+i}, 0")
    for i in range(4, 8): a(f"v_mov_b32 v{VF[1]+i}, 0")
    a("v_mov_b32 v2, v1")
    a("v_add_u32 v3, 16384, v1")
    def kread(buf, areg, tile):
        return [f"ds_read_b128 v[{KF[buf]}:{KF[buf]+3}], v{areg} offset:{tile*2048}",
                f"ds_read_b128 v[{KF[buf]+4}:{KF[buf]+7}], v{areg} offset:{tile*2048+1024}"]
    def vread(buf, areg, tile):
        return [f"ds_read_b128 v[{VF[buf]}:{VF[buf]+3}], v{areg} offset:{8192+tile*2048}",
                f"ds_read_b128 v[{VF[buf]+4}:{VF[buf]+7}], v{areg} offset:{8192+tile*2048+1024}"]
    def qk(sb, kb, half):
        c = f"v[{CN}:{CN+15}]" if half == 0 else f"v[{S[sb]}:{S[sb]+15}]"
        return f"v_mfma_f32_32x32x16_bf16 v[{S[sb]}:{S[sb]+15}], v[{KF[kb]+4*half}:{KF[kb]+4*half+3}], v[{Q+4*half}:{Q+4*half+3}], {c}"
    def pv(vb, half):
        return f"v_mfma_f32_32x32x16_bf16 v[{O}:{O+15}], v[{VF[vb]+4*half}:{VF[vb]+4*half+3}], v[{P+4*half}:{P+4*half+3}], v[{O}:{O+15}]"
    def lsum(half):
        return f"v_mfma_f32_16x16x32_bf16 v[{L}:{L+3}], v[{ONES}:{ONES+3}], v[{P+4*half}:{P+4*half+3}], v[{L}:{L+3}]"
    for x in kread(0, 2, 0): a(x)
    for x in kread(1, 2, 1): a(x)
    for x in vread(0, 2, 0): a(x)
    a("s_waitcnt lgkmcnt(4)")
    a(qk(0, 0, 0)); a(qk(0, 0, 1))
    a("s_mov_b32 s8, 0")
    a("s_waitcnt vmcnt(0)")
    a("s_nop 11")
    Lloop = a.newlabel("loop")
    a.label(Lloop)
    for tl in range(4):
        sb = tl & 1; nb_ = sb ^ 1
        def ex(i): return f"v_exp_f32 v{S[sb]+i}, v{S[sb]+i}"
        def cv(i): return f"v_cvt_pk_bf16_f32 v{P+i}, v{S[sb]+2*i}, v{S[sb]+2*i+1}"
        a("s_waitcnt lgkmcnt(2)")
        a(qk(nb_, nb_, 0))
        for i in range(0, 4): a(ex(i))
        a(qk(nb_, nb_, 1))
        for i in range(4, 6): a(ex(i))
        if tl == 2: a("s_barrier")
        kr = kread(sb, 2, tl + 2) if tl < 2 else kread(sb, 3, tl - 2)
        for x in kr: a(x)
        for i in range(6, 8): a(ex(i))
        a(pv(nb_, 1))
        for i in range(0, 4): a(cv(i))
        a(ex(8))
        a(lsum(1))
        for i in range(9, 12): a(ex(i))
        a("s_waitcnt lgkmcnt(2)")
        a(pv(sb, 0))
        vr_ = vread(nb_, 2, tl + 1) if tl < 3 else vread(nb_, 3, 0)
        for x in vr_: a(x)
        for i in range(12, 16): a(ex(i))
        a(lsum(0))
        if tl == 3:
            a("v_mov_b32 v2, v3")
            a("v_add_u32 v3, 16384, v3")
            a("v_and_b32 v3, 0xffff, v3")
            a("s_add_u32 s8, s8, 1")
            a("s_cmp_lt_u32 s8, 16")
        for i in range(4, 8): a(cv(i))
    a(f"s_cbranch_scc1 {Lloop}")
    a("s_nop 1")
    a(pv(1, 1))
    a(lsum(1))
    a("s_waitcnt lgkmcnt(0)")
    a("s_nop 15")
    common.stamp(a, 5)
    a("v_and_b32 v5, 16, v0")
    a("v_cmp_ne_u32 vcc, 0, v5")
    a("s_nop 1")
    a(f"v_cndmask_b32 v5, v{L}, v{L+1}, vcc")
    Lok = a.newlabel("ok")
    a("s_cmp_lg_u32 s7, 0")
    a(f"s_cbranch_scc1 {Lok}")
    a(f"v_mov_b32 v6, {f32bits(2.0**-60)}")
    a("v_cmp_nge_f32 vcc, v5, v6")
    Lnf = a.newlabel("nf")
    a("s_cmp_eq_u64 vcc, 0")
    a(f"s_cbranch_scc1 {Lnf}")
    a(f"v_mov_b32 v6, {FLAG_OFF}")
    a("v_mov_b32 v7, 1")
    a("ds_write_b32 v6, v7")
    a.label(Lnf)
    a("s_waitcnt lgkmcnt(0)")
    a("s_barrier")
    a(f"v_mov_b32 v6, {FLAG_OFF}")
    a("ds_read_b32 v7, v6")
    a("s_waitcnt lgkmcnt(0)")
    a("v_readfirstlane_b32 s31, v7")
    a("s_nop 3")
    a("s_cmp_eq_u32 s31, 0")
    a(f"s_cbranch_scc1 {Lok}")
    a("s_mov_b32 s7, 1")
    a("v_mov_b32 v4, 0xff800000")
    a("s_lshl_b32 s31, s29, 17")
    a(f"s_add_u32 s31, s31, {WS_K}")
    a("s_mov_b32 s8, 0")
    Lfb = a.newlabel("fb")
    a.label(Lfb)
    a(f"buffer_load_dwordx4 v[{KF[0]}:{KF[0]+3}], v1, {R4(WS_)}, s31 offen sc1")
    a(f"buffer_load_dwordx4 v[{KF[0]+4}:{KF[0]+7}], v1, {R4(WS_)}, s31 offen offset:1024 sc1")
    a("s_waitcnt vmcnt(0)")
    a(f"v_mfma_f32_32x32x16_bf16 v[{S[0]}:{S[0]+15}], v[{KF[0]}:{KF[0]+3}], v[{Q}:{Q+3}], 0")
    a(f"v_mfma_f32_32x32x16_bf16 v[{S[0]}:{S[0]+15}], v[{KF[0]+4}:{KF[0]+7}], v[{Q+4}:{Q+7}], v[{S[0]}:{S[0]+15}]")
    a("s_nop 15")
    for i in range(8): a(f"v_max3_f32 v4, v4, v{S[0]+2*i}, v{S[0]+2*i+1}")
    a("s_add_u32 s31, s31, 2048")
    a("s_add_u32 s8, s8, 1")
    a("s_cmp_lt_u32 s8, 64")
    a(f"s_cbranch_scc1 {Lfb}")
    a("v_mov_b32 v5, v4")
    a("s_nop 1")
    a("v_permlane32_swap_b32 v5, v4")
    a("s_nop 1")
    a("v_max_f32 v4, v4, v5")
    a("v_sub_f32 v4, 0, v4")
    a(f"s_branch {Lrestart}")
    a.label(Lok)
    a("v_rcp_f32 v5, v5")
    a("s_nop 0")
    for i in range(16): a(f"v_mul_f32 v{O+i}, v{O+i}, v5")
    for i in range(8): a(f"v_cvt_pk_bf16_f32 v{P+i}, v{O+2*i}, v{O+2*i+1}")
    a("s_lshl_b32 s31, s30, 3")
    a("s_add_u32 s31, s31, s28")
    a("s_lshl_b32 s31, s31, 5")
    a("s_add_u32 s31, s31, s29")
    a("s_lshl_b32 s31, s31, 11")
    a(f"s_add_u32 s31, s31, {WS_O}")
    a(f"buffer_store_dwordx4 v[{P}:{P+3}], v1, {R4(WS_)}, s31 offen sc1")
    a(f"buffer_store_dwordx4 v[{P+4}:{P+7}], v1, {R4(WS_)}, s31 offen offset:1024 sc1")
    a("s_waitcnt vmcnt(0)")
    a("s_barrier")
    common.stamp(a, 6)
    Lg3 = a.newlabel("g3")
    a("s_cmp_lt_u32 s28, 4")
    a(f"s_cbranch_scc1 {Lg3}")
    common.endpgm(a, 0)
    a.label(Lg3)
    Lnp = a.newlabel("np3")
    a("s_cmp_lg_u32 s28, 0")
    a(f"s_cbranch_scc1 {Lnp}")
    publish(30, 29, FL_O)
    a("s_lshr_b32 s8, s3, 1")
    poll(8, FL_O, 32)
    a.label(Lnp)
    a("s_lshl_b32 s60, s3, 2")
    a("s_add_u32 s60, s60, s28")
    a("s_lshl_b32 s61, s60, 16")
    a(f"s_add_u32 s61, s61, {WS_O}")
    NPF = 24
    def OF(i): return 64 + 4 * (i % NPF)
    def oload(f):
        a(f"s_add_u32 s31, s61, {(f//4)*4096}")
        a(f"buffer_load_dwordx4 v[{OF(f)}:{OF(f)+3}], v1, {R4(WS_)}, s31 offen offset:{(f%4)*1024} sc1")
    a("v_and_b32 v2, 15, v0")
    a("v_lshrrev_b32 v3, 2, v2")
    a("v_and_b32 v2, 3, v2")
    a("v_lshrrev_b32 v4, 4, v0")
    a("v_and_b32 v4, 1, v4")
    a("v_lshlrev_b32 v4, 5, v4")
    a("v_lshl_add_u32 v4, v2, 3, v4")
    a("v_lshrrev_b32 v5, 1, v3")
    a("v_and_b32 v5, 1, v5")
    a("v_lshlrev_b32 v5, 6, v5")
    a("v_xor_b32 v4, v4, v5")
    a("v_lshrrev_b32 v5, 5, v0")
    a("v_lshl_add_u32 v3, v5, 2, v3")
    a("v_lshl_add_u32 v10, v3, 7, v4")
    a("v_xor_b32 v11, 64, v10")
    GA = 32
    for i in range(32): a(f"v_mov_b32 v{GA+i}, 0")
    def WF(b, u): return 16 + 8 * b + 4 * u
    def wread(fl, b):
        r = []
        for u in range(2):
            for z in range(2):
                r.append(f"ds_read_b64_tr_b16 v[{WF(b,u)+2*z}:{WF(b,u)+2*z+1}], v{8+u} offset:{fl*2048+z*1024}")
        return r
    a("s_barrier")
    common.stamp(a, 7)
    for f in range(NPF): oload(f)
    for c in range(8):
        a(f"v_add_u32 v8, {WCH(c)}, v10")
        a(f"v_add_u32 v9, {WCH(c)}, v11")
        for x in wread(0, 0): a(x)
        for fl in range(8):
            f = 8 * c + fl
            b = fl & 1
            if fl < 7:
                for x in wread(fl + 1, b ^ 1): a(x)
                a("s_waitcnt lgkmcnt(4)")
            else:
                a("s_waitcnt lgkmcnt(0)")
            rem = min(NPF - 1, 63 - f)
            a(f"s_waitcnt vmcnt({rem})")
            for u in range(2):
                a(f"v_mfma_f32_32x32x16_bf16 v[{GA+16*u}:{GA+16*u+15}], v[{WF(b,u)}:{WF(b,u)+3}], v[{OF(f)}:{OF(f)+3}], v[{GA+16*u}:{GA+16*u+15}]")
            if f + NPF < 64: oload(f + NPF)
    a("s_nop 15")
    a("v_and_b32 v2, 31, v0")
    a("v_lshlrev_b32 v2, 12, v2")
    a("v_lshl_add_u32 v2, v5, 4, v2")
    a("s_lshl_b32 s62, s60, 17")
    a("s_lshl_b32 s63, s4, 7")
    a("s_add_u32 s62, s62, s63")
    a("s_add_u32 s62, s62, 2048")
    for u in range(2):
        for gp in range(2):
            d = 64 + 8 * u + 4 * gp
            src = GA + 16 * u + 8 * gp
            for i in range(4):
                a(f"v_cvt_pk_bf16_f32 v{d+i}, v{src+2*i}, v{src+2*i+1}")
            a("s_nop 1")
            a(f"v_permlane32_swap_b32 v{d}, v{d+2}")
            a(f"v_permlane32_swap_b32 v{d+1}, v{d+3}")
            a("s_nop 1")
            a(f"buffer_store_dwordx4 v[{d}:{d+3}], v2, {R4(OUT)}, s62 offen offset:{64*u+32*gp}")
    common.endpgm(a, 0)

    a.label(LH)
    a("s_sub_u32 s28, s28, 8")
    def kreg(i): return 64 + 4 * i
    def vreg(j): return 92 + 4 * j
    a("s_lshr_b32 s80, s2, 4")
    a("s_lshl_b32 s80, s80, 2")
    a("s_add_u32 s80, s80, s28")
    a("s_and_b32 s81, s2, 15")
    a("s_lshl_b32 s82, s80, 5")
    a("s_lshl_b32 s83, s81, 6")
    a("v_lshrrev_b32 v11, 3, v0")
    a("v_and_b32 v12, 7, v0")
    a("s_lshl_b32 s84, s83, 3")
    a("v_lshlrev_b32 v13, 6, v12")
    if PPB >= 0: a("s_barrier")
    if PPB >= 1: a("s_barrier")
    for i in range(4):
        a(f"buffer_load_dwordx4 v[{140+4*i}:{143+4*i}], v13, {R4(SH)}, s84 offen offset:{16*i}")
    a("s_lshl_b32 s84, s82, 11")
    a("s_lshl_b32 s85, s83, 1")
    a("s_add_u32 s84, s84, s85")
    a("v_lshlrev_b32 v13, 13, v11")
    a("v_lshl_add_u32 v13, v12, 4, v13")
    a("v_add_u32 v13, s84, v13")
    for i in range(3):
        a(f"v_subrev_u32 v{8+i}, {2048*(3-i)}, v13")
    for i in range(3):
        a(f"buffer_load_dwordx4 v[{kreg(i)}:{kreg(i)+3}], v{8+i}, {R4(AK)}, 0 offen")
    for j in range(4):
        a(f"s_mov_b32 s84, {2048*j}")
        a(f"buffer_load_dwordx4 v[{kreg(3+j)}:{kreg(3+j)+3}], v13, {R4(AK)}, s84 offen")
        a(f"buffer_load_dwordx4 v[{vreg(j)}:{vreg(j)+3}], v13, {R4(AV)}, s84 offen")
    a("s_lshl_b32 s86, s28, 12")
    a(f"s_add_u32 s86, s86, {PPSCR}")
    a("v_lshlrev_b32 v14, 9, v11")
    a("v_lshl_add_u32 v14, v12, 4, v14")
    a("v_add_u32 v14, s86, v14")
    a("v_lshrrev_b32 v11, 4, v0")
    a("v_and_b32 v12, 15, v0")
    a("v_lshrrev_b32 v15, 2, v12")
    a("v_and_b32 v4, 3, v12")
    a("v_lshlrev_b32 v2, 3, v11")
    a("v_add_u32 v2, 3, v2")
    a("v_sub_u32 v2, v2, v15")
    a("v_lshlrev_b32 v2, 7, v2")
    a("v_lshl_add_u32 v2, v4, 3, v2")
    a("v_add_u32 v2, s86, v2")
    a("v_add_u32 v3, s83, v12")
    a(f"v_mul_u32_u24 v3, {UR_STRIDE}, v3")
    a("s_lshl_b32 s85, s82, 1")
    a(f"s_sub_u32 s85, {2*2040}, s85")
    a("v_add_u32 v3, s85, v3")
    a("v_lshlrev_b32 v4, 4, v11")
    a("v_sub_u32 v3, v3, v4")
    for _ in range(3 - PPB): a("s_barrier")
    def unpack(dst, src):
        for e in range(8):
            if e % 2 == 0: a(f"v_lshlrev_b32 v{dst+e}, 16, v{src+(e>>1)}")
            else: a(f"v_and_b32 v{dst+e}, 0xffff0000, v{src+(e>>1)}")
    def KU(i): return [108, 116, 124, 132][i % 4]
    WT = 32
    a("s_waitcnt vmcnt(0)")
    for e in range(8):
        for i in range(4):
            src = 140 + 2 * e + (i >> 1)
            dst = WT + 4 * e + i
            if i % 2 == 0: a(f"v_lshlrev_b32 v{dst}, 16, v{src}")
            else: a(f"v_and_b32 v{dst}, 0xffff0000, v{src}")
    for i in range(3): unpack(KU(i), kreg(i))
    for j in range(4):
        if j == 2: a("s_barrier")
        unpack(KU(j + 3), kreg(j + 3))
        unpack(24, vreg(j))
        for i in (3, 2, 1, 0):
            for e in range(8):
                if i == 3: a(f"v_mul_f32 v{16+e}, v{KU(j)+e}, v{WT+4*e+3}")
                else: a(f"v_fmac_f32 v{16+e}, v{KU(j+3-i)+e}, v{WT+4*e+i}")
        for e in range(8):
            a(f"v_mul_f32 v{16+e}, v{16+e}, v{24+e}")
        for q in range(4):
            a(f"v_cvt_pk_bf16_f32 v{vreg(j)+q}, v{16+2*q}, v{17+2*q}")
    a("s_barrier")
    for j in range(4):
        a(f"ds_write_b128 v14, v[{vreg(j)}:{vreg(j)+3}] offset:{128*j}")
    a("s_waitcnt lgkmcnt(0)")
    R = 64
    for dh in range(4):
        for z in range(2):
            a(f"ds_read_b64_tr_b16 v[{R+4*dh+2*z}:{R+4*dh+2*z+1}], v2 offset:{(1 - z) * 512 + dh * 32}")
    for dh in range(4):
        a(f"s_mov_b32 s85, {WS_UR0 + dh * 16 * UR_STRIDE}")
        a(f"s_waitcnt lgkmcnt({6-2*dh})")
        a(f"buffer_store_dwordx4 v[{R+4*dh}:{R+4*dh+3}], v3, {R4(WS_)}, s85 offen sc1")
    a("v_add_u32 v4, s83, v0")
    a(f"v_mul_u32_u24 v4, {UR_STRIDE}, v4")
    for i in range(4): a(f"v_mov_b32 v{16+i}, 0")
    a("s_cmp_eq_u32 s80, 0")
    a(f"s_mov_b32 s84, {WS_SIZE}")
    a(f"s_cselect_b32 s85, {WS_UR0 + 4096}, s84")
    a(f"buffer_store_dwordx4 v[16:19], v4, {R4(WS_)}, s85 offen sc1")
    a("v_mov_b32 v20, 0")
    a(f"buffer_load_dword v21, v20, {R4(DBG)}, 0 offen sc1")
    a("s_barrier")
    a("s_barrier")
    a("s_waitcnt vmcnt(0)")
    a("v_readfirstlane_b32 s9, v21")
    a("s_barrier")
    Lnu = a.newlabel("nu")
    a("s_cmp_lg_u32 s28, 0")
    a(f"s_cbranch_scc1 {Lnu}")
    a("s_lshr_b32 s84, s2, 4")
    publish(81, 84, FL_UR)
    a.label(Lnu)
    for s in range(9, 16): a("s_barrier")
    a("s_barrier")
    a("s_barrier")
    a(f"v_mov_b32 v2, {FLAG_OFF}")
    a("v_mov_b32 v3, 0")
    a("ds_write_b32 v2, v3")
    poll(29, FL_QKV, 32)
    vm = VM(a)
    a("s_lshl_b32 s60, s29, 17")
    a("s_lshl_b32 s61, s28, 11")
    a("s_add_u32 s60, s60, s61")
    def issue_chunk(c):
        for kv, base in ((0, WS_K), (1, WS_V)):
            for i in range(2):
                a(f"s_add_u32 m0, s61, {(c % 4)*16384 + kv*8192 + i*1024}")
                a(f"s_add_u32 s31, s60, {base + c*8192 + i*1024}")
                vm.op(f"buffer_load_dwordx4 v1, {R4(WS_)}, s31 offen sc1 lds", ("c", c))
    a("s_lshl_b32 s62, s29, 6")
    a("s_lshl_b32 s31, s30, 3")
    a("s_add_u32 s62, s62, s31")
    a("s_lshl_b32 s62, s62, 11")
    a("s_lshl_b32 s63, s28, 12")
    a("s_add_u32 s62, s62, s63")
    for i in range(4):
        a(f"s_add_u32 m0, s63, {QOFF + i*1024}")
        a(f"s_add_u32 s31, s62, {WS_Q + i*1024}")
        vm.op(f"buffer_load_dwordx4 v1, {R4(WS_)}, s31 offen sc1 lds")
    a("s_lshl_b32 s31, s29, 7")
    a(f"s_add_u32 s31, s31, {WS_KMAX}")
    a(f"s_mov_b32 m0, {KMOFF}")
    a("s_mov_b64 exec, 0xff")
    vm.op(f"buffer_load_dwordx4 v1, {R4(WS_)}, s31 offen sc1 lds")
    a("s_mov_b64 exec, -1")
    issue_chunk(0); issue_chunk(1)
    vm.wait(("c", 0))
    a("s_waitcnt lgkmcnt(0)")
    a("s_barrier")
    issue_chunk(2)
    a("v_lshrrev_b32 v4, 3, v0")
    a("v_and_b32 v5, 7, v0")
    a("v_lshrrev_b32 v6, 1, v4")
    a("v_and_b32 v6, 1, v6")
    a("v_lshlrev_b32 v6, 2, v6")
    a("v_xor_b32 v7, v5, v6")
    a("v_lshlrev_b32 v7, 4, v7")
    a("v_lshl_add_u32 v3, v4, 11, v7")
    a("s_lshl_b32 s70, s4, 7")
    a("s_lshl_b32 s71, s28, 14")
    a("s_add_u32 s70, s70, s71")
    a("s_lshl_b32 s71, s28, 10")
    def wchunk(c):
        for n in range(4):
            a(f"s_add_u32 m0, s71, {WCH(c) + n*4096}")
            a(f"s_add_u32 s31, s70, {(4*c+n)*65536}")
            vm.op(f"buffer_load_dwordx4 v3, {R4(WO)}, s31 offen lds", ("w", c))
    a("s_lshr_b32 s72, s2, 3")
    a("s_and_b32 s73, s2, 7")
    a("s_lshl_b32 s74, s73, 2")
    a("s_add_u32 s74, s74, s28")
    a("v_lshrrev_b32 v20, 4, v0")
    a("v_and_b32 v10, 15, v0")
    a("v_lshlrev_b32 v11, 11, v10")
    a("v_lshl_add_u32 v11, v20, 4, v11")
    a("v_lshlrev_b32 v12, 12, v10")
    a("v_lshl_add_u32 v12, v20, 4, v12")
    a("s_lshl_b32 s75, s72, 17")
    a("s_lshl_b32 s76, s74, 6")
    a("s_add_u32 s77, s75, s76")
    a("s_lshl_b32 s75, s72, 18")
    a("s_add_u32 s78, s75, s76")
    a("v_lshrrev_b32 v13, 2, v10")
    a("v_lshl_add_u32 v13, v20, 3, v13")
    a("v_lshlrev_b32 v13, 7, v13")
    a("v_and_b32 v14, 3, v10")
    a("v_lshl_add_u32 v13, v14, 3, v13")
    a("s_mul_i32 s79, s28, 3072")
    a(f"s_add_u32 s79, s79, {KMOFF + 192}")
    a("s_lshl_b32 s79, s28, 12")
    a(f"s_add_u32 s79, s79, {CONV0}")
    a("v_add_u32 v13, s79, v13")
    a("v_add_u32 v15, s79, v1")
    a("v_lshlrev_b32 v14, 12, v4")
    a("v_lshl_add_u32 v14, v5, 4, v14")
    a("s_lshl_b32 s75, s74, 17")
    a("s_lshl_b32 s76, s72, 7")
    a("s_add_u32 s75, s75, s76")
    a(f"s_add_u32 s75, s75, {WS_YT}")
    for c in range(15):
        if c == 1:
            Lny = a.newlabel("ny")
            a("s_cmp_lg_u32 s28, 0")
            a(f"s_cbranch_scc1 {Lny}")
            a("s_lshr_b32 s84, s2, 5")
            a("s_and_b32 s85, s2, 31")
            publish(84, 85, FL_Y)
            a.label(Lny)
        if c == 4:
            for ps in range(4):
                a(f"s_add_u32 s31, s77, {ps*32768}")
                vm.op(f"buffer_load_dwordx4 v[{32+4*ps}:{35+4*ps}], v11, {R4(AQ)}, s31 offen")
        if c == 6:
            poll(73, FL_Y, 32)
            for n in range(4):
                a(f"s_add_u32 s31, s75, {n*32768}")
                vm.op(f"buffer_load_dwordx4 v[{64+4*n}:{67+4*n}], v14, {R4(WS_)}, s31 offen sc1", "yl")
        if c == 8:
            vm.wait("yl")
            for n in range(4):
                a(f"ds_write_b128 v15, v[{64+4*n}:{67+4*n}] offset:{n*1024}")
            a("s_waitcnt lgkmcnt(0)")
            for ps in range(4):
                for z in range(2):
                    a(f"ds_read_b64_tr_b16 v[{48+4*ps+2*z}:{49+4*ps+2*z}], v13 offset:{z*512+ps*32}")
            for ps in range(4):
                a(f"s_waitcnt lgkmcnt({6-2*ps})")
                for dw in range(4):
                    qr, yr = 32 + 4 * ps + dw, 48 + 4 * ps + dw
                    a(f"v_lshlrev_b32 v16, 16, v{qr}")
                    a(f"v_and_b32 v17, 0xffff0000, v{qr}")
                    a(f"v_lshlrev_b32 v18, 16, v{yr}")
                    a(f"v_and_b32 v19, 0xffff0000, v{yr}")
                    a("v_mul_f32 v16, v16, v18")
                    a("v_mul_f32 v17, v17, v19")
                    a(f"v_cvt_pk_bf16_f32 v{80+4*ps+dw}, v16, v17")
                a(f"s_add_u32 s31, s78, {ps*65536}")
                vm.op(f"buffer_store_dwordx4 v[{80+4*ps}:{83+4*ps}], v12, {R4(OUT)}, s31 offen")
        if 10 <= c < 15: wchunk(c - 10)
        vm.wait(("c", c + 1))
        a("s_barrier")
        if c + 3 <= 15: issue_chunk(c + 3)
    a("s_barrier")
    a("s_barrier")
    a(f"v_mov_b32 v6, {FLAG_OFF}")
    a("ds_read_b32 v7, v6")
    a("s_waitcnt lgkmcnt(0)")
    a("v_readfirstlane_b32 s31, v7")
    a("s_nop 3")
    a("s_cmp_eq_u32 s31, 0")
    Lhd = a.newlabel("hd")
    a(f"s_cbranch_scc1 {Lhd}")
    a("s_mov_b32 s8, 0")
    def issue_dyn():
        a("s_and_b32 s84, s8, 3")
        a("s_lshl_b32 s84, s84, 14")
        a("s_add_u32 s84, s84, s61")
        a("s_lshl_b32 s85, s8, 13")
        a("s_add_u32 s85, s85, s60")
        for kv, base in ((0, WS_K), (1, WS_V)):
            for i in range(2):
                a(f"s_add_u32 m0, s84, {kv*8192 + i*1024}")
                a(f"s_add_u32 s31, s85, {base + i*1024}")
                a(f"buffer_load_dwordx4 v1, {R4(WS_)}, s31 offen sc1 lds")
        a("s_add_u32 s8, s8, 1")
    issue_dyn()
    a("s_waitcnt vmcnt(0)")
    a("s_barrier")
    L2p = a.newlabel("p2")
    a.label(L2p)
    issue_dyn()
    a("s_waitcnt vmcnt(0)")
    a("s_barrier")
    a("s_cmp_lt_u32 s8, 16")
    a(f"s_cbranch_scc1 {L2p}")
    a("s_barrier")
    a.label(Lhd)
    a("s_barrier")
    for c in range(5, 8): wchunk(c)
    a("s_waitcnt vmcnt(0)")
    common.endpgm(a, 0)
    a.label(Lend)
    a("s_endpgm")
    return kernel_desc(name, 160)
```

```python
import struct, os
from common import *
import common
def f32bits(x): return struct.unpack("<I", struct.pack("<f", x))[0]
VAR = os.environ.get('KFVAR', '')
QSCALE = 1.4426950408889634 / (32 ** 0.5)

KF_LDS = 163840
KF_BLOCK = 768
SLOT = 40960
PPSCR = 147456
CONV0 = 65536
CP_STRIDE = 4160
H_OFF = 4 * CP_STRIDE
CH_BYTES = H_OFF + 4608
CPB = [65536 + 8768 * c for c in range(4)]
HB = [65536 + 8768 * c + 4160 for c in range(4)]
CXB = [102400 + 12608 * c + 64 for c in range(4)]
XSL, WS0, WSL = 16384, 65536, 24576
FLAG_OFF = 160768
QOFF = 49152
KMOFF = FLAG_OFF + 64
def WCH(c): return CONV0 + c * 16384 if c < 5 else (c - 5) * 16384
FL_O, FL_Y, FL_UR, FL_QKV = 0, 8, 16, 32
PPB = int(os.environ.get('KFPPB', '0'))
PUBM = int(os.environ.get('KFPUBM', '2'))

Q = 8; CN = 16; O = 32; L = 48; ONES = 52
S = [64, 80]; P = 96; KF = [112, 120]; VF = [128, 136]
WS_, SSMK, WO, AQ, DBG, OUT, XS, WQ, AK, AV, SH = 12, 16, 20, 24, 32, 36, 40, 44, 48, 52, 56
def R4(b): return f"s[{b}:{b+3}]"

def gen_kf(a, name="kf_kernel"):
    common.PV = 166
    kernel_begin(a, name)
    Lend = a.newlabel("kfend")
    a("s_cmp_ge_u32 s2, 256")
    a(f"s_cbranch_scc1 {Lend}")
    a("s_load_dwordx16 s[60:75], s[0:1], 0")
    a("s_load_dwordx8 s[76:83], s[0:1], 64")
    a("v_lshrrev_b32 v1, 6, v0")
    a("s_nop 0")
    a("v_readfirstlane_b32 s28, v1")
    a("v_and_b32 v0, 63, v0")
    common.prof_begin(a)
    a("s_and_b32 s31, s2, 7")
    a("s_lshr_b32 s8, s2, 3")
    a("s_lshl_b32 s29, s31, 2")
    a("s_lshr_b32 s9, s8, 3")
    a("s_add_u32 s29, s29, s9")
    a("s_and_b32 s30, s8, 7")
    a("s_and_b32 s3, s31, 3")
    a("s_lshl_b32 s3, s3, 2")
    a("s_and_b32 s9, s8, 3")
    a("s_add_u32 s3, s3, s9")
    a("s_lshr_b32 s4, s31, 2")
    a("s_lshl_b32 s4, s4, 3")
    a("s_lshr_b32 s9, s8, 2")
    a("s_add_u32 s4, s4, s9")
    a("s_and_b32 s5, s31, 1")
    a("s_lshl_b32 s5, s5, 3")
    a("s_and_b32 s9, s8, 7")
    a("s_add_u32 s5, s5, s9")
    a("s_lshr_b32 s6, s31, 1")
    a("s_lshl_b32 s6, s6, 2")
    a("s_lshr_b32 s9, s8, 3")
    a("s_add_u32 s6, s6, s9")
    a("v_lshlrev_b32 v1, 4, v0")
    a("s_waitcnt lgkmcnt(0)")
    srd(a, WS_, 82, WS_SIZE)
    srd(a, SSMK, 68, 1024 * 2048 * 2)
    srd(a, WO, 76, 1024 * 1024 * 2)
    srd(a, AQ, 60, 2048 * 1024 * 2)
    srd(a, DBG, 80, 256)
    srd(a, OUT, 78, 2048 * 2048 * 2)
    srd(a, XS, 72, 2048 * 1024 * 2)
    srd(a, WQ, 74, 1024 * 3072 * 2)
    srd(a, AK, 62, 2048 * 1024 * 2)
    srd(a, AV, 64, 2048 * 1024 * 2)
    srd(a, SH, 66, 1024 * 4 * 2)
    a("s_mov_b32 s10, s70")
    a("s_mov_b32 s11, s71")

    def get_nonce(v=2):
        Ln = a.newlabel("tag"); Lnd = a.newlabel("tagd")
        a(f"v_mov_b32 v{v}, 0")
        a("s_mov_b32 s95, 0")
        a.label(Ln)
        a(f"buffer_load_dword v{v+1}, v{v}, {R4(DBG)}, 0 offen sc1")
        a("s_add_u32 s95, s95, 1")
        a("s_waitcnt vmcnt(0)")
        a(f"v_readfirstlane_b32 s9, v{v+1}")
        a("s_nop 3")
        a("s_cmp_lg_u32 s9, 0")
        a(f"s_cbranch_scc1 {Lnd}")
        a("s_sleep 4")
        a("s_cmp_lt_u32 s95, 0x400000")
        a(f"s_cbranch_scc1 {Ln}")
        a.label(Lnd)
    def publish(line_sreg, entry_sreg, base, v=8):
        a(f"s_lshl_b32 s31, s{line_sreg}, 8")
        a(f"s_lshl_b32 s95, s{entry_sreg}, 2")
        a("s_add_u32 s31, s31, s95")
        a(f"s_add_u32 s31, s31, {WS_FLAG + base*256}")
        a(f"v_mov_b32 v{v}, 0")
        a(f"v_mov_b32 v{v+1}, s9")
        a("s_mov_b64 exec, 1")
        a(f"buffer_store_dword v{v+1}, v{v}, {R4(WS_)}, s31 offen sc1")
        a("s_mov_b64 exec, -1")
    def poll(line_sreg, base, n, v=8):
        Lp = a.newlabel("poll"); Lpd = a.newlabel("polld")
        a(f"s_lshl_b32 s94, s{line_sreg}, 8")
        a(f"s_add_u32 s94, s94, {WS_FLAG + base*256}")
        a(f"v_and_b32 v{v}, {n-1}, v0")
        a(f"v_lshlrev_b32 v{v}, 2, v{v}")
        a("s_mov_b32 s95, 0")
        a.label(Lp)
        a(f"buffer_load_dword v{v+1}, v{v}, {R4(WS_)}, s94 offen sc1")
        a("s_add_u32 s95, s95, 1")
        a("s_waitcnt vmcnt(0)")
        a(f"v_cmp_ne_u32 vcc, s9, v{v+1}")
        a("s_cmp_eq_u64 vcc, 0")
        a(f"s_cbranch_scc1 {Lpd}")
        a("s_sleep 4")
        a("s_cmp_lt_u32 s95, 0x400000")
        a(f"s_cbranch_scc1 {Lp}")
        a.label(Lpd)

    LC = a.newlabel("roleC"); LD = a.newlabel("roleD"); LP = a.newlabel("roleP"); LH = a.newlabel("roleH")
    Lcdma = a.newlabel("convdma"); Lconv = a.newlabel("conv")
    a("s_cmp_lt_u32 s28, 4")
    a(f"s_cbranch_scc1 {LC}")
    a("s_cmp_lt_u32 s28, 6")
    a(f"s_cbranch_scc1 {LD}")
    a("s_cmp_lt_u32 s28, 8")
    a(f"s_cbranch_scc1 {LP}")
    a(f"s_branch {LH}")

    a.label(LD)
    a("s_sub_u32 s60, s28, 4")
    a("v_lshrrev_b32 v4, 3, v0")
    a("v_and_b32 v5, 7, v0")
    a("v_lshrrev_b32 v6, 1, v4")
    a("v_xor_b32 v7, v5, v6")
    a("v_lshlrev_b32 v7, 4, v7")
    a("v_lshl_add_u32 v10, v4, 11, v7")
    a("v_xor_b32 v11, 64, v10")
    a("v_and_b32 v6, 1, v6")
    a("v_lshlrev_b32 v6, 2, v6")
    a("v_xor_b32 v7, v5, v6")
    a("v_lshlrev_b32 v7, 4, v7")
    a("v_mul_u32_u24 v12, 6144, v4")
    a("v_add_u32 v12, v12, v7")
    a("s_lshl_b32 s31, s5, 18")
    a("s_lshl_b32 s61, s60, 17")
    a("s_add_u32 s61, s61, s31")
    a("s_lshl_b32 s62, s6, 7")
    a("s_lshl_b32 s70, s60, 13")
    a("s_mul_i32 s71, s60, 12288")
    a(f"s_add_u32 s71, s71, {WS0}")
    a("s_mov_b32 s72, 0")
    a("s_mov_b32 s73, 0")
    a("s_mov_b32 s74, 0")
    Ld1 = a.newlabel("d1")
    a("s_cmp_eq_u32 s60, 1")
    a(f"s_cbranch_scc1 {Ld1}")
    for lw in range(2):
        if lw == 1: a.label(Ld1)
        def issue_stage():
            a("s_lshl_b32 s75, s72, 7")
            a("s_add_u32 s75, s75, s61")
            a(f"s_mul_i32 s76, s72, {64*6144}")
            a("s_add_u32 s76, s76, s62")
            a("s_add_u32 s77, s70, s73")
            a("s_add_u32 s78, s71, s74")
            for j in range(8):
                a(f"s_add_u32 m0, s77, {j*1024}")
                a(f"s_add_u32 s31, s75, {j*16384}")
                a(f"buffer_load_dwordx4 v{10 + (j & 1)}, {R4(XS)}, s31 offen lds")
            for j in range(12):
                i = 12 * lw + j
                a(f"s_add_u32 m0, s78, {j*1024}")
                a(f"s_add_u32 s31, s76, {(i & 7)*49152 + (i >> 3)*2048}")
                a(f"buffer_load_dwordx4 v12, {R4(WQ)}, s31 offen lds")
            a("s_add_u32 s72, s72, 1")
            a(f"s_add_u32 s73, s73, {XSL}")
            a(f"s_add_u32 s74, s74, {WSL}")
            a(f"s_cmp_eq_u32 s73, {4*XSL}")
            a("s_cselect_b32 s73, 0, s73")
            a("s_cselect_b32 s74, 0, s74")
        issue_stage()
        issue_stage()
        a("s_waitcnt vmcnt(20)")
        a("s_barrier")
        issue_stage()
        a("s_mov_b32 s79, 0")
        Lll = a.newlabel("dl")
        a.label(Lll)
        issue_stage()
        a("s_waitcnt vmcnt(40)")
        a("s_barrier")
        a("s_add_u32 s79, s79, 1")
        a("s_cmp_lt_u32 s79, 13")
        a(f"s_cbranch_scc1 {Lll}")
        a("s_waitcnt vmcnt(20)")
        a("s_barrier")
        a(f"s_branch {Lcdma}")

    a.label(LP)
    Lnt = a.newlabel("notag")
    a("s_lshl_b32 s31, s2, 4")
    a("s_add_u32 s31, s31, s28")
    a("s_cmp_lg_u32 s31, 6")
    a(f"s_cbranch_scc1 {Lnt}")
    a("s_memrealtime s[60:61]")
    a("s_waitcnt lgkmcnt(0)")
    a("s_or_b32 s60, s60, 1")
    a("v_mov_b32 v2, s60")
    a("v_mov_b32 v4, 0")
    a("s_mov_b64 exec, 1")
    a(f"buffer_store_dword v2, v4, {R4(DBG)}, 0 offen sc1")
    a("s_mov_b64 exec, -1")
    a.label(Lnt)
    a("s_lshr_b32 s8, s2, 3")
    a("v_lshrrev_b32 v6, 1, v0")
    a("v_lshlrev_b32 v6, 11, v6")
    a("v_and_b32 v7, 1, v0")
    a("v_lshl_add_u32 v6, v7, 7, v6")
    a("s_and_b32 s31, s2, 1")
    a("s_lshl_b32 s31, s31, 10")
    a("s_lshl_b32 s60, s8, 5")
    a("s_add_u32 s31, s31, s60")
    a("s_lshl_b32 s62, s31, 11")
    a("v_lshrrev_b32 v8, 5, v0")
    a(f"v_mul_u32_u24 v8, {64*6144}, v8")
    a("v_bfe_u32 v7, v0, 4, 1")
    a("v_mul_u32_u24 v7, 6144, v7")
    a("v_add_u32 v8, v8, v7")
    a("v_bfe_u32 v7, v0, 2, 2")
    a("v_min_u32 v7, 2, v7")
    a("v_lshl_add_u32 v8, v7, 11, v8")
    a("v_and_b32 v7, 3, v0")
    a("v_lshl_add_u32 v8, v7, 7, v8")
    a("s_lshl_b32 s8, s8, 1")
    a("s_mul_i32 s63, s8, 6144")
    a("s_bfe_u32 s31, s2, 0x20001")
    a("s_lshl_b32 s31, s31, 9")
    a("s_add_u32 s63, s63, s31")
    a("s_cmp_eq_u32 s28, 6")
    a(f"s_cselect_b32 s88, s{XS}, s{WQ}")
    a(f"s_cselect_b32 s89, s{XS+1}, s{WQ+1}")
    a(f"s_cselect_b32 s90, s{XS+2}, s{WQ+2}")
    a("s_mov_b32 s91, 0x00020000")
    a("s_cselect_b32 s62, s62, s63")
    a(f"s_mov_b32 s31, {2*64*6144}")
    a("s_cselect_b32 s65, 256, s31")
    a("s_cselect_b64 vcc, -1, 0")
    a("v_cndmask_b32 v6, v8, v6, vcc")
    def pf():
        a("s_add_u32 s62, s62, s65")
        a("buffer_load_dword v9, v6, s[88:91], s62 offen sc1")
    pf()
    a(f"s_mul_i32 s66, s2, {4*UR_STRIDE}")
    a(f"s_add_u32 s66, s66, {WS_UR0}")
    a("s_lshl_b32 s67, s2, 14")
    def dma_h(ch):
        for pc in range(4):
            a(f"s_mov_b32 m0, {HB[ch] + 512 + pc*1024}")
            a(f"s_add_u32 s31, s67, {ch*4096 + pc*1024}")
            a(f"buffer_load_dwordx4 v1, {R4(SSMK)}, s31 offen lds")
        a(f"s_mov_b32 s31, {WS_SIZE}")
        a("s_mov_b32 exec_hi, 0")
        a(f"s_mov_b32 m0, {HB[ch]}")
        a("s_nop 0")
        a(f"buffer_load_dwordx4 v1, {R4(WS_)}, s31 offen lds")
        a("s_mov_b64 exec, -1")
    def dma_u(ch):
        for pc in range(4):
            a(f"s_mov_b32 m0, {CPB[ch] + pc*1024}")
            a(f"s_add_u32 s31, s66, {ch*UR_STRIDE + pc*1024}")
            a(f"buffer_load_dwordx4 v1, {R4(WS_)}, s31 offen sc1 lds")
        a(f"s_mov_b32 s31, {WS_SIZE}")
        a("s_mov_b64 exec, 15")
        a(f"s_mov_b32 m0, {CPB[ch] + 4096}")
        a("s_nop 0")
        a(f"buffer_load_dwordx4 v1, {R4(WS_)}, s31 offen lds")
        a("s_mov_b64 exec, -1")
    def by_wave(f6, f7):
        L7 = a.newlabel("w7"); Le = a.newlabel("we")
        a("s_bitcmp1_b32 s28, 0")
        a(f"s_cbranch_scc1 {L7}")
        f6()
        a(f"s_branch {Le}")
        a.label(L7)
        f7()
        a.label(Le)
    UP = int(os.environ.get('KFUP', '12'))
    for s in range(15):
        if s == 4: get_nonce()
        a("s_barrier")
        if s % 2 == 0 and s <= 10: pf()
        if s == 3:
            a("v_lshlrev_b32 v10, 7, v0")
            a("s_and_b32 s31, s28, 1")
            a("s_lshl_b32 s31, s31, 13")
            a("s_add_u32 s31, s31, s67")
            a(f"buffer_load_dword v9, v10, {R4(SSMK)}, s31 offen sc1")
        if s == UP:
            a("s_lshr_b32 s68, s2, 4")
            poll(68, FL_UR, 16)
        if s == 13: by_wave(lambda: (dma_u(0), dma_h(0)), lambda: (dma_u(1), dma_h(1)))
        if s == 14: by_wave(lambda: (dma_u(2), dma_h(2)), lambda: (dma_u(3), dma_h(3)))
    a("s_barrier")
    a("s_waitcnt vmcnt(0)")
    a(f"s_branch {Lconv}")
    a.label(Lcdma)
    a("s_waitcnt vmcnt(0)")
    a("s_barrier")
    a(f"s_branch {Lconv}")

    a.label(LC)
    a("s_and_b32 s60, s28, 1")
    a("s_lshr_b32 s61, s28, 1")
    a("v_and_b32 v56, 31, v0")
    a("v_lshrrev_b32 v2, 5, v0")
    a("v_lshrrev_b32 v3, 1, v56")
    a("v_and_b32 v3, 7, v3")
    a("s_lshl_b32 s62, s60, 13")
    a("v_lshlrev_b32 v9, 7, v56")
    a("v_add_u32 v9, s62, v9")
    for ks in range(4):
        a(f"v_or_b32 v15, {2*ks}, v2")
        a("v_xor_b32 v15, v15, v3")
        a(f"v_lshl_add_u32 v{4+ks}, v15, 4, v9")
    a("v_and_b32 v56, 15, v0")
    a("v_lshrrev_b32 v3, 2, v56")
    a("v_and_b32 v56, 3, v56")
    a("v_lshrrev_b32 v15, 4, v0")
    a("v_and_b32 v15, 1, v15")
    a("v_lshlrev_b32 v15, 5, v15")
    a("v_lshl_add_u32 v15, v56, 3, v15")
    a("s_lshl_b32 s62, s61, 6")
    a("v_add_u32 v15, s62, v15")
    a("v_lshrrev_b32 v56, 1, v3")
    a("v_and_b32 v56, 1, v56")
    a("v_lshlrev_b32 v56, 6, v56")
    a("v_xor_b32 v15, v15, v56")
    a("v_lshl_add_u32 v3, v2, 3, v3")
    a("v_lshl_add_u32 v8, v3, 7, v15")
    a(f"v_add_u32 v8, {WS0}, v8")
    for i in range(4): a(f"v_mov_b32 v{10+i}, v{4+i}")
    a("v_mov_b32 v14, v8")
    for i in range(96): a(f"v_mov_b32 v{64+i}, 0")
    def Xf(b, mt): return 16 + 8 * b + 4 * mt
    def Wf(b, p): return 32 + 12 * b + 4 * p
    def acc(mt, p): return 64 + 16 * (3 * mt + p)
    def reads(ks, b):
        r = []
        for mt in range(2):
            r.append(f"ds_read_b128 v[{Xf(b,mt)}:{Xf(b,mt)+3}], v{10+ks} offset:{mt*4096}")
        for p in range(3):
            for z in range(2):
                r.append(f"ds_read_b64_tr_b16 v[{Wf(b,p)+2*z}:{Wf(b,p)+2*z+1}], v14 offset:{p*8192+ks*2048+z*512}")
        return r
    def mfmas(b):
        r = []
        for mt in range(2):
            for p in range(3):
                A, B = (Wf(b, p), Xf(b, mt)) if p < 2 else (Xf(b, mt), Wf(b, p))
                r.append(f"v_mfma_f32_32x32x16_bf16 v[{acc(mt,p)}:{acc(mt,p)+15}], v[{A}:{A+3}], v[{B}:{B+3}], v[{acc(mt,p)}:{acc(mt,p)+15}]")
        return r
    a("s_mov_b32 s72, 0")
    a("s_mov_b32 s73, 0")
    a("s_mov_b32 s74, 0")
    a("s_barrier")
    common.stamp(a, 1)
    for x in reads(0, 0): a(x)
    Ls = a.newlabel("stage"); Llast = a.newlabel("last")
    a.label(Ls)
    for ks in range(3):
        b = ks & 1
        a("s_waitcnt lgkmcnt(0)")
        m = mfmas(b); r = reads(ks + 1, b ^ 1)
        a(m[0]); [a(x) for x in r[0:4]]
        a(m[1]); [a(x) for x in r[4:8]]
        for x in m[2:]: a(x)
    a("s_waitcnt lgkmcnt(0)")
    a("s_cmp_eq_u32 s72, 15")
    a(f"s_cbranch_scc1 {Llast}")
    a("s_barrier")
    a(f"s_add_u32 s73, s73, {XSL}")
    a(f"s_add_u32 s74, s74, {WSL}")
    a(f"s_cmp_eq_u32 s73, {4*XSL}")
    a("s_cselect_b32 s73, 0, s73")
    a("s_cselect_b32 s74, 0, s74")
    for i in range(4): a(f"v_add_u32 v{10+i}, s73, v{4+i}")
    a("v_add_u32 v14, s74, v8")
    for x in reads(0, 0): a(x)
    for x in mfmas(1): a(x)
    a("s_add_u32 s72, s72, 1")
    a(f"s_branch {Ls}")
    a.label(Llast)
    for x in mfmas(1): a(x)
    a("v_mov_b32 v56, 0")
    a(f"buffer_load_dword v57, v56, {R4(DBG)}, 0 offen sc1")
    a("s_nop 15")
    common.stamp(a, 2)
    a("s_lshl_b32 s62, s6, 1")
    a("s_add_u32 s62, s62, s61")
    a("s_lshl_b32 s63, s5, 2")
    a("s_lshl_b32 s64, s60, 1")
    a("s_add_u32 s63, s63, s64")
    a("s_lshl_b32 s64, s62, 6")
    a("s_add_u32 s64, s64, s63")
    a("s_lshl_b32 s64, s64, 11")
    a(f"s_mov_b32 s66, {f32bits(QSCALE)}")
    for p in (1, 2, 0):
        for mt in range(2):
            base = acc(mt, p)
            if p == 0:
                for i in range(16): a(f"v_mul_f32 v{base+i}, s66, v{base+i}")
            for i in range(8):
                a(f"v_cvt_pk_bf16_f32 v{base+i}, v{base+2*i}, v{base+2*i+1}")
            a(f"s_add_u32 s65, s64, {[WS_Q, WS_K, WS_V][p] + mt*2048}")
            a(f"buffer_store_dwordx4 v[{base}:{base+3}], v1, {R4(WS_)}, s65 offen sc1")
            a(f"buffer_store_dwordx4 v[{base+4}:{base+7}], v1, {R4(WS_)}, s65 offen offset:1024 sc1")
    for mt in range(2):
        d = acc(mt, 1)
        for i in range(8):
            c = "0" if i == 0 else f"v{16+mt}"
            a(f"v_dot2_f32_bf16 v{16+mt}, v{d+i}, v{d+i}, {c}")
    a("s_nop 3")
    a("v_mov_b32 v18, v16")
    a("v_mov_b32 v19, v17")
    a("s_nop 1")
    a("v_permlane32_swap_b32 v18, v16")
    a("v_permlane32_swap_b32 v19, v17")
    a("s_nop 1")
    a("v_add_f32 v16, v16, v18")
    a("v_add_f32 v17, v17, v19")
    a("v_max_f32 v16, v16, v17")
    for dpp in ("quad_perm:[1,0,3,2]", "quad_perm:[2,3,0,1]", "row_half_mirror", "row_mirror"):
        a("s_nop 1")
        a(f"v_max_f32_dpp v16, v16, v16 {dpp} row_mask:0xf bank_mask:0xf")
    a("s_nop 1")
    a("v_mov_b32 v17, v16")
    a("s_nop 1")
    a("v_permlane16_swap_b32 v17, v16")
    a("s_nop 1")
    a("v_max_f32 v16, v16, v17")
    a("s_lshl_b32 s64, s62, 5")
    a("s_lshl_b32 s65, s5, 1")
    a("s_add_u32 s64, s64, s65")
    a("s_add_u32 s64, s64, s60")
    a("s_lshl_b32 s64, s64, 2")
    a(f"s_add_u32 s64, s64, {WS_KMAX}")
    a("s_mov_b64 exec, 1")
    a(f"buffer_store_dword v16, v56, {R4(WS_)}, s64 offen sc1")
    a("s_mov_b64 exec, -1")
    a("s_mov_b32 s86, s62")
    a("s_lshl_b32 s87, s5, 1")
    a("s_add_u32 s87, s87, s60")
    a("s_waitcnt vmcnt(13)")
    a("v_readfirstlane_b32 s9, v57")

    a.label(Lconv)
    a("s_and_b32 s60, s28, 3")
    a("s_lshr_b32 s61, s28, 2")
    a("s_lshl_b32 s62, s2, 2")
    a("s_add_u32 s62, s62, s60")
    a(f"s_mov_b32 s63, {CPB[0]}")
    a(f"s_mov_b32 s65, {HB[0]}")
    a(f"s_mov_b32 s68, {CXB[0]}")
    for ch in range(1, 4):
        a(f"s_cmp_eq_u32 s60, {ch}")
        a(f"s_cselect_b32 s63, {CPB[ch]}, s63")
        a(f"s_cselect_b32 s65, {HB[ch]}, s65")
        a(f"s_cselect_b32 s68, {CXB[ch]}, s68")
    a("s_lshr_b32 s31, s62, 1")
    a("s_lshl_b32 s31, s31, 2")
    a("s_add_u32 s66, s10, s31")
    a("s_addc_u32 s67, s11, 0")
    a("s_load_dword s70, s[66:67], 0")
    a("v_and_b32 v2, 15, v0")
    a("v_lshrrev_b32 v3, 4, v0")
    a("v_sub_u32 v4, 3, v2")
    a("v_and_b32 v4, 3, v4")
    a("v_cmp_eq_u32 vcc, 0, v4")
    a(f"v_mul_u32_u24 v4, {CP_STRIDE}, v4")
    a(f"s_sub_u32 s31, s68, {CP_STRIDE}")
    a("v_add_u32 v4, s31, v4")
    a("v_mov_b32 v5, s63")
    a("v_cndmask_b32 v4, v4, v5, vcc")
    a("v_lshrrev_b32 v5, 2, v2")
    a("v_lshlrev_b32 v6, 1, v3")
    a("v_sub_u32 v5, v6, v5")
    a("v_add_u32 v5, 3, v5")
    a("v_lshl_add_u32 v4, v5, 3, v4")
    a("v_lshlrev_b32 v5, 5, v2")
    a("v_lshl_add_u32 v5, v3, 4, v5")
    a("s_add_u32 s31, s65, 32")
    a("v_add_u32 v5, s31, v5")
    a("v_lshlrev_b32 v6, 5, v2")
    a("v_lshl_add_u32 v6, v3, 3, v6")
    a("s_add_u32 s31, s63, 504")
    a("v_sub_u32 v7, s31, v6")
    a("s_lshl_b32 s64, s62, 12")
    a(f"s_add_u32 s64, s64, {WS_YT}")
    a("s_waitcnt lgkmcnt(0)")
    a("s_lshl_b32 s31, s61, 11")
    a("v_lshlrev_b32 v26, 5, v0")
    a("v_add_u32 v26, s31, v26")
    a("v_add_u32 v27, s68, v26")
    a("v_add_u32 v26, s63, v26")
    a("s_barrier")
    common.stamp(a, 3)
    for i in range(3): a(f"ds_read_b128 v[{32+4*i}:{35+4*i}], v26 offset:{16*i}")
    a("v_lshrrev_b32 v28, 1, v0")
    a(f"v_mul_u32_u24 v28, {CP_STRIDE}, v28")
    a("v_and_b32 v29, 1, v0")
    a("v_lshl_add_u32 v28, v29, 4, v28")
    a("s_add_u32 s31, s68, 4096")
    a("v_add_u32 v28, s31, v28")
    for i in range(4): a(f"v_mov_b32 v{72+i}, 0")
    a("s_mov_b64 exec, 63")
    a("ds_write_b128 v28, v[72:75]")
    a("s_mov_b64 exec, -1")
    a("s_waitcnt lgkmcnt(1)")
    for k in range(8):
        a(f"v_alignbyte_b32 v{48+k}, v{33+k}, v{32+k}, 2")
        a(f"v_mov_b32 v{56+k}, v{33+k}")
        a(f"v_alignbyte_b32 v{64+k}, v{34+k}, v{33+k}, 2")
    for cc in range(3):
        for j in range(2):
            a(f"ds_write_b128 v27, v[{48+8*cc+4*j}:{51+8*cc+4*j}] offset:{cc*CP_STRIDE + 16*j}")
    a("s_waitcnt lgkmcnt(0)")
    a("s_barrier")
    a("s_bitcmp1_b32 s62, 0")
    a("s_cselect_b32 s31, 0, 16")
    a("s_lshl_b32 s70, s70, s31")
    a("s_and_b32 s70, s70, 0xffff0000")
    ACC = 8
    def AF(b, x): return 32 + 64 * b + 4 * x
    def BF(b, x): return 64 + 64 * b + 4 * x
    Lh1 = a.newlabel("h1"); Lcd = a.newlabel("cdone")
    a("s_cmp_eq_u32 s61, 1")
    a(f"s_cbranch_scc1 {Lh1}")
    for hw in range(2):
        if hw == 1: a.label(Lh1)
        Ts = [0, 3, 4, 7] if hw == 0 else [1, 2, 5, 6]
        mx = max(Ts)
        def rd(m0, b):
            r = []
            for x in range(mx + 1):
                o = 64*(63-(m0+8*x))
                r.append(f"ds_read_b64 v[{AF(b,x)}:{AF(b,x)+1}], v4 offset:{o}")
                r.append(f"ds_read_b64 v[{AF(b,x)+2}:{AF(b,x)+3}], v4 offset:{o+8}")
                r.append(f"ds_read_b128 v[{BF(b,x)}:{BF(b,x)+3}], v5 offset:{512*x+64*(7-m0)}")
            return r
        for x in rd(0, 0): a(x)
        for m0 in range(8):
            b = m0 & 1
            a("s_waitcnt lgkmcnt(0)")
            if hw == 0 and m0 == PUBM:
                a("s_waitcnt vmcnt(0)")
                publish(86, 87, FL_QKV, v=24)
            nxt = rd(m0 + 1, b ^ 1) if m0 < 7 else []
            mf = []
            for ti, T in enumerate(Ts):
                for x in range(T + 1):
                    c = "0" if (m0 == 0 and x == 0) else f"v[{ACC+4*ti}:{ACC+4*ti+3}]"
                    mf.append(f"v_mfma_f32_16x16x32_bf16 v[{ACC+4*ti}:{ACC+4*ti+3}], v[{AF(b,x)}:{AF(b,x)+3}], v[{BF(b,T-x)}:{BF(b,T-x)+3}], {c}")
            k = 0
            for i, m in enumerate(mf):
                a(m)
                for _ in range(2):
                    if k < len(nxt): a(nxt[k]); k += 1
        for ti, T in enumerate(Ts):
            a(f"ds_read_b64 v[{32+2*ti}:{33+2*ti}], v7 offset:{512*(7-T)}")
        a("s_waitcnt lgkmcnt(0)")
        a("s_nop 7")
        for ti, T in enumerate(Ts):
            r0, r1 = 32 + 2 * ti, 33 + 2 * ti
            a(f"v_and_b32 v48, 0xffff0000, v{r1}")
            a(f"v_lshlrev_b32 v49, 16, v{r1}")
            a(f"v_and_b32 v50, 0xffff0000, v{r0}")
            a(f"v_lshlrev_b32 v51, 16, v{r0}")
            for e in range(4):
                a(f"v_fma_f32 v{ACC+4*ti+e}, v{48+e}, s70, v{ACC+4*ti+e}")
            a(f"v_cvt_pk_bf16_f32 v{56+2*ti}, v{ACC+4*ti}, v{ACC+4*ti+1}")
            a(f"v_cvt_pk_bf16_f32 v{57+2*ti}, v{ACC+4*ti+2}, v{ACC+4*ti+3}")
            a(f"buffer_store_dwordx2 v[{56+2*ti}:{57+2*ti}], v6, {R4(WS_)}, s64 offen offset:{512*T} sc1")
        if hw == 0: a(f"s_branch {Lcd}")
    a.label(Lcd)
    a("v_lshrrev_b32 v2, 4, v0")
    a("v_xor_b32 v2, v2, v0")
    a("v_and_b32 v2, 1, v2")
    a("v_cmp_eq_u32 vcc, 0, v2")
    a("v_mov_b32 v3, 0x3f803f80")
    a("s_nop 1")
    for i in range(4): a(f"v_cndmask_b32 v{ONES+i}, 0, v3, vcc")
    a("s_lshl_b32 s31, s28, 11")
    a(f"s_add_u32 s31, s31, {QOFF}")
    a("v_add_u32 v2, s31, v1")
    a("v_and_b32 v3, 31, v0")
    a("v_lshlrev_b32 v3, 2, v3")
    a(f"v_add_u32 v3, {KMOFF}, v3")
    a("s_barrier")
    common.stamp(a, 4)
    a(f"ds_read_b128 v[{Q}:{Q+3}], v2")
    a(f"ds_read_b128 v[{Q+4}:{Q+7}], v2 offset:1024")
    a("ds_read_b32 v6, v3")
    a("s_waitcnt lgkmcnt(0)")
    for i in range(8):
        c = "0" if i == 0 else "v4"
        a(f"v_dot2_f32_bf16 v4, v{Q+i}, v{Q+i}, {c}")
    for dpp in ("quad_perm:[1,0,3,2]", "quad_perm:[2,3,0,1]", "row_half_mirror", "row_mirror"):
        a("s_nop 1")
        a(f"v_max_f32_dpp v6, v6, v6 {dpp} row_mask:0xf bank_mask:0xf")
    a("s_nop 1")
    a("v_mov_b32 v7, v6")
    a("v_mov_b32 v5, v4")
    a("s_nop 1")
    a("v_permlane16_swap_b32 v7, v6")
    a("v_permlane32_swap_b32 v5, v4")
    a("s_nop 1")
    a("v_max_f32 v6, v6, v7")
    a("v_add_f32 v4, v4, v5")
    a("v_mul_f32 v4, v6, v4")
    a("v_sqrt_f32 v4, v4")
    a("s_nop 0")
    a("v_sub_f32 v4, 0, v4")
    a("s_mov_b32 s7, 0")
    if 'prio' in VAR:
        Lpr = a.newlabel("pr")
        a("s_cmp_lt_u32 s28, 4")
        a(f"s_cbranch_scc1 {Lpr}")
        a("s_setprio 1")
        a.label(Lpr)
    if 'prall' in VAR: a("s_setprio 1")
    Lgo = a.newlabel("go"); Lrestart = a.newlabel("restart")
    a(f"s_branch {Lgo}")
    a.label(Lrestart)
    a("s_barrier")
    a.label(Lgo)
    for i in range(16): a(f"v_mov_b32 v{CN+i}, v4")
    for i in range(16): a(f"v_mov_b32 v{O+i}, 0")
    for i in range(4): a(f"v_mov_b32 v{L+i}, 0")
    for i in range(4, 8): a(f"v_mov_b32 v{P+i}, 0")
    for i in range(4, 8): a(f"v_mov_b32 v{VF[1]+i}, 0")
    a("v_mov_b32 v2, v1")
    a("v_add_u32 v3, 16384, v1")
    def kread(buf, areg, tile):
        return [f"ds_read_b128 v[{KF[buf]}:{KF[buf]+3}], v{areg} offset:{tile*2048}",
                f"ds_read_b128 v[{KF[buf]+4}:{KF[buf]+7}], v{areg} offset:{tile*2048+1024}"]
    def vread(buf, areg, tile):
        return [f"ds_read_b128 v[{VF[buf]}:{VF[buf]+3}], v{areg} offset:{8192+tile*2048}",
                f"ds_read_b128 v[{VF[buf]+4}:{VF[buf]+7}], v{areg} offset:{8192+tile*2048+1024}"]
    def qk(sb, kb, half):
        c = f"v[{CN}:{CN+15}]" if half == 0 else f"v[{S[sb]}:{S[sb]+15}]"
        return f"v_mfma_f32_32x32x16_bf16 v[{S[sb]}:{S[sb]+15}], v[{KF[kb]+4*half}:{KF[kb]+4*half+3}], v[{Q+4*half}:{Q+4*half+3}], {c}"
    def pv(vb, half):
        return f"v_mfma_f32_32x32x16_bf16 v[{O}:{O+15}], v[{VF[vb]+4*half}:{VF[vb]+4*half+3}], v[{P+4*half}:{P+4*half+3}], v[{O}:{O+15}]"
    def lsum(half):
        return f"v_mfma_f32_16x16x32_bf16 v[{L}:{L+3}], v[{ONES}:{ONES+3}], v[{P+4*half}:{P+4*half+3}], v[{L}:{L+3}]"
    for x in kread(0, 2, 0): a(x)
    for x in kread(1, 2, 1): a(x)
    for x in vread(0, 2, 0): a(x)
    a("s_waitcnt lgkmcnt(4)")
    a(qk(0, 0, 0)); a(qk(0, 0, 1))
    a("s_mov_b32 s8, 0")
    a("s_waitcnt vmcnt(0)")
    a("s_nop 11")
    Lloop = a.newlabel("loop")
    a.label(Lloop)
    for tl in range(4):
        sb = tl & 1; nb_ = sb ^ 1
        def ex(i): return f"v_exp_f32 v{S[sb]+i}, v{S[sb]+i}"
        def cv(i): return f"v_cvt_pk_bf16_f32 v{P+i}, v{S[sb]+2*i}, v{S[sb]+2*i+1}"
        a("s_waitcnt lgkmcnt(2)")
        a(qk(nb_, nb_, 0))
        for i in range(0, 4): a(ex(i))
        a(qk(nb_, nb_, 1))
        for i in range(4, 6): a(ex(i))
        if tl == 2: a("s_barrier")
        kr = kread(sb, 2, tl + 2) if tl < 2 else kread(sb, 3, tl - 2)
        for x in kr: a(x)
        for i in range(6, 8): a(ex(i))
        a(pv(nb_, 1))
        for i in range(0, 4): a(cv(i))
        a(ex(8))
        a(lsum(1))
        for i in range(9, 12): a(ex(i))
        a("s_waitcnt lgkmcnt(2)")
        a(pv(sb, 0))
        vr_ = vread(nb_, 2, tl + 1) if tl < 3 else vread(nb_, 3, 0)
        for x in vr_: a(x)
        for i in range(12, 16): a(ex(i))
        a(lsum(0))
        if tl == 3:
            a("v_mov_b32 v2, v3")
            a("v_add_u32 v3, 16384, v3")
            a("v_and_b32 v3, 0xffff, v3")
            a("s_add_u32 s8, s8, 1")
            a("s_cmp_lt_u32 s8, 16")
        for i in range(4, 8): a(cv(i))
    a(f"s_cbranch_scc1 {Lloop}")
    a("s_nop 1")
    a(pv(1, 1))
    a(lsum(1))
    a("s_waitcnt lgkmcnt(0)")
    a("s_nop 15")
    common.stamp(a, 5)
    a("v_and_b32 v5, 16, v0")
    a("v_cmp_ne_u32 vcc, 0, v5")
    a("s_nop 1")
    a(f"v_cndmask_b32 v5, v{L}, v{L+1}, vcc")
    Lok = a.newlabel("ok")
    a("s_cmp_lg_u32 s7, 0")
    a(f"s_cbranch_scc1 {Lok}")
    a(f"v_mov_b32 v6, {f32bits(2.0**-60)}")
    a("v_cmp_nge_f32 vcc, v5, v6")
    Lnf = a.newlabel("nf")
    a("s_cmp_eq_u64 vcc, 0")
    a(f"s_cbranch_scc1 {Lnf}")
    a(f"v_mov_b32 v6, {FLAG_OFF}")
    a("v_mov_b32 v7, 1")
    a("ds_write_b32 v6, v7")
    a.label(Lnf)
    a("s_waitcnt lgkmcnt(0)")
    a("s_barrier")
    a(f"v_mov_b32 v6, {FLAG_OFF}")
    a("ds_read_b32 v7, v6")
    a("s_waitcnt lgkmcnt(0)")
    a("v_readfirstlane_b32 s31, v7")
    a("s_nop 3")
    a("s_cmp_eq_u32 s31, 0")
    a(f"s_cbranch_scc1 {Lok}")
    a("s_mov_b32 s7, 1")
    a("v_mov_b32 v4, 0xff800000")
    a("s_lshl_b32 s31, s29, 17")
    a(f"s_add_u32 s31, s31, {WS_K}")
    a("s_mov_b32 s8, 0")
    Lfb = a.newlabel("fb")
    a.label(Lfb)
    a(f"buffer_load_dwordx4 v[{KF[0]}:{KF[0]+3}], v1, {R4(WS_)}, s31 offen sc1")
    a(f"buffer_load_dwordx4 v[{KF[0]+4}:{KF[0]+7}], v1, {R4(WS_)}, s31 offen offset:1024 sc1")
    a("s_waitcnt vmcnt(0)")
    a(f"v_mfma_f32_32x32x16_bf16 v[{S[0]}:{S[0]+15}], v[{KF[0]}:{KF[0]+3}], v[{Q}:{Q+3}], 0")
    a(f"v_mfma_f32_32x32x16_bf16 v[{S[0]}:{S[0]+15}], v[{KF[0]+4}:{KF[0]+7}], v[{Q+4}:{Q+7}], v[{S[0]}:{S[0]+15}]")
    a("s_nop 15")
    for i in range(8): a(f"v_max3_f32 v4, v4, v{S[0]+2*i}, v{S[0]+2*i+1}")
    a("s_add_u32 s31, s31, 2048")
    a("s_add_u32 s8, s8, 1")
    a("s_cmp_lt_u32 s8, 64")
    a(f"s_cbranch_scc1 {Lfb}")
    a("v_mov_b32 v5, v4")
    a("s_nop 1")
    a("v_permlane32_swap_b32 v5, v4")
    a("s_nop 1")
    a("v_max_f32 v4, v4, v5")
    a("v_sub_f32 v4, 0, v4")
    a(f"s_branch {Lrestart}")
    a.label(Lok)
    a("v_rcp_f32 v5, v5")
    a("s_nop 0")
    for i in range(16): a(f"v_mul_f32 v{O+i}, v{O+i}, v5")
    for i in range(8): a(f"v_cvt_pk_bf16_f32 v{P+i}, v{O+2*i}, v{O+2*i+1}")
    a("s_lshl_b32 s31, s30, 3")
    a("s_add_u32 s31, s31, s28")
    a("s_lshl_b32 s31, s31, 5")
    a("s_add_u32 s31, s31, s29")
    a("s_lshl_b32 s31, s31, 11")
    a(f"s_add_u32 s31, s31, {WS_O}")
    a(f"buffer_store_dwordx4 v[{P}:{P+3}], v1, {R4(WS_)}, s31 offen sc1")
    a(f"buffer_store_dwordx4 v[{P+4}:{P+7}], v1, {R4(WS_)}, s31 offen offset:1024 sc1")
    a("s_waitcnt vmcnt(0)")
    a("s_barrier")
    common.stamp(a, 6)
    Lg3 = a.newlabel("g3")
    a("s_cmp_lt_u32 s28, 4")
    a(f"s_cbranch_scc1 {Lg3}")
    common.endpgm(a, 0)
    a.label(Lg3)
    Lnp = a.newlabel("np3")
    a("s_cmp_lg_u32 s28, 0")
    a(f"s_cbranch_scc1 {Lnp}")
    publish(30, 29, FL_O)
    a("s_lshr_b32 s8, s3, 1")
    poll(8, FL_O, 32)
    a.label(Lnp)
    a("s_lshl_b32 s60, s3, 2")
    a("s_add_u32 s60, s60, s28")
    a("s_lshl_b32 s61, s60, 16")
    a(f"s_add_u32 s61, s61, {WS_O}")
    NPF = 24
    def OF(i): return 64 + 4 * (i % NPF)
    def oload(f):
        a(f"s_add_u32 s31, s61, {(f//4)*4096}")
        a(f"buffer_load_dwordx4 v[{OF(f)}:{OF(f)+3}], v1, {R4(WS_)}, s31 offen offset:{(f%4)*1024} sc1")
    a("v_and_b32 v2, 15, v0")
    a("v_lshrrev_b32 v3, 2, v2")
    a("v_and_b32 v2, 3, v2")
    a("v_lshrrev_b32 v4, 4, v0")
    a("v_and_b32 v4, 1, v4")
    a("v_lshlrev_b32 v4, 5, v4")
    a("v_lshl_add_u32 v4, v2, 3, v4")
    a("v_lshrrev_b32 v5, 1, v3")
    a("v_and_b32 v5, 1, v5")
    a("v_lshlrev_b32 v5, 6, v5")
    a("v_xor_b32 v4, v4, v5")
    a("v_lshrrev_b32 v5, 5, v0")
    a("v_lshl_add_u32 v3, v5, 2, v3")
    a("v_lshl_add_u32 v10, v3, 7, v4")
    a("v_xor_b32 v11, 64, v10")
    GA = 32
    for i in range(32): a(f"v_mov_b32 v{GA+i}, 0")
    def WF(b, u): return 16 + 8 * b + 4 * u
    def wread(fl, b):
        r = []
        for u in range(2):
            for z in range(2):
                r.append(f"ds_read_b64_tr_b16 v[{WF(b,u)+2*z}:{WF(b,u)+2*z+1}], v{8+u} offset:{fl*2048+z*1024}")
        return r
    a("s_barrier")
    common.stamp(a, 7)
    for f in range(NPF): oload(f)
    for c in range(8):
        a(f"v_add_u32 v8, {WCH(c)}, v10")
        a(f"v_add_u32 v9, {WCH(c)}, v11")
        for x in wread(0, 0): a(x)
        for fl in range(8):
            f = 8 * c + fl
            b = fl & 1
            if fl < 7:
                for x in wread(fl + 1, b ^ 1): a(x)
                a("s_waitcnt lgkmcnt(4)")
            else:
                a("s_waitcnt lgkmcnt(0)")
            rem = min(NPF - 1, 63 - f)
            a(f"s_waitcnt vmcnt({rem})")
            for u in range(2):
                a(f"v_mfma_f32_32x32x16_bf16 v[{GA+16*u}:{GA+16*u+15}], v[{WF(b,u)}:{WF(b,u)+3}], v[{OF(f)}:{OF(f)+3}], v[{GA+16*u}:{GA+16*u+15}]")
            if f + NPF < 64: oload(f + NPF)
    a("s_nop 15")
    a("v_and_b32 v2, 31, v0")
    a("v_lshlrev_b32 v2, 12, v2")
    a("v_lshl_add_u32 v2, v5, 4, v2")
    a("s_lshl_b32 s62, s60, 17")
    a("s_lshl_b32 s63, s4, 7")
    a("s_add_u32 s62, s62, s63")
    a("s_add_u32 s62, s62, 2048")
    for u in range(2):
        for gp in range(2):
            d = 64 + 8 * u + 4 * gp
            src = GA + 16 * u + 8 * gp
            for i in range(4):
                a(f"v_cvt_pk_bf16_f32 v{d+i}, v{src+2*i}, v{src+2*i+1}")
            a("s_nop 1")
            a(f"v_permlane32_swap_b32 v{d}, v{d+2}")
            a(f"v_permlane32_swap_b32 v{d+1}, v{d+3}")
            a("s_nop 1")
            a(f"buffer_store_dwordx4 v[{d}:{d+3}], v2, {R4(OUT)}, s62 offen offset:{64*u+32*gp}")
    common.endpgm(a, 0)

    a.label(LH)
    a("s_sub_u32 s28, s28, 8")
    def kreg(i): return 64 + 4 * i
    def vreg(j): return 92 + 4 * j
    a("s_lshr_b32 s80, s2, 4")
    a("s_lshl_b32 s80, s80, 2")
    a("s_add_u32 s80, s80, s28")
    a("s_and_b32 s81, s2, 15")
    a("s_lshl_b32 s82, s80, 5")
    a("s_lshl_b32 s83, s81, 6")
    a("v_lshrrev_b32 v11, 3, v0")
    a("v_and_b32 v12, 7, v0")
    a("s_lshl_b32 s84, s83, 3")
    a("v_lshlrev_b32 v13, 6, v12")
    if PPB >= 0: a("s_barrier")
    if PPB >= 1: a("s_barrier")
    for i in range(4):
        a(f"buffer_load_dwordx4 v[{140+4*i}:{143+4*i}], v13, {R4(SH)}, s84 offen offset:{16*i}")
    a("s_lshl_b32 s84, s82, 11")
    a("s_lshl_b32 s85, s83, 1")
    a("s_add_u32 s84, s84, s85")
    a("v_lshlrev_b32 v13, 13, v11")
    a("v_lshl_add_u32 v13, v12, 4, v13")
    a("v_add_u32 v13, s84, v13")
    for i in range(3):
        a(f"v_subrev_u32 v{8+i}, {2048*(3-i)}, v13")
    for i in range(3):
        a(f"buffer_load_dwordx4 v[{kreg(i)}:{kreg(i)+3}], v{8+i}, {R4(AK)}, 0 offen")
    for j in range(4):
        a(f"s_mov_b32 s84, {2048*j}")
        a(f"buffer_load_dwordx4 v[{kreg(3+j)}:{kreg(3+j)+3}], v13, {R4(AK)}, s84 offen")
        a(f"buffer_load_dwordx4 v[{vreg(j)}:{vreg(j)+3}], v13, {R4(AV)}, s84 offen")
    a("v_lshlrev_b32 v3, 3, v12")
    a("v_add_u32 v3, s83, v3")
    a(f"v_mul_u32_u24 v3, {UR_STRIDE}, v3")
    a("s_lshl_b32 s85, s82, 1")
    a(f"s_sub_u32 s85, {2*2044}, s85")
    a("v_add_u32 v3, s85, v3")
    a("v_lshlrev_b32 v4, 3, v11")
    a("v_sub_u32 v3, v3, v4")
    for _ in range(3 - PPB): a("s_barrier")
    def unpack(dst, src):
        for e in range(8):
            if e % 2 == 0: a(f"v_lshlrev_b32 v{dst+e}, 16, v{src+(e>>1)}")
            else: a(f"v_and_b32 v{dst+e}, 0xffff0000, v{src+(e>>1)}")
    def KU(i): return [108, 116, 124, 132][i % 4]
    WT = 32
    a("s_waitcnt vmcnt(0)")
    for e in range(8):
        for i in range(4):
            src = 140 + 2 * e + (i >> 1)
            dst = WT + 4 * e + i
            if i % 2 == 0: a(f"v_lshlrev_b32 v{dst}, 16, v{src}")
            else: a(f"v_and_b32 v{dst}, 0xffff0000, v{src}")
    for i in range(3): unpack(KU(i), kreg(i))
    for j in range(4):
        if j == 2: a("s_barrier")
        unpack(KU(j + 3), kreg(j + 3))
        unpack(24, vreg(j))
        for i in (3, 2, 1, 0):
            for e in range(8):
                if i == 3: a(f"v_mul_f32 v{16+e}, v{KU(j)+e}, v{WT+4*e+3}")
                else: a(f"v_fmac_f32 v{16+e}, v{KU(j+3-i)+e}, v{WT+4*e+i}")
        for e in range(8):
            a(f"v_mul_f32 v{16+e}, v{16+e}, v{24+e}")
        for q in range(4):
            a(f"v_cvt_pk_bf16_f32 v{vreg(j)+q}, v{16+2*q}, v{17+2*q}")
    a("s_barrier")
    a("s_mov_b32 s84, 0x05040100")
    a("s_mov_b32 s85, 0x07060302")
    for e in range(8):
        sel = "s84" if e % 2 == 0 else "s85"
        q = e >> 1
        a(f"v_perm_b32 v{64+2*e}, v{vreg(2)+q}, v{vreg(3)+q}, {sel}")
        a(f"v_perm_b32 v{65+2*e}, v{vreg(0)+q}, v{vreg(1)+q}, {sel}")
    for e in range(8):
        a(f"s_mov_b32 s86, {WS_UR0 + e * UR_STRIDE}")
        a(f"buffer_store_dwordx2 v[{64+2*e}:{65+2*e}], v3, {R4(WS_)}, s86 offen sc1")
    a("v_mov_b32 v20, 0")
    a(f"buffer_load_dword v21, v20, {R4(DBG)}, 0 offen sc1")
    a("s_barrier")
    a("s_barrier")
    a("s_waitcnt vmcnt(0)")
    a("v_readfirstlane_b32 s9, v21")
    a("s_barrier")
    Lnu = a.newlabel("nu")
    a("s_cmp_lg_u32 s28, 0")
    a(f"s_cbranch_scc1 {Lnu}")
    a("s_lshr_b32 s84, s2, 4")
    publish(81, 84, FL_UR)
    a.label(Lnu)
    for s in range(9, 16): a("s_barrier")
    a("s_barrier")
    a("s_barrier")
    a(f"v_mov_b32 v2, {FLAG_OFF}")
    a("v_mov_b32 v3, 0")
    a("ds_write_b32 v2, v3")
    poll(29, FL_QKV, 32)
    vm = VM(a)
    a("s_lshl_b32 s60, s29, 17")
    a("s_lshl_b32 s61, s28, 11")
    a("s_add_u32 s60, s60, s61")
    def issue_chunk(c):
        for kv, base in ((0, WS_K), (1, WS_V)):
            for i in range(2):
                a(f"s_add_u32 m0, s61, {(c % 4)*16384 + kv*8192 + i*1024}")
                a(f"s_add_u32 s31, s60, {base + c*8192 + i*1024}")
                vm.op(f"buffer_load_dwordx4 v1, {R4(WS_)}, s31 offen sc1 lds", ("c", c))
    a("s_lshl_b32 s62, s29, 6")
    a("s_lshl_b32 s31, s30, 3")
    a("s_add_u32 s62, s62, s31")
    a("s_lshl_b32 s62, s62, 11")
    a("s_lshl_b32 s63, s28, 12")
    a("s_add_u32 s62, s62, s63")
    for i in range(4):
        a(f"s_add_u32 m0, s63, {QOFF + i*1024}")
        a(f"s_add_u32 s31, s62, {WS_Q + i*1024}")
        vm.op(f"buffer_load_dwordx4 v1, {R4(WS_)}, s31 offen sc1 lds")
    a("s_lshl_b32 s31, s29, 7")
    a(f"s_add_u32 s31, s31, {WS_KMAX}")
    a(f"s_mov_b32 m0, {KMOFF}")
    a("s_mov_b64 exec, 0xff")
    vm.op(f"buffer_load_dwordx4 v1, {R4(WS_)}, s31 offen sc1 lds")
    a("s_mov_b64 exec, -1")
    issue_chunk(0); issue_chunk(1)
    vm.wait(("c", 0))
    a("s_waitcnt lgkmcnt(0)")
    a("s_barrier")
    issue_chunk(2)
    a("v_lshrrev_b32 v4, 3, v0")
    a("v_and_b32 v5, 7, v0")
    a("v_lshrrev_b32 v6, 1, v4")
    a("v_and_b32 v6, 1, v6")
    a("v_lshlrev_b32 v6, 2, v6")
    a("v_xor_b32 v7, v5, v6")
    a("v_lshlrev_b32 v7, 4, v7")
    a("v_lshl_add_u32 v3, v4, 11, v7")
    a("s_lshl_b32 s70, s4, 7")
    a("s_lshl_b32 s71, s28, 14")
    a("s_add_u32 s70, s70, s71")
    a("s_lshl_b32 s71, s28, 10")
    def wchunk(c):
        for n in range(4):
            a(f"s_add_u32 m0, s71, {WCH(c) + n*4096}")
            a(f"s_add_u32 s31, s70, {(4*c+n)*65536}")
            vm.op(f"buffer_load_dwordx4 v3, {R4(WO)}, s31 offen lds", ("w", c))
    a("s_lshr_b32 s72, s2, 3")
    a("s_and_b32 s73, s2, 7")
    a("s_lshl_b32 s74, s73, 2")
    a("s_add_u32 s74, s74, s28")
    a("v_lshrrev_b32 v20, 4, v0")
    a("v_and_b32 v10, 15, v0")
    a("v_lshlrev_b32 v11, 11, v10")
    a("v_lshl_add_u32 v11, v20, 4, v11")
    a("v_lshlrev_b32 v12, 12, v10")
    a("v_lshl_add_u32 v12, v20, 4, v12")
    a("s_lshl_b32 s75, s72, 17")
    a("s_lshl_b32 s76, s74, 6")
    a("s_add_u32 s77, s75, s76")
    a("s_lshl_b32 s75, s72, 18")
    a("s_add_u32 s78, s75, s76")
    a("v_lshrrev_b32 v13, 2, v10")
    a("v_lshl_add_u32 v13, v20, 3, v13")
    a("v_lshlrev_b32 v13, 7, v13")
    a("v_and_b32 v14, 3, v10")
    a("v_lshl_add_u32 v13, v14, 3, v13")
    a("s_mul_i32 s79, s28, 3072")
    a(f"s_add_u32 s79, s79, {KMOFF + 192}")
    a("s_lshl_b32 s79, s28, 12")
    a(f"s_add_u32 s79, s79, {CONV0}")
    a("v_add_u32 v13, s79, v13")
    a("v_add_u32 v15, s79, v1")
    a("v_lshlrev_b32 v14, 12, v4")
    a("v_lshl_add_u32 v14, v5, 4, v14")
    a("s_lshl_b32 s75, s74, 17")
    a("s_lshl_b32 s76, s72, 7")
    a("s_add_u32 s75, s75, s76")
    a(f"s_add_u32 s75, s75, {WS_YT}")
    for c in range(15):
        if c == 1:
            Lny = a.newlabel("ny")
            a("s_cmp_lg_u32 s28, 0")
            a(f"s_cbranch_scc1 {Lny}")
            a("s_lshr_b32 s84, s2, 5")
            a("s_and_b32 s85, s2, 31")
            publish(84, 85, FL_Y)
            a.label(Lny)
        if c == 4:
            for ps in range(4):
                a(f"s_add_u32 s31, s77, {ps*32768}")
                vm.op(f"buffer_load_dwordx4 v[{32+4*ps}:{35+4*ps}], v11, {R4(AQ)}, s31 offen")
        if c == 6:
            poll(73, FL_Y, 32)
            for n in range(4):
                a(f"s_add_u32 s31, s75, {n*32768}")
                vm.op(f"buffer_load_dwordx4 v[{64+4*n}:{67+4*n}], v14, {R4(WS_)}, s31 offen sc1", "yl")
        if c == 8:
            vm.wait("yl")
            for n in range(4):
                a(f"ds_write_b128 v15, v[{64+4*n}:{67+4*n}] offset:{n*1024}")
            a("s_waitcnt lgkmcnt(0)")
            for ps in range(4):
                for z in range(2):
                    a(f"ds_read_b64_tr_b16 v[{48+4*ps+2*z}:{49+4*ps+2*z}], v13 offset:{z*512+ps*32}")
            for ps in range(4):
                a(f"s_waitcnt lgkmcnt({6-2*ps})")
                for dw in range(4):
                    qr, yr = 32 + 4 * ps + dw, 48 + 4 * ps + dw
                    a(f"v_lshlrev_b32 v16, 16, v{qr}")
                    a(f"v_and_b32 v17, 0xffff0000, v{qr}")
                    a(f"v_lshlrev_b32 v18, 16, v{yr}")
                    a(f"v_and_b32 v19, 0xffff0000, v{yr}")
                    a("v_mul_f32 v16, v16, v18")
                    a("v_mul_f32 v17, v17, v19")
                    a(f"v_cvt_pk_bf16_f32 v{80+4*ps+dw}, v16, v17")
                a(f"s_add_u32 s31, s78, {ps*65536}")
                vm.op(f"buffer_store_dwordx4 v[{80+4*ps}:{83+4*ps}], v12, {R4(OUT)}, s31 offen")
        if 10 <= c < 15: wchunk(c - 10)
        vm.wait(("c", c + 1))
        a("s_barrier")
        if c + 3 <= 15: issue_chunk(c + 3)
    a("s_barrier")
    a("s_barrier")
    a(f"v_mov_b32 v6, {FLAG_OFF}")
    a("ds_read_b32 v7, v6")
    a("s_waitcnt lgkmcnt(0)")
    a("v_readfirstlane_b32 s31, v7")
    a("s_nop 3")
    a("s_cmp_eq_u32 s31, 0")
    Lhd = a.newlabel("hd")
    a(f"s_cbranch_scc1 {Lhd}")
    a("s_mov_b32 s8, 0")
    def issue_dyn():
        a("s_and_b32 s84, s8, 3")
        a("s_lshl_b32 s84, s84, 14")
        a("s_add_u32 s84, s84, s61")
        a("s_lshl_b32 s85, s8, 13")
        a("s_add_u32 s85, s85, s60")
        for kv, base in ((0, WS_K), (1, WS_V)):
            for i in range(2):
                a(f"s_add_u32 m0, s84, {kv*8192 + i*1024}")
                a(f"s_add_u32 s31, s85, {base + i*1024}")
                a(f"buffer_load_dwordx4 v1, {R4(WS_)}, s31 offen sc1 lds")
        a("s_add_u32 s8, s8, 1")
    issue_dyn()
    a("s_waitcnt vmcnt(0)")
    a("s_barrier")
    L2p = a.newlabel("p2")
    a.label(L2p)
    issue_dyn()
    a("s_waitcnt vmcnt(0)")
    a("s_barrier")
    a("s_cmp_lt_u32 s8, 16")
    a(f"s_cbranch_scc1 {L2p}")
    a("s_barrier")
    a.label(Lhd)
    a("s_barrier")
    for c in range(5, 8): wchunk(c)
    a("s_waitcnt vmcnt(0)")
    common.endpgm(a, 0)
    a.label(Lend)
    a("s_endpgm")
    return kernel_desc(name, 160)
```
